```python
import torch

def _softmax(x, axis=-1):
    return torch.softmax(x, dim=axis)
def _gelu(x):
    return torch.nn.functional.gelu(x, approximate="tanh")
def _silu(x):
    return torch.nn.functional.silu(x)
def _sigmoid(x):
    return torch.sigmoid(x)
def _layernorm(x, axis=-1, eps=1e-5):
    m = x.mean(dim=axis, keepdim=True)
    v = x.var(dim=axis, keepdim=True, unbiased=False)
    return (x - m) / torch.sqrt(v + eps)
def _scatter_add(tgt, idx, src, axis=0):
    return tgt.clone().index_add_(axis, idx, src)
def _segment_sum(src, seg, n):
    out = torch.zeros((n,) + src.shape[1:], dtype=src.dtype)
    return out.index_add_(0, seg, src)
def _pad(x, pw):
    flat = tuple(v for pair in reversed(pw) for v in pair)
    return torch.nn.functional.pad(x, flat)

kernel_name = 'parallel_sum__compressed_kv_cla__glu_gated_bilinear__decode'

def setup_inputs():

    _w = (lambda a: (lambda t: t.to(torch.bfloat16) if t.is_floating_point() else t)(torch.as_tensor(a)))
    def _A_setup():
        B, H, Sq, Sk, D, M = 1, 32, 1, 16384, 128, 512
        Dc = 4 * D
        return {
            "x": _w((lambda *s: torch.randn(*s, dtype=torch.bfloat16) * 0.05)(B, Sq, M)),
            "c_kv": _w((lambda *s: torch.randn(*s, dtype=torch.bfloat16) * 0.8)(B, Sk, Dc)),
            "w_q": _w((lambda *s: torch.randn(*s, dtype=torch.bfloat16) * 1.6)(M, H, D) * (M ** -0.5)),
            "w_uk": _w((lambda *s: torch.randn(*s, dtype=torch.bfloat16) * 1.6)(Dc, H, D) * (Dc ** -0.5)),
            "w_uv": _w((lambda *s: torch.randn(*s, dtype=torch.bfloat16) * 0.8)(Dc, H, D) * (Dc ** -0.5)),
            "w_o": _w((lambda *s: torch.randn(*s, dtype=torch.bfloat16) * 0.8)(H, D, M) * ((H * D) ** -0.5)),
        }
    _A_in = _A_setup()

    def _B_setup():
        B, S, D, F = 1, 1, 512, 1376
        return {
            "x": _w((lambda *s: torch.randn(*s, dtype=torch.bfloat16) * 0.05)(B, S, D)),
            "w_gate": _w((lambda *s: torch.randn(*s, dtype=torch.bfloat16) * 0.4)(D, F) * (D ** -0.5)),
            "w_up": _w((lambda *s: torch.randn(*s, dtype=torch.bfloat16) * 0.4)(D, F) * (D ** -0.5)),
            "w_down": _w((lambda *s: torch.randn(*s, dtype=torch.bfloat16) * 0.4)(F, D) * (F ** -0.5)),
        }
    _B_in = _B_setup()

    return {
        "A_x": _A_in["x"],
        "A_c_kv": _A_in["c_kv"],
        "A_w_q": _A_in["w_q"],
        "A_w_uk": _A_in["w_uk"],
        "A_w_uv": _A_in["w_uv"],
        "A_w_o": _A_in["w_o"],
        "B_x": _B_in["x"],
        "B_w_gate": _B_in["w_gate"],
        "B_w_up": _B_in["w_up"],
        "B_w_down": _B_in["w_down"],
    }

def reference(A_x, A_c_kv, A_w_q, A_w_uk, A_w_uv, A_w_o, B_x, B_w_gate, B_w_up, B_w_down):
    def _A_ref(x, c_kv, w_q, w_uk, w_uv, w_o):
        B, Sq, M = x.shape[0], x.shape[1], x.shape[2]
        Sk = c_kv.shape[1]
        H, D = w_q.shape[1], w_q.shape[2]
        q = torch.einsum("bqm,mhd->bhqd", x, w_q)
        k = torch.einsum("bkc,chd->bhkd", c_kv, w_uk)
        v = torch.einsum("bkc,chd->bhkd", c_kv, w_uv)
        scores = torch.einsum("bhqd,bhkd->bhqk", q, k) * (D ** -0.5)
        off = Sk - Sq
        qi = torch.arange(Sq)[:, None]
        kj = torch.arange(Sk)[None, :]
        cmask = kj <= (qi + off)
        scores = torch.where(cmask[None, None], scores, -1e9)
        p = _softmax(scores, axis=-1)
        ctx = torch.einsum("bhqk,bhkd->bhqd", p, v)
        return torch.einsum("bhqd,hdm->bqm", ctx, w_o)

    def _B_ref(x, w_gate, w_up, w_down):
        g = torch.einsum("bsd,df->bsf", x, w_gate)
        u = torch.einsum("bsd,df->bsf", x, w_up)
        h = g * u
        return torch.einsum("bsf,fd->bsd", h, w_down)

    x = A_x
    xn = _layernorm(x, axis=-1)
    return x + _A_ref(xn, A_c_kv, A_w_q, A_w_uk, A_w_uv, A_w_o) + _B_ref(xn, B_w_gate, B_w_up, B_w_down)
```

```python
NAME = "parallel_sum__compressed_kv_cla__glu_gated_bilinear__decode"
HEADER = open("cdna_kernels/%s.s.ref" % NAME).read().split("; Override launch")[0]
SIZES = dict(x=1024, ckv=16777216, wq=4194304, wuk=4194304, wuv=4194304, wo=4194304, bx=1024,
             wg=1409024, wu=1409024, wd=1409024, out=1024, dbg=256, ws=268435456)
KOFF = dict(x=0, ckv=8, wq=16, wuk=24, wuv=32, wo=40, bx=48, wg=56, wu=64, wd=72, out=80, dbg=88, ws=96)
STAMP_OFF = 128 << 20

class Asm:
    def __init__(self):
        self.lines = []
        self.nlabel = 0
    def __call__(self, s=""):
        for l in s.split("\n"):
            l = l.strip()
            if not l: continue
            if l.endswith(":") or l.startswith("."):
                self.lines.append(l)
            else:
                self.lines.append("    " + l)
    def label(self, base="L"):
        self.nlabel += 1
        return "%s_%d" % (base, self.nlabel)
    def text(self):
        return "\n".join(self.lines) + "\n"

def kernel_begin(a, name):
    a(".globl %s\n.p2align 8\n.type %s,@function\n%s:" % (name, name, name))

def descriptor(name, vgpr=256, sgpr=102, accum=256):
    return """.p2align 6
.amdhsa_kernel %s
  .amdhsa_next_free_vgpr %d
  .amdhsa_next_free_sgpr %d
  .amdhsa_accum_offset %d
  .amdhsa_group_segment_fixed_size 0
  .amdhsa_kernarg_size 104
  .amdhsa_user_sgpr_count 2
  .amdhsa_user_sgpr_kernarg_segment_ptr 1
  .amdhsa_system_sgpr_workgroup_id_x 1
  .amdhsa_float_denorm_mode_32 3
.end_amdhsa_kernel
""" % (name, vgpr, sgpr, accum)

def finish(launch_lines, body, descs):
    s = HEADER + "".join("; @launch %s\n" % l for l in launch_lines)
    s += '.amdgcn_target "amdgcn-amd-amdhsa--gfx950"\n.text\n' + body
    s += '.section .rodata,"a"\n' + "".join(descs)
    return s

def load_srd(a, sreg, buf):
    a("s_load_dwordx2 s[%d:%d], s[0:1], %d" % (sreg, sreg+1, KOFF[buf]))
    a("s_mov_b32 s%d, %d" % (sreg+2, SIZES[buf]))
    a("s_mov_b32 s%d, 0x20000" % (sreg+3))

def stamp(a, k, sbase=64, tmp=62):
    a("s_memrealtime s[%d:%d]" % (tmp, tmp+1))
    a("s_waitcnt lgkmcnt(0)")
    a("s_mov_b32 s%d, s%d" % (sbase+k, tmp))

def write_stamps(a, n, srd_ws, s_wg, s_wave, nwave, sbase=64, vtmp=0, stmp=60):
    a("s_mul_i32 s%d, s%d, %d" % (stmp, s_wg, nwave))
    a("s_add_u32 s%d, s%d, s%d" % (stmp, stmp, s_wave))
    a("s_lshl_b32 s%d, s%d, 6" % (stmp, stmp))
    a("s_add_u32 s%d, s%d, %d" % (stmp, stmp, STAMP_OFF))
    a("v_mov_b32 v%d, 0" % vtmp)
    for k in range(n):
        a("v_writelane_b32 v%d, s%d, %d" % (vtmp, sbase+k, k))
    a("v_mbcnt_lo_u32_b32 v%d, -1, 0" % (vtmp+1))
    a("v_mbcnt_hi_u32_b32 v%d, -1, v%d" % (vtmp+1, vtmp+1))
    a("v_lshlrev_b32 v%d, 2, v%d" % (vtmp+1, vtmp+1))
    a("s_mov_b64 exec, 0xffff")
    a("buffer_store_dword v%d, v%d, s[%d:%d], s%d offen" % (vtmp, vtmp+1, srd_ws, srd_ws+3, stmp))
    a("s_mov_b64 exec, -1")
```

```python
import sys
from asmlib import *
import math, struct
def f2u(x): return struct.unpack("<I", struct.pack("<f", x))[0]

WS_QABS = 0
WS_GU   = 64<<10
WS_ML   = 192<<10
WS_OUTP = 256<<10
WS_PART = 1<<20
ROW = 1056
NT = "nt" if "--nt" in sys.argv else ""

def ids(a):
    a("""v_lshrrev_b32 v1, 6, v0
    s_and_b32 s40, s2, 7
    v_readfirstlane_b32 s3, v1
    s_lshr_b32 s41, s2, 3
    s_lshr_b32 s42, s41, 3
    s_lshl_b32 s43, s40, 2
    s_add_u32 s42, s42, s43
    s_and_b32 s43, s41, 7
    v_and_b32 v2, 63, v0""")

def masks(a, vm, lane=2, t=3):
    a("v_and_b32 v%d, 1, v%d" % (t, lane))
    a("v_cmp_eq_u32 vcc, 1, v%d" % t)
    a("v_mov_b32 v%d, 0xffff" % t)
    a("v_mov_b32 v%d, 0xffff0000" % vm)
    a("v_cndmask_b32 v%d, v%d, v%d, vcc" % (t, t, vm))
    a("v_bfe_u32 v%d, v%d, 1, 2" % (vm+3, lane))
    for r in range(4):
        a("v_cmp_eq_u32 vcc, %d, v%d" % (r, vm+3))
        a("s_nop 1")
        a("v_cndmask_b32 v%d, 0, v%d, vcc" % (vm+r, t))

def wave_allreduce(a, op, v, t):
    for ror in (8,4,2,1):
        a("s_nop 1")
        a("%s_dpp v%d, v%d, v%d row_ror:%d row_mask:0xf bank_mask:0xf" % (op, v, v, v, ror))
    xrow_allreduce(a, op, v, t)
def xrow_allreduce(a, op, v, t):
    for sw in ("v_permlane16_swap_b32", "v_permlane32_swap_b32"):
        a("v_mov_b32 v%d, v%d" % (t, v))
        a("s_nop 1")
        a("%s v%d, v%d" % (sw, v, t))
        a("s_nop 1")
        a("%s v%d, v%d, v%d" % (op, v, v, t))

def round_bf16(a, v):
    a("v_cvt_pk_bf16_f32 v%d, v%d, v%d" % (v, v, v))
    a("v_and_b32 v%d, 0xffff0000, v%d" % (v, v))

def layernorm(a, vx, vf, t):
    for k in range(4):
        a("v_lshlrev_b32 v%d, 16, v%d" % (vf+2*k, vx+k))
        a("v_and_b32 v%d, 0xffff0000, v%d" % (vf+2*k+1, vx+k))
    a("v_add_f32 v%d, v%d, v%d" % (t, vf, vf+1))
    for k in range(2, 8): a("v_add_f32 v%d, v%d, v%d" % (t, t, vf+k))
    wave_allreduce(a, "v_add_f32", t, t+1)
    a("v_mul_f32 v%d, 0x%x, v%d" % (t, f2u(1/512), t))
    a("v_sub_f32 v%d, v%d, v%d" % (t+1, vf, t))
    a("v_mul_f32 v%d, v%d, v%d" % (t+2, t+1, t+1))
    for k in range(1, 8):
        a("v_sub_f32 v%d, v%d, v%d" % (t+1, vf+k, t))
        a("v_fmac_f32 v%d, v%d, v%d" % (t+2, t+1, t+1))
    wave_allreduce(a, "v_add_f32", t+2, t+1)
    a("v_mul_f32 v%d, 0x%x, v%d" % (t+2, f2u(1/512), t+2))
    round_bf16(a, t+2); round_bf16(a, t)
    a("v_add_f32 v%d, 0x%x, v%d" % (t+2, f2u(1e-5), t+2))
    round_bf16(a, t+2)
    a("v_sqrt_f32 v%d, v%d" % (t+2, t+2)); a("s_nop 0")
    round_bf16(a, t+2)
    a("v_rcp_f32 v%d, v%d" % (t+3, t+2)); a("s_nop 0")
    for k in range(8):
        v = vf+k
        a("v_sub_f32 v%d, v%d, v%d" % (v, v, t))
        round_bf16(a, v)
        a("v_mul_f32 v%d, v%d, v%d" % (t+1, v, t+3))
        a("v_fma_f32 v%d, -v%d, v%d, v%d" % (v, t+1, t+2, v))
        a("v_fma_f32 v%d, v%d, v%d, v%d" % (v, v, t+3, t+1))
        a("v_cvt_pk_bf16_f32 v%d, v%d, v%d" % (v, v, v))

def selA(a, dst, src, vm):
    for r in range(4): a("v_and_b32 v%d, v%d, v%d" % (dst+r, src, vm+r))

VALID = "0xff00ff0000ff00ff"
def exec_valid(a):
    a("s_mov_b32 exec_lo, 0x00ff00ff\ns_mov_b32 exec_hi, 0xff00ff00")

a = Asm()
kernel_begin(a, "k1_kernel")
a("s_cmp_ge_u32 s2, 256\ns_cbranch_scc1 k1_end")
X,WQ,WUK,WG,WU,WS = 4,8,12,16,20,24
for r,b in ((X,"x"),(WQ,"wq"),(WUK,"wuk"),(WG,"wg"),(WU,"wu"),(WS,"ws")): load_srd(a, r, b)
ids(a)
a("v_lshlrev_b32 v3, 4, v2")
a("v_lshrrev_b32 v8, 3, v2\nv_and_b32 v9, 7, v2")
a("v_lshlrev_b32 v10, 17, v8\nv_lshl_add_u32 v10, v9, 4, v10")
a("s_waitcnt lgkmcnt(0)")
a("buffer_load_dwordx4 v[4:7], v3, s[%d:%d], 0 offen" % (X, X+3))
a("s_lshl_b32 s50, s3, 20\ns_lshl_b32 s51, s42, 8\ns_add_u32 s50, s50, s51")
for t in range(16):
    for u in range(2):
        v = 128 + t*8 + u*4
        a("buffer_load_dwordx4 v[%d:%d], v10, s[%d:%d], s50 offen offset:%d %s" % (v, v+3, WQ, WQ+3, u*128, NT))
    a("s_add_u32 s50, s50, 8192")
a("v_lshrrev_b32 v11, 4, v2\nv_and_b32 v12, 15, v2\nv_lshlrev_b32 v13, 15, v11\nv_lshl_add_u32 v13, v12, 4, v13")
a("s_lshl_b32 s50, s43, 19\ns_lshl_b32 s52, s3, 17\ns_add_u32 s50, s50, s52\ns_add_u32 s50, s50, s51")
for t in range(4):
    v = 112 + t*4
    a("buffer_load_dwordx4 v[%d:%d], v13, s[%d:%d], s50 offen %s" % (v, v+3, WUK, WUK+3, NT))
    a("s_add_u32 s50, s50, 8192")
a("v_mul_u32_u24 v14, 5504, v8\nv_lshl_add_u32 v14, v9, 4, v14")
a("s_mul_i32 s50, s40, %d\ns_mul_i32 s52, s3, %d\ns_add_u32 s50, s50, s52\ns_lshl_b32 s52, s41, 7\ns_add_u32 s50, s50, s52" % (64*2752, 16*2752))
for mi, srd in enumerate((WG, WU)):
    for n in range(2):
        v = 96 + mi*8 + n*4
        a("buffer_load_dwordx4 v[%d:%d], v14, s[%d:%d], s50 offen offset:%d %s" % (v, v+3, srd, srd+3, n*2752, NT))
masks(a, 16)
a("s_waitcnt vmcnt(40)")
layernorm(a, 4, 24, 20)
a("s_lshl_b32 s53, s3, 11\nv_lshl_add_u32 v3, v2, 5, s53")
a("ds_write_b128 v3, v[24:27]\nds_write_b128 v3, v[28:31] offset:16")
a("s_lshl_b32 s54, s3, 9\ns_add_u32 s54, s54, s53\nv_lshl_add_u32 v3, v8, 6, s54")
a("s_lshl_b32 s54, s40, 8\ns_lshl_b32 s55, s3, 6\ns_add_u32 s54, s54, s55\ns_add_u32 s54, s54, s53\nv_lshl_add_u32 v15, v8, 3, s54")
a("s_waitcnt lgkmcnt(0)")
for q in range(4): a("ds_read_b128 v[%d:%d], v3 offset:%d" % (32+4*q, 35+4*q, 16*q))
a("ds_read_b64 v[48:49], v15")
a("s_waitcnt lgkmcnt(0)")
for r in range(16): a("v_mov_b32 v%d, 0" % (64+r))
for t in range(16):
    d = 52 + (t & 1)*4
    selA(a, d, 32+t, 16)
    a("s_waitcnt vmcnt(%d)" % (8 + 30 - 2*t))
    a("s_nop 0")
    for u in range(2):
        v = 128 + t*8 + u*4
        a("v_mfma_f32_16x16x32_bf16 v[%d:%d], v[%d:%d], v[%d:%d], v[%d:%d]" % (64+4*u, 67+4*u, d, d+3, v, v+3, 64+4*u, 67+4*u))
a("s_waitcnt vmcnt(0)")
for n in range(2):
    d = 52 + n*4
    selA(a, d, 48+n, 16)
    a("s_nop 1")
    for mi in range(2):
        v = 96 + mi*8 + n*4
        a("v_mfma_f32_16x16x32_bf16 v[%d:%d], v[%d:%d], v[%d:%d], v[%d:%d]" % (72+4*mi, 75+4*mi, d, d+3, v, v+3, 72+4*mi, 75+4*mi))
a("v_lshrrev_b32 v3, 5, v2\ns_lshl_b32 s53, s3, 1\nv_add_u32 v3, s53, v3\nv_lshlrev_b32 v3, 10, v3")
a("v_lshl_add_u32 v3, v9, 5, v3\nv_and_b32 v15, 1, v11\nv_lshl_add_u32 v3, v15, 4, v3")
a("s_nop 7")
exec_valid(a)
for q in range(4): a("ds_write_b128 v3, v[%d:%d] offset:%d" % (64+4*q, 67+4*q, 8192 + 256*q))
a("s_mov_b64 exec, -1\ns_waitcnt lgkmcnt(0)\ns_barrier")
a("v_lshlrev_b32 v3, 5, v12")
for p in range(8):
    for q in range(2):
        v = 128 + p*8 + q*4
        a("ds_read_b128 v[%d:%d], v3 offset:%d" % (v, v+3, 8192 + p*1024 + q*16))
a("v_lshlrev_b32 v15, 2, v0")
for p in range(8): a("ds_read_b32 v%d, v15 offset:%d" % (200+p, 8192 + 512 + p*1024))
a("s_waitcnt lgkmcnt(0)")
for p in range(1, 8):
    for e in range(8): a("v_add_f32 v%d, v%d, v%d" % (128+e, 128+e, 128+p*8+e))
    a("v_add_f32 v200, v200, v%d" % (200+p))
for k in range(4): a("v_cvt_pk_bf16_f32 v%d, v%d, v%d" % (32+k, 128+2*k, 129+2*k))
for t in range(4):
    a("v_mov_b32 v%d, 0" % (40+t))
for k in range(4):
    for t in range(4):
        a("v_dot2c_f32_bf16 v%d, v%d, v%d" % (40+t, 112+4*t+k, 32+k))
a("s_nop 2")
for ror in (8,4,2,1):
    for t in range(4):
        a("v_add_f32_dpp v%d, v%d, v%d row_ror:%d row_mask:0xf bank_mask:0xf" % (40+t, 40+t, 40+t, ror))
SC = (128 ** -0.5) * math.log2(math.e)
for t in range(4): a("v_mul_f32 v%d, 0x%x, v%d" % (40+t, f2u(SC), 40+t))
a("v_cvt_pk_bf16_f32 v44, v40, v41\nv_cvt_pk_bf16_f32 v45, v42, v43")
a("""s_lshr_b32 s50, s42, 4
s_lshl_b32 s50, s50, 14
s_and_b32 s51, s42, 15
s_lshl_b32 s51, s51, 4
s_add_u32 s50, s50, s51
s_lshl_b32 s51, s43, 11
s_add_u32 s50, s50, s51
s_lshl_b32 s51, s3, 9
s_add_u32 s50, s50, s51
v_lshrrev_b32 v3, 1, v11
v_lshlrev_b32 v3, 8, v3
v_and_b32 v15, 1, v11
v_lshl_add_u32 v3, v15, 3, v3
s_mov_b32 exec_lo, 0x00010001
s_mov_b32 exec_hi, 0x00010001""")
a("buffer_store_dwordx2 v[44:45], v3, s[%d:%d], s50 offen offset:%d" % (WS, WS+3, WS_QABS))
a("s_mov_b64 exec, -1")
a("s_cmp_ge_u32 s41, 22\ns_cbranch_scc1 k1_end\ns_cmp_ge_u32 s3, 2\ns_cbranch_scc1 k1_end")
a("""v_lshlrev_b32 v3, 9, v8
v_lshl_add_u32 v3, v9, 2, v3
s_lshl_b32 s50, s41, 12
s_lshl_b32 s51, s40, 6
s_add_u32 s50, s50, s51
s_lshl_b32 s51, s3, 5
s_add_u32 s50, s50, s51
s_add_u32 s50, s50, %d""" % WS_GU)
a("buffer_store_dword v200, v3, s[%d:%d], s50 offen" % (WS, WS+3))
a("k1_end:\ns_endpgm")

kernel_begin(a, "k2_kernel")
a("s_cmp_ge_u32 s2, 256\ns_cbranch_scc1 k2_end")
CK,WS = 4,8
load_srd(a, CK, "ckv"); load_srd(a, WS, "ws")
ids(a)
a("s_lshl_b32 s44, s40, 4\ns_lshr_b32 s45, s41, 1\ns_add_u32 s44, s44, s45\ns_and_b32 s45, s41, 1")
a("v_lshlrev_b32 v3, 4, v2")
a("v_lshrrev_b32 v11, 4, v2\nv_and_b32 v12, 15, v2")
a("s_waitcnt lgkmcnt(0)")
a("s_lshl_b32 s50, s45, 14")
for s in range(16):
    a("buffer_load_dwordx4 v[%d:%d], v3, s[%d:%d], s50 offen offset:%d" % (64+4*s, 67+4*s, WS, WS+3, (s&3)*1024))
    if s & 3 == 3: a("s_add_u32 s50, s50, 4096")
a("s_lshl_b32 s50, s44, 17\ns_lshl_b32 s51, s3, 15\ns_add_u32 s50, s50, s51\ns_mul_i32 s52, s3, %d" % (32*ROW))
for r in range(32):
    a("s_mov_b32 m0, s52\ns_add_u32 s52, s52, %d" % ROW)
    a("buffer_load_dwordx4 v3, s[%d:%d], s50 offen %s lds" % (CK, CK+3, NT))
    a("s_add_u32 s50, s50, 1024")
a("s_mul_i32 s52, s3, %d\nv_mul_u32_u24 v4, %d, v12\nv_lshl_add_u32 v4, v11, 4, v4\nv_add_u32 v4, s52, v4" % (32*ROW, ROW))
for r in range(8): a("v_mov_b32 v%d, 0" % (16+r))
a("s_waitcnt vmcnt(0)")
for s in range(16):
    for T in range(2):
        v = 128 + s*8 + T*4
        a("ds_read_b128 v[%d:%d], v4 offset:%d" % (v, v+3, 16*T*ROW + s*64))
    if s % 4 == 3:
        a("s_waitcnt lgkmcnt(0)")
        for s2 in range(s-3, s+1):
            for T in range(2):
                v = 128 + s2*8 + T*4
                a("v_mfma_f32_16x16x32_bf16 v[%d:%d], v[%d:%d], v[%d:%d], v[%d:%d]" % (16+4*T, 19+4*T, v, v+3, 64+4*s2, 67+4*s2, 16+4*T, 19+4*T))
a("s_nop 7")
a("v_max3_f32 v24, v16, v17, v18\nv_max3_f32 v24, v24, v19, v20\nv_max3_f32 v24, v24, v21, v22\nv_max_f32 v24, v24, v23")
xrow_allreduce(a, "v_max_f32", 24, 25)
LMX = 128*ROW; LPX = LMX + 256
a("s_lshl_b32 s52, s3, 2\ns_add_u32 s52, s52, %d\nv_lshl_add_u32 v5, v12, 4, s52" % LMX)
a("ds_write_b32 v5, v24\ns_waitcnt lgkmcnt(0)\ns_barrier")
a("v_lshlrev_b32 v5, 4, v12\nv_add_u32 v5, %d, v5\nds_read_b128 v[28:31], v5\ns_waitcnt lgkmcnt(0)" % LMX)
a("v_max3_f32 v24, v28, v29, v30\nv_max_f32 v24, v24, v31")
for r in range(8):
    a("v_sub_f32 v%d, v%d, v24" % (16+r, 16+r))
for r in range(8):
    a("v_exp_f32 v%d, v%d" % (16+r, 16+r))
a("s_nop 0")
for k in range(4): a("v_cvt_pk_bf16_f32 v%d, v%d, v%d" % (28+k, 16+2*k, 17+2*k))
a("s_lshl_b32 s52, s3, 10\ns_add_u32 s52, s52, %d\nv_add_u32 v5, s52, v3\nds_write_b128 v5, v[28:31]\ns_waitcnt lgkmcnt(0)\ns_barrier" % LPX)
a("v_add_u32 v5, %d, v3" % LPX)
for ks in range(4): a("ds_read_b128 v[%d:%d], v5 offset:%d" % (32+4*ks, 35+4*ks, ks*1024))
a("v_lshrrev_b32 v6, 2, v2\nv_mul_u32_u24 v6, %d, v6\nv_and_b32 v7, 3, v2\nv_lshl_add_u32 v6, v7, 3, v6\ns_lshl_b32 s52, s3, 8\nv_add_u32 v6, s52, v6\nv_add_u32 v7, %d, v6" % (ROW, 64*ROW))
for r in range(36): a("v_mov_b32 v%d, 0" % (64+r))
a("v_mov_b32 v48, 0x3f803f80\nv_mov_b32 v49, 0x3f803f80\nv_mov_b32 v50, 0x3f803f80\nv_mov_b32 v51, 0x3f803f80")
for ks in range(4):
    for t in range(8):
        for T in range(2):
            v = 128 + ks*32 + t*4 + T*2
            a("ds_read_b64_tr_b16 v[%d:%d], v%d offset:%d" % (v, v+1, 6 + (ks>>1), (32*(ks&1) + 16*T)*ROW + 32*t))
    a("s_waitcnt lgkmcnt(0)")
    for t in range(8):
        v = 128 + ks*32 + t*4
        a("v_mfma_f32_16x16x32_bf16 v[%d:%d], v[%d:%d], v[%d:%d], v[%d:%d]" % (64+4*t, 67+4*t, 32+4*ks, 35+4*ks, v, v+3, 64+4*t, 67+4*t))
    a("v_mfma_f32_16x16x32_bf16 v[96:99], v[48:51], v[%d:%d], v[96:99]" % (32+4*ks, 35+4*ks))
a("s_nop 7")
a("""v_lshlrev_b32 v5, 19, v11
v_lshrrev_b32 v6, 3, v12
v_lshl_add_u32 v5, v6, 14, v5
v_and_b32 v6, 7, v12
v_lshl_add_u32 v5, v6, 4, v5
s_lshl_b32 s50, s45, 21
s_lshl_b32 s51, s3, 15
s_add_u32 s50, s50, s51
s_lshl_b32 s51, s44, 7
s_add_u32 s50, s50, s51
s_add_u32 s50, s50, %d""" % WS_PART)
for r in range(4):
    for k in range(4):
        a("v_cvt_pk_bf16_f32 v%d, v%d, v%d" % (128+4*r+k, 64+8*k+r, 68+8*k+r))
    a("buffer_store_dwordx4 v[%d:%d], v5, s[%d:%d], s50 offen" % (128+4*r, 131+4*r, WS, WS+3))
    a("s_add_u32 s50, s50, %d" % (1<<17))
a("s_cmp_lg_u32 s3, 0\ns_cbranch_scc1 k2_end")
a("v_mov_b32 v25, v96\nv_lshlrev_b32 v5, 10, v12\ns_lshl_b32 s50, s45, 14\ns_lshl_b32 s51, s44, 3\ns_add_u32 s50, s50, s51\ns_add_u32 s50, s50, %d" % WS_ML)
a("s_mov_b64 exec, 0xffff")
a("buffer_store_dwordx2 v[24:25], v5, s[%d:%d], s50 offen" % (WS, WS+3))
a("k2_end:\ns_endpgm")
K2_LDS = LPX + 4096

kernel_begin(a, "k3_kernel")
a("s_cmp_ge_u32 s2, 256\ns_cbranch_scc1 k3_end")
WUV,WO,WD,WS = 4,8,12,16
for r,b in ((WUV,"wuv"),(WO,"wo"),(WD,"wd"),(WS,"ws")): load_srd(a, r, b)
ids(a)
a("v_lshlrev_b32 v3, 4, v2\nv_lshrrev_b32 v8, 3, v2\nv_and_b32 v9, 7, v2\nv_lshrrev_b32 v11, 4, v2")
a("s_waitcnt lgkmcnt(0)")
a("s_lshl_b32 s50, s42, 10\ns_add_u32 s50, s50, %d" % WS_ML)
a("buffer_load_dwordx4 v[20:23], v3, s[%d:%d], s50 offen" % (WS, WS+3))
a("s_lshl_b32 s51, s3, 8\ns_add_u32 s50, s50, s51\nv_lshlrev_b32 v4, 5, v8")
a("buffer_load_dwordx4 v[24:27], v4, s[%d:%d], s50 offen" % (WS, WS+3))
a("buffer_load_dwordx4 v[28:31], v4, s[%d:%d], s50 offen offset:16" % (WS, WS+3))
a("s_lshl_b32 s50, s42, 17\ns_lshl_b32 s51, s43, 14\ns_add_u32 s50, s50, s51\ns_lshl_b32 s51, s3, 12\ns_add_u32 s50, s50, s51\ns_add_u32 s50, s50, %d" % WS_PART)
a("v_lshlrev_b32 v4, 9, v8\nv_lshl_add_u32 v4, v9, 4, v4")
for n in range(4): a("buffer_load_dwordx4 v[%d:%d], v4, s[%d:%d], s50 offen offset:%d" % (32+4*n, 35+4*n, WS, WS+3, n*128))
a("s_min_u32 s46, s2, 171\ns_lshl_b32 s50, s46, 9\ns_add_u32 s50, s50, %d\nv_lshlrev_b32 v4, 6, v9\nv_lshl_add_u32 v4, v8, 2, v4" % WS_GU)
a("buffer_load_dword v12, v4, s[%d:%d], s50 offen\nbuffer_load_dword v13, v4, s[%d:%d], s50 offen offset:32" % (WS, WS+3, WS, WS+3))
a("""v_and_b32 v4, 3, v8
v_lshlrev_b32 v4, 5, v4
v_lshrrev_b32 v5, 2, v8
v_add_u32 v4, v4, v5
v_lshlrev_b32 v4, 13, v4
v_lshl_add_u32 v4, v9, 4, v4
s_lshr_b32 s50, s43, 1
s_lshl_b32 s50, s50, 7
s_and_b32 s51, s43, 1
s_lshl_b32 s51, s51, 3
s_add_u32 s50, s50, s51
s_lshl_b32 s51, s3, 1
s_add_u32 s50, s50, s51
s_lshl_b32 s50, s50, 13
s_lshl_b32 s51, s42, 8
s_add_u32 s50, s50, s51""")
for n in range(2):
    for u in range(2):
        v = 48 + n*8 + u*4
        a("buffer_load_dwordx4 v[%d:%d], v4, s[%d:%d], s50 offen offset:%d %s" % (v, v+3, WUV, WUV+3, u*128, NT))
    a("s_add_u32 s50, s50, %d" % (16*8192))
a("v_lshlrev_b32 v4, 10, v8\nv_lshl_add_u32 v4, v9, 4, v4\ns_lshl_b32 s50, s46, 13\ns_lshl_b32 s51, s3, 8\ns_add_u32 s50, s50, s51")
for u in range(2): a("buffer_load_dwordx4 v[%d:%d], v4, s[%d:%d], s50 offen offset:%d %s" % (64+4*u, 67+4*u, WD, WD+3, u*128, NT))
a("v_lshlrev_b32 v4, 12, v8\nv_lshl_add_u32 v4, v9, 4, v4\ns_lshl_b32 s50, s42, 17\ns_lshl_b32 s51, s3, 15\ns_add_u32 s50, s50, s51")
for n in range(4):
    for u in range(8):
        v = 128 + n*32 + u*4
        a("buffer_load_dwordx4 v[%d:%d], v4, s[%d:%d], s50 offen offset:%d %s" % (v, v+3, WO, WO+3, n*1024 + u*128, NT))
masks(a, 16)
a("s_waitcnt vmcnt(38)")
a("v_max_f32 v4, v20, v22")
wave_allreduce(a, "v_max_f32", 4, 5)
a("v_sub_f32 v20, v20, v4\nv_sub_f32 v22, v22, v4\nv_exp_f32 v20, v20\nv_exp_f32 v22, v22\ns_nop 0")
round_bf16(a, 20); round_bf16(a, 22)
a("v_mul_f32 v20, v20, v21\nv_fmac_f32 v20, v22, v23")
wave_allreduce(a, "v_add_f32", 20, 5)
a("v_rcp_f32 v20, v20")
for r in range(4): a("v_mov_b32 v%d, 0" % (72+r))
for n in range(4):
    a("v_sub_f32 v5, v%d, v4\nv_exp_f32 v5, v5\ns_nop 0\nv_cvt_pk_bf16_f32 v5, v5, v5" % (24+2*n))
    selA(a, 76, 5, 16)
    a("s_nop 1")
    a("v_mfma_f32_16x16x32_bf16 v[72:75], v[76:79], v[%d:%d], v[72:75]" % (32+4*n, 35+4*n))
a("v_lshrrev_b32 v6, 5, v2\ns_lshl_b32 s53, s3, 1\nv_add_u32 v6, s53, v6\nv_and_b32 v7, 1, v11\nv_lshlrev_b32 v7, 4, v7\nv_lshl_add_u32 v7, v9, 5, v7")
a("v_lshl_add_u32 v5, v6, 8, v7\ns_nop 7")
exec_valid(a)
a("ds_write_b128 v5, v[72:75]\ns_mov_b64 exec, -1\ns_waitcnt lgkmcnt(0)\ns_barrier")
a("s_lshl_b32 s53, s3, 6\nv_lshl_add_u32 v5, v8, 3, s53")
for p in range(8): a("ds_read_b64 v[%d:%d], v5 offset:%d" % (80+2*p, 81+2*p, p*256))
a("s_waitcnt lgkmcnt(0)")
for p in range(1, 8): a("v_add_f32 v80, v80, v%d\nv_add_f32 v81, v81, v%d" % (80+2*p, 81+2*p))
a("v_mul_f32 v80, v80, v20\nv_mul_f32 v81, v81, v20\nv_cvt_pk_bf16_f32 v80, v80, v80\nv_cvt_pk_bf16_f32 v81, v81, v81")
for r in range(8): a("v_mov_b32 v%d, 0" % (84+r))
a("s_waitcnt vmcnt(32)")
for n in range(2):
    selA(a, 76, 80+n, 16); a("s_nop 1")
    for u in range(2):
        v = 48 + n*8 + u*4
        a("v_mfma_f32_16x16x32_bf16 v[%d:%d], v[76:79], v[%d:%d], v[%d:%d]" % (84+4*u, 87+4*u, v, v+3, 84+4*u, 87+4*u))
a("v_lshl_add_u32 v5, v6, 9, v7\ns_nop 7")
exec_valid(a)
a("ds_write_b128 v5, v[84:87] offset:2048\nds_write_b128 v5, v[88:91] offset:2304\ns_mov_b64 exec, -1\ns_waitcnt lgkmcnt(0)\ns_barrier")
a("s_lshl_b32 s53, s3, 7\nv_lshl_add_u32 v5, v8, 4, s53")
for p in range(8): a("ds_read_b128 v[%d:%d], v5 offset:%d" % (24+4*p, 27+4*p, 2048 + p*512))
for v in (12, 13):
    a("s_nop 1\nv_add_f32_dpp v%d, v%d, v%d quad_perm:[1,0,3,2] row_mask:0xf bank_mask:0xf" % (v,v,v))
    a("s_nop 1\nv_add_f32_dpp v%d, v%d, v%d quad_perm:[2,3,0,1] row_mask:0xf bank_mask:0xf" % (v,v,v))
    a("s_nop 1\nv_add_f32_dpp v%d, v%d, v%d row_half_mirror row_mask:0xf bank_mask:0xf" % (v,v,v))
    round_bf16(a, v)
a("v_mul_f32 v12, v12, v13\nv_cvt_pk_bf16_f32 v12, v12, v12")
a("s_cmp_lt_u32 s2, 172\ns_cselect_b32 s53, -1, 0\nv_and_b32 v12, s53, v12")
a("s_waitcnt lgkmcnt(0)")
for p in range(1, 8):
    for n in range(4): a("v_add_f32 v%d, v%d, v%d" % (24+n, 24+n, 24+4*p+n))
for n in range(4): a("v_cvt_pk_bf16_f32 v%d, v%d, v%d" % (24+n, 24+n, 24+n))
for r in range(40): a("v_mov_b32 v%d, 0" % (84+r))
selA(a, 76, 12, 16); a("s_nop 1")
for u in range(2):
    a("v_mfma_f32_16x16x32_bf16 v[%d:%d], v[76:79], v[%d:%d], v[%d:%d]" % (116+4*u, 119+4*u, 64+4*u, 67+4*u, 116+4*u, 119+4*u))
a("s_waitcnt vmcnt(0)")
for n in range(4):
    selA(a, 76, 24+n, 16); a("s_nop 1")
    for u in range(8):
        v = 128 + n*32 + u*4
        a("v_mfma_f32_16x16x32_bf16 v[%d:%d], v[76:79], v[%d:%d], v[%d:%d]" % (84+4*u, 87+4*u, v, v+3, 84+4*u, 87+4*u))
a("v_lshl_add_u32 v5, v6, 11, v7")
a("v_lshrrev_b32 v4, 5, v2\nv_lshl_add_u32 v4, v4, 11, v7\ns_lshl_b32 s53, s3, 9\nv_add_u32 v4, s53, v4\ns_nop 7")
exec_valid(a)
for u in range(8): a("ds_write_b128 v5, v[%d:%d] offset:%d" % (84+4*u, 87+4*u, 8192 + 256*u))
for u in range(2): a("ds_write_b128 v4, v[%d:%d] offset:%d" % (116+4*u, 119+4*u, 8192 + 16384 + 256*u))
a("s_mov_b64 exec, -1\ns_waitcnt lgkmcnt(0)\ns_barrier")
a("v_lshlrev_b32 v5, 3, v0")
for p in range(10): a("ds_read_b64 v[%d:%d], v5 offset:%d" % (24+2*p, 25+2*p, 8192 + p*2048))
a("s_waitcnt lgkmcnt(0)")
for p in range(1, 10): a("v_add_f32 v24, v24, v%d\nv_add_f32 v25, v25, v%d" % (24+2*p, 25+2*p))
a("s_lshl_b32 s50, s2, 11\ns_add_u32 s50, s50, %d" % WS_OUTP)
a("buffer_store_dwordx2 v[24:25], v5, s[%d:%d], s50 offen" % (WS, WS+3))
a("k3_end:\ns_endpgm")

kernel_begin(a, "k4_kernel")
a("s_cmp_ge_u32 s2, 16\ns_cbranch_scc1 k4_end")
X,OUT,WS = 4,8,12
for r,b in ((X,"x"),(OUT,"out"),(WS,"ws")): load_srd(a, r, b)
a("v_lshrrev_b32 v8, 3, v0\nv_and_b32 v9, 7, v0\nv_lshlrev_b32 v4, 14, v8\nv_lshl_add_u32 v4, v9, 4, v4")
a("s_lshl_b32 s50, s2, 7\ns_add_u32 s50, s50, %d\ns_lshl_b32 s51, s2, 6\nv_lshlrev_b32 v3, 1, v0" % WS_OUTP)
a("s_waitcnt lgkmcnt(0)")
a("buffer_load_ushort v10, v3, s[%d:%d], s51 offen" % (X, X+3))
for n in range(8):
    a("buffer_load_dwordx4 v[%d:%d], v4, s[%d:%d], s50 offen offset:%d" % (16+4*n, 19+4*n, WS, WS+3, (n&1)*2048))
    if n & 1: a("s_add_u32 s50, s50, 4096")
a("s_waitcnt vmcnt(0)")
for n in range(1, 8):
    for r in range(4): a("v_add_f32 v%d, v%d, v%d" % (16+r, 16+r, 16+4*n+r))
a("v_lshlrev_b32 v5, 4, v0\nds_write_b128 v5, v[16:19]\ns_waitcnt lgkmcnt(0)\ns_barrier")
a("v_cmp_gt_u32 vcc, 32, v0\ns_and_saveexec_b64 s[52:53], vcc\ns_cbranch_execz k4_end")
a("v_lshlrev_b32 v5, 2, v0")
for p in range(32): a("ds_read_b32 v%d, v5 offset:%d" % (16+p, p*128))
a("s_waitcnt lgkmcnt(0)\nv_lshlrev_b32 v10, 16, v10")
for p in range(32): a("v_add_f32 v10, v10, v%d" % (16+p))
a("v_cvt_pk_bf16_f32 v10, v10, v10")
a("buffer_store_short v10, v3, s[%d:%d], s51 offen" % (OUT, OUT+3))
a("k4_end:\ns_endpgm")

kernel_begin(a, "empty_kernel"); a("s_endpgm")

launches = ["kernel=k1_kernel grid=(256,1,1) block=(256,1,1) lds=17408",
            "kernel=k2_kernel grid=(256,1,1) block=(256,1,1) lds=%d" % K2_LDS,
            "kernel=k3_kernel grid=(256,1,1) block=(256,1,1) lds=32768",
            "kernel=k4_kernel grid=(16,1,1) block=(256,1,1) lds=4096"]
descs = [descriptor(k) for k in ("k1_kernel","k2_kernel","k3_kernel","k4_kernel")]
nempty = 0
for x in sys.argv:
    if x.startswith("--empty="): nempty = int(x.split("=")[1])
if nempty:
    launches += ["kernel=empty_kernel grid=(256,1,1) block=(256,1,1) lds=0"]*nempty
descs.append(descriptor("empty_kernel", 8, 16, 8))
open(sys.argv[1], "w").write(finish(launches, a.text(), descs))
```

```python
import sys
from asmlib import *
import math, struct
def f2u(x): return struct.unpack("<I", struct.pack("<f", x))[0]

WS_QABS = 0
WS_GU   = 64<<10
WS_ML   = 192<<10
WS_OUTP = 256<<10
WS_PART = 1<<20
ROW = 1056
NT = "nt" if "--nt" in sys.argv else ""

def ids(a):
    a("""v_lshrrev_b32 v1, 6, v0
    s_and_b32 s40, s2, 7
    v_readfirstlane_b32 s3, v1
    s_lshr_b32 s41, s2, 3
    s_lshr_b32 s42, s41, 3
    s_lshl_b32 s43, s40, 2
    s_add_u32 s42, s42, s43
    s_and_b32 s43, s41, 7
    v_and_b32 v2, 63, v0""")

def masks(a, vm, lane=2, t=3):
    a("v_and_b32 v%d, 1, v%d" % (t, lane))
    a("v_cmp_eq_u32 vcc, 1, v%d" % t)
    a("v_mov_b32 v%d, 0xffff" % t)
    a("v_mov_b32 v%d, 0xffff0000" % vm)
    a("v_cndmask_b32 v%d, v%d, v%d, vcc" % (t, t, vm))
    a("v_bfe_u32 v%d, v%d, 1, 2" % (vm+3, lane))
    for r in range(4):
        a("v_cmp_eq_u32 vcc, %d, v%d" % (r, vm+3))
        a("s_nop 1")
        a("v_cndmask_b32 v%d, 0, v%d, vcc" % (vm+r, t))

def wave_allreduce(a, op, v, t):
    for ror in (8,4,2,1):
        a("s_nop 1")
        a("%s_dpp v%d, v%d, v%d row_ror:%d row_mask:0xf bank_mask:0xf" % (op, v, v, v, ror))
    xrow_allreduce(a, op, v, t)
def xrow_allreduce(a, op, v, t):
    for sw in ("v_permlane16_swap_b32", "v_permlane32_swap_b32"):
        a("v_mov_b32 v%d, v%d" % (t, v))
        a("s_nop 1")
        a("%s v%d, v%d" % (sw, v, t))
        a("s_nop 1")
        a("%s v%d, v%d, v%d" % (op, v, v, t))

def round_bf16(a, v):
    a("v_cvt_pk_bf16_f32 v%d, v%d, v%d" % (v, v, v))
    a("v_and_b32 v%d, 0xffff0000, v%d" % (v, v))

def layernorm(a, vx, vf, t):
    for k in range(4):
        a("v_lshlrev_b32 v%d, 16, v%d" % (vf+2*k, vx+k))
        a("v_and_b32 v%d, 0xffff0000, v%d" % (vf+2*k+1, vx+k))
    a("v_add_f32 v%d, v%d, v%d" % (t, vf, vf+1))
    for k in range(2, 8): a("v_add_f32 v%d, v%d, v%d" % (t, t, vf+k))
    wave_allreduce(a, "v_add_f32", t, t+1)
    a("v_mul_f32 v%d, 0x%x, v%d" % (t, f2u(1/512), t))
    a("v_sub_f32 v%d, v%d, v%d" % (t+1, vf, t))
    a("v_mul_f32 v%d, v%d, v%d" % (t+2, t+1, t+1))
    for k in range(1, 8):
        a("v_sub_f32 v%d, v%d, v%d" % (t+1, vf+k, t))
        a("v_fmac_f32 v%d, v%d, v%d" % (t+2, t+1, t+1))
    wave_allreduce(a, "v_add_f32", t+2, t+1)
    a("v_mul_f32 v%d, 0x%x, v%d" % (t+2, f2u(1/512), t+2))
    round_bf16(a, t+2); round_bf16(a, t)
    a("v_add_f32 v%d, 0x%x, v%d" % (t+2, f2u(1e-5), t+2))
    round_bf16(a, t+2)
    a("v_sqrt_f32 v%d, v%d" % (t+2, t+2)); a("s_nop 0")
    round_bf16(a, t+2)
    a("v_rcp_f32 v%d, v%d" % (t+3, t+2)); a("s_nop 0")
    for k in range(8):
        v = vf+k
        a("v_sub_f32 v%d, v%d, v%d" % (v, v, t))
        round_bf16(a, v)
        a("v_mul_f32 v%d, v%d, v%d" % (t+1, v, t+3))
        a("v_fma_f32 v%d, -v%d, v%d, v%d" % (v, t+1, t+2, v))
        a("v_fma_f32 v%d, v%d, v%d, v%d" % (v, v, t+3, t+1))
        a("v_cvt_pk_bf16_f32 v%d, v%d, v%d" % (v, v, v))

def selA(a, dst, src, vm):
    for r in range(4): a("v_and_b32 v%d, v%d, v%d" % (dst+r, src, vm+r))

VALID = "0xff00ff0000ff00ff"
def exec_valid(a):
    a("s_mov_b32 exec_lo, 0x00ff00ff\ns_mov_b32 exec_hi, 0xff00ff00")

a = Asm()
PROBE = None
for x in sys.argv:
    if x.startswith("--probe="): PROBE = x.split("=")[1]
def pstart(a):
    if PROBE: a("s_memrealtime s[90:91]")
def pend(a, k, lab):
    a(lab + ":")
    if PROBE:
        a("s_mov_b64 exec, -1")
        load_srd(a, 92, "ws")
        a("s_waitcnt vmcnt(0) lgkmcnt(0)\ns_memrealtime s[88:89]\ns_waitcnt lgkmcnt(0)")
        a("v_lshrrev_b32 v1, 6, v0\nv_lshlrev_b32 v1, 3, v1\ns_lshl_b32 s87, s2, 5\ns_add_u32 s87, s87, %d" % (STAMP_OFF + k*8192))
        a("v_mov_b32 v2, s90\nv_mov_b32 v3, s88\nbuffer_store_dwordx2 v[2:3], v1, s[92:95], s87 offen")
    a(lab + "_x:\ns_endpgm")
kernel_begin(a, "k1_kernel")
a("s_cmp_ge_u32 s2, 256\ns_cbranch_scc1 k1_end_x"); pstart(a)
X,WQ,WUK,WG,WU,WS = 4,8,12,16,20,24
for r,b in ((X,"x"),(WQ,"wq"),(WUK,"wuk"),(WG,"wg"),(WU,"wu"),(WS,"ws")): load_srd(a, r, b)
ids(a)
a("v_lshlrev_b32 v3, 4, v2")
a("v_lshrrev_b32 v8, 3, v2\nv_and_b32 v9, 7, v2")
a("v_lshlrev_b32 v10, 17, v8\nv_lshl_add_u32 v10, v9, 4, v10")
a("s_waitcnt lgkmcnt(0)")
a("buffer_load_dwordx4 v[4:7], v3, s[%d:%d], 0 offen" % (X, X+3))
a("s_lshl_b32 s50, s3, 20\ns_lshl_b32 s51, s42, 8\ns_add_u32 s50, s50, s51")
for t in range(16):
    for u in range(2):
        v = 128 + t*8 + u*4
        a("buffer_load_dwordx4 v[%d:%d], v10, s[%d:%d], s50 offen offset:%d %s" % (v, v+3, WQ, WQ+3, u*128, NT))
    a("s_add_u32 s50, s50, 8192")
a("v_lshrrev_b32 v11, 4, v2\nv_and_b32 v12, 15, v2\nv_lshlrev_b32 v13, 15, v11\nv_lshl_add_u32 v13, v12, 4, v13")
a("s_lshl_b32 s50, s43, 19\ns_lshl_b32 s52, s3, 17\ns_add_u32 s50, s50, s52\ns_add_u32 s50, s50, s51")
for t in range(4):
    v = 112 + t*4
    a("buffer_load_dwordx4 v[%d:%d], v13, s[%d:%d], s50 offen %s" % (v, v+3, WUK, WUK+3, NT))
    a("s_add_u32 s50, s50, 8192")
a("v_mul_u32_u24 v14, 5504, v8\nv_lshl_add_u32 v14, v9, 4, v14")
a("s_mul_i32 s50, s40, %d\ns_mul_i32 s52, s3, %d\ns_add_u32 s50, s50, s52\ns_lshl_b32 s52, s41, 7\ns_add_u32 s50, s50, s52" % (64*2752, 16*2752))
for mi, srd in enumerate((WG, WU)):
    for n in range(2):
        v = 96 + mi*8 + n*4
        a("buffer_load_dwordx4 v[%d:%d], v14, s[%d:%d], s50 offen offset:%d %s" % (v, v+3, srd, srd+3, n*2752, NT))
masks(a, 16)
a("s_waitcnt vmcnt(40)")
layernorm(a, 4, 24, 20)
a("s_lshl_b32 s53, s3, 11\nv_lshl_add_u32 v3, v2, 5, s53")
a("ds_write_b128 v3, v[24:27]\nds_write_b128 v3, v[28:31] offset:16")
a("s_lshl_b32 s54, s3, 9\ns_add_u32 s54, s54, s53\nv_lshl_add_u32 v3, v8, 6, s54")
a("s_lshl_b32 s54, s40, 8\ns_lshl_b32 s55, s3, 6\ns_add_u32 s54, s54, s55\ns_add_u32 s54, s54, s53\nv_lshl_add_u32 v15, v8, 3, s54")
a("s_waitcnt lgkmcnt(0)")
for q in range(4): a("ds_read_b128 v[%d:%d], v3 offset:%d" % (32+4*q, 35+4*q, 16*q))
a("ds_read_b64 v[48:49], v15")
a("s_waitcnt lgkmcnt(0)")
for r in range(16): a("v_mov_b32 v%d, 0" % (64+r))
for t in range(16):
    d = 52 + (t & 1)*4
    selA(a, d, 32+t, 16)
    a("s_waitcnt vmcnt(%d)" % (8 + 30 - 2*t))
    a("s_nop 0")
    for u in range(2):
        v = 128 + t*8 + u*4
        a("v_mfma_f32_16x16x32_bf16 v[%d:%d], v[%d:%d], v[%d:%d], v[%d:%d]" % (64+4*u, 67+4*u, d, d+3, v, v+3, 64+4*u, 67+4*u))
a("s_waitcnt vmcnt(0)")
for n in range(2):
    d = 52 + n*4
    selA(a, d, 48+n, 16)
    a("s_nop 1")
    for mi in range(2):
        v = 96 + mi*8 + n*4
        a("v_mfma_f32_16x16x32_bf16 v[%d:%d], v[%d:%d], v[%d:%d], v[%d:%d]" % (72+4*mi, 75+4*mi, d, d+3, v, v+3, 72+4*mi, 75+4*mi))
a("v_lshrrev_b32 v3, 5, v2\ns_lshl_b32 s53, s3, 1\nv_add_u32 v3, s53, v3\nv_lshlrev_b32 v3, 10, v3")
a("v_lshl_add_u32 v3, v9, 5, v3\nv_and_b32 v15, 1, v11\nv_lshl_add_u32 v3, v15, 4, v3")
a("s_nop 7")
exec_valid(a)
for q in range(4): a("ds_write_b128 v3, v[%d:%d] offset:%d" % (64+4*q, 67+4*q, 8192 + 256*q))
a("s_mov_b64 exec, -1\ns_waitcnt lgkmcnt(0)\ns_barrier")
a("v_lshlrev_b32 v3, 5, v12")
for p in range(8):
    for q in range(2):
        v = 128 + p*8 + q*4
        a("ds_read_b128 v[%d:%d], v3 offset:%d" % (v, v+3, 8192 + p*1024 + q*16))
a("v_lshlrev_b32 v15, 2, v0")
for p in range(8): a("ds_read_b32 v%d, v15 offset:%d" % (200+p, 8192 + 512 + p*1024))
a("s_waitcnt lgkmcnt(0)")
for p in range(1, 8):
    for e in range(8): a("v_add_f32 v%d, v%d, v%d" % (128+e, 128+e, 128+p*8+e))
    a("v_add_f32 v200, v200, v%d" % (200+p))
for k in range(4): a("v_cvt_pk_bf16_f32 v%d, v%d, v%d" % (32+k, 128+2*k, 129+2*k))
for t in range(4):
    a("v_mov_b32 v%d, 0" % (40+t))
for k in range(4):
    for t in range(4):
        a("v_dot2c_f32_bf16 v%d, v%d, v%d" % (40+t, 112+4*t+k, 32+k))
a("s_nop 2")
for ror in (8,4,2,1):
    for t in range(4):
        a("v_add_f32_dpp v%d, v%d, v%d row_ror:%d row_mask:0xf bank_mask:0xf" % (40+t, 40+t, 40+t, ror))
SC = (128 ** -0.5) * math.log2(math.e)
for t in range(4): a("v_mul_f32 v%d, 0x%x, v%d" % (40+t, f2u(SC), 40+t))
a("v_cvt_pk_bf16_f32 v44, v40, v41\nv_cvt_pk_bf16_f32 v45, v42, v43")
a("""s_lshr_b32 s50, s42, 4
s_lshl_b32 s50, s50, 14
s_and_b32 s51, s42, 15
s_lshl_b32 s51, s51, 4
s_add_u32 s50, s50, s51
s_lshl_b32 s51, s43, 11
s_add_u32 s50, s50, s51
s_lshl_b32 s51, s3, 9
s_add_u32 s50, s50, s51
v_lshrrev_b32 v3, 1, v11
v_lshlrev_b32 v3, 8, v3
v_and_b32 v15, 1, v11
v_lshl_add_u32 v3, v15, 3, v3
s_mov_b32 exec_lo, 0x00010001
s_mov_b32 exec_hi, 0x00010001""")
a("buffer_store_dwordx2 v[44:45], v3, s[%d:%d], s50 offen offset:%d" % (WS, WS+3, WS_QABS))
a("s_mov_b64 exec, -1")
a("s_cmp_ge_u32 s41, 22\ns_cbranch_scc1 k1_end\ns_cmp_ge_u32 s3, 2\ns_cbranch_scc1 k1_end")
a("""v_lshlrev_b32 v3, 9, v8
v_lshl_add_u32 v3, v9, 2, v3
s_lshl_b32 s50, s41, 12
s_lshl_b32 s51, s40, 6
s_add_u32 s50, s50, s51
s_lshl_b32 s51, s3, 5
s_add_u32 s50, s50, s51
s_add_u32 s50, s50, %d""" % WS_GU)
a("buffer_store_dword v200, v3, s[%d:%d], s50 offen" % (WS, WS+3))
pend(a, 0, "k1_end")

kernel_begin(a, "k2_kernel")
a("s_cmp_ge_u32 s2, 256\ns_cbranch_scc1 k2_end_x"); pstart(a)
CK,WS = 4,8
load_srd(a, CK, "ckv"); load_srd(a, WS, "ws")
ids(a)
a("s_lshl_b32 s44, s40, 4\ns_lshr_b32 s45, s41, 1\ns_add_u32 s44, s44, s45\ns_and_b32 s45, s41, 1")
a("v_lshlrev_b32 v3, 4, v2")
a("v_lshrrev_b32 v11, 4, v2\nv_and_b32 v12, 15, v2")
a("s_waitcnt lgkmcnt(0)")
a("s_lshl_b32 s50, s45, 14")
for s in range(16):
    a("buffer_load_dwordx4 v[%d:%d], v3, s[%d:%d], s50 offen offset:%d" % (64+4*s, 67+4*s, WS, WS+3, (s&3)*1024))
    if s & 3 == 3: a("s_add_u32 s50, s50, 4096")
a("s_lshl_b32 s50, s44, 17\ns_lshl_b32 s51, s3, 15\ns_add_u32 s50, s50, s51\ns_mul_i32 s52, s3, %d" % (32*ROW))
for r in range(32):
    a("s_mov_b32 m0, s52\ns_add_u32 s52, s52, %d" % ROW)
    a("buffer_load_dwordx4 v3, s[%d:%d], s50 offen %s lds" % (CK, CK+3, NT))
    a("s_add_u32 s50, s50, 1024")
a("s_mul_i32 s52, s3, %d\nv_mul_u32_u24 v4, %d, v12\nv_lshl_add_u32 v4, v11, 4, v4\nv_add_u32 v4, s52, v4" % (32*ROW, ROW))
for r in range(8): a("v_mov_b32 v%d, 0" % (16+r))
a("s_waitcnt vmcnt(0)")
for s in range(16):
    for T in range(2):
        v = 128 + s*8 + T*4
        a("ds_read_b128 v[%d:%d], v4 offset:%d" % (v, v+3, 16*T*ROW + s*64))
    if s % 4 == 3:
        a("s_waitcnt lgkmcnt(0)")
        for s2 in range(s-3, s+1):
            for T in range(2):
                v = 128 + s2*8 + T*4
                a("v_mfma_f32_16x16x32_bf16 v[%d:%d], v[%d:%d], v[%d:%d], v[%d:%d]" % (16+4*T, 19+4*T, v, v+3, 64+4*s2, 67+4*s2, 16+4*T, 19+4*T))
a("s_nop 7")
a("v_max3_f32 v24, v16, v17, v18\nv_max3_f32 v24, v24, v19, v20\nv_max3_f32 v24, v24, v21, v22\nv_max_f32 v24, v24, v23")
xrow_allreduce(a, "v_max_f32", 24, 25)
LMX = 128*ROW; LPX = LMX + 256
a("s_lshl_b32 s52, s3, 2\ns_add_u32 s52, s52, %d\nv_lshl_add_u32 v5, v12, 4, s52" % LMX)
a("ds_write_b32 v5, v24\ns_waitcnt lgkmcnt(0)\ns_barrier")
a("v_lshlrev_b32 v5, 4, v12\nv_add_u32 v5, %d, v5\nds_read_b128 v[28:31], v5\ns_waitcnt lgkmcnt(0)" % LMX)
a("v_max3_f32 v24, v28, v29, v30\nv_max_f32 v24, v24, v31")
for r in range(8):
    a("v_sub_f32 v%d, v%d, v24" % (16+r, 16+r))
for r in range(8):
    a("v_exp_f32 v%d, v%d" % (16+r, 16+r))
a("s_nop 0")
for k in range(4): a("v_cvt_pk_bf16_f32 v%d, v%d, v%d" % (28+k, 16+2*k, 17+2*k))
a("s_lshl_b32 s52, s3, 10\ns_add_u32 s52, s52, %d\nv_add_u32 v5, s52, v3\nds_write_b128 v5, v[28:31]\ns_waitcnt lgkmcnt(0)\ns_barrier" % LPX)
a("v_add_u32 v5, %d, v3" % LPX)
for ks in range(4): a("ds_read_b128 v[%d:%d], v5 offset:%d" % (32+4*ks, 35+4*ks, ks*1024))
a("v_lshrrev_b32 v6, 2, v2\nv_mul_u32_u24 v6, %d, v6\nv_and_b32 v7, 3, v2\nv_lshl_add_u32 v6, v7, 3, v6\ns_lshl_b32 s52, s3, 8\nv_add_u32 v6, s52, v6\nv_add_u32 v7, %d, v6" % (ROW, 64*ROW))
for r in range(36): a("v_mov_b32 v%d, 0" % (64+r))
a("v_mov_b32 v48, 0x3f803f80\nv_mov_b32 v49, 0x3f803f80\nv_mov_b32 v50, 0x3f803f80\nv_mov_b32 v51, 0x3f803f80")
for ks in range(4):
    for t in range(8):
        for T in range(2):
            v = 128 + ks*32 + t*4 + T*2
            a("ds_read_b64_tr_b16 v[%d:%d], v%d offset:%d" % (v, v+1, 6 + (ks>>1), (32*(ks&1) + 16*T)*ROW + 32*t))
    a("s_waitcnt lgkmcnt(0)")
    for t in range(8):
        v = 128 + ks*32 + t*4
        a("v_mfma_f32_16x16x32_bf16 v[%d:%d], v[%d:%d], v[%d:%d], v[%d:%d]" % (64+4*t, 67+4*t, 32+4*ks, 35+4*ks, v, v+3, 64+4*t, 67+4*t))
    a("v_mfma_f32_16x16x32_bf16 v[96:99], v[48:51], v[%d:%d], v[96:99]" % (32+4*ks, 35+4*ks))
a("s_nop 7")
a("""v_lshlrev_b32 v5, 19, v11
v_lshrrev_b32 v6, 3, v12
v_lshl_add_u32 v5, v6, 14, v5
v_and_b32 v6, 7, v12
v_lshl_add_u32 v5, v6, 4, v5
s_lshl_b32 s50, s45, 21
s_lshl_b32 s51, s3, 15
s_add_u32 s50, s50, s51
s_lshl_b32 s51, s44, 7
s_add_u32 s50, s50, s51
s_add_u32 s50, s50, %d""" % WS_PART)
for r in range(4):
    for k in range(4):
        a("v_cvt_pk_bf16_f32 v%d, v%d, v%d" % (128+4*r+k, 64+8*k+r, 68+8*k+r))
    a("buffer_store_dwordx4 v[%d:%d], v5, s[%d:%d], s50 offen" % (128+4*r, 131+4*r, WS, WS+3))
    a("s_add_u32 s50, s50, %d" % (1<<17))
a("s_cmp_lg_u32 s3, 0\ns_cbranch_scc1 k2_end")
a("v_mov_b32 v25, v96\nv_lshlrev_b32 v5, 10, v12\ns_lshl_b32 s50, s45, 14\ns_lshl_b32 s51, s44, 3\ns_add_u32 s50, s50, s51\ns_add_u32 s50, s50, %d" % WS_ML)
a("s_mov_b64 exec, 0xffff")
a("buffer_store_dwordx2 v[24:25], v5, s[%d:%d], s50 offen" % (WS, WS+3))
pend(a, 1, "k2_end")
K2_LDS = LPX + 4096

kernel_begin(a, "k3_kernel")
a("s_cmp_ge_u32 s2, 256\ns_cbranch_scc1 k3_end_x"); pstart(a)
WUV,WO,WD,WS = 4,8,12,16
for r,b in ((WUV,"wuv"),(WO,"wo"),(WD,"wd"),(WS,"ws")): load_srd(a, r, b)
ids(a)
a("v_lshlrev_b32 v3, 4, v2\nv_lshrrev_b32 v8, 3, v2\nv_and_b32 v9, 7, v2\nv_lshrrev_b32 v11, 4, v2")
a("s_waitcnt lgkmcnt(0)")
a("s_lshl_b32 s50, s42, 10\ns_add_u32 s50, s50, %d" % WS_ML)
a("buffer_load_dwordx4 v[20:23], v3, s[%d:%d], s50 offen" % (WS, WS+3))
a("s_lshl_b32 s51, s3, 8\ns_add_u32 s50, s50, s51\nv_lshlrev_b32 v4, 5, v8")
a("buffer_load_dwordx4 v[24:27], v4, s[%d:%d], s50 offen" % (WS, WS+3))
a("buffer_load_dwordx4 v[28:31], v4, s[%d:%d], s50 offen offset:16" % (WS, WS+3))
a("s_lshl_b32 s50, s42, 17\ns_lshl_b32 s51, s43, 14\ns_add_u32 s50, s50, s51\ns_lshl_b32 s51, s3, 12\ns_add_u32 s50, s50, s51\ns_add_u32 s50, s50, %d" % WS_PART)
a("v_lshlrev_b32 v4, 9, v8\nv_lshl_add_u32 v4, v9, 4, v4")
for n in range(4): a("buffer_load_dwordx4 v[%d:%d], v4, s[%d:%d], s50 offen offset:%d" % (32+4*n, 35+4*n, WS, WS+3, n*128))
a("s_min_u32 s46, s2, 171\ns_lshl_b32 s50, s46, 9\ns_add_u32 s50, s50, %d\nv_lshlrev_b32 v4, 6, v9\nv_lshl_add_u32 v4, v8, 2, v4" % WS_GU)
a("buffer_load_dword v12, v4, s[%d:%d], s50 offen\nbuffer_load_dword v13, v4, s[%d:%d], s50 offen offset:32" % (WS, WS+3, WS, WS+3))
a("""v_and_b32 v4, 3, v8
v_lshlrev_b32 v4, 5, v4
v_lshrrev_b32 v5, 2, v8
v_add_u32 v4, v4, v5
v_lshlrev_b32 v4, 13, v4
v_lshl_add_u32 v4, v9, 4, v4
s_lshr_b32 s50, s43, 1
s_lshl_b32 s50, s50, 7
s_and_b32 s51, s43, 1
s_lshl_b32 s51, s51, 3
s_add_u32 s50, s50, s51
s_lshl_b32 s51, s3, 1
s_add_u32 s50, s50, s51
s_lshl_b32 s50, s50, 13
s_lshl_b32 s51, s42, 8
s_add_u32 s50, s50, s51""")
for n in range(2):
    for u in range(2):
        v = 48 + n*8 + u*4
        a("buffer_load_dwordx4 v[%d:%d], v4, s[%d:%d], s50 offen offset:%d %s" % (v, v+3, WUV, WUV+3, u*128, NT))
    a("s_add_u32 s50, s50, %d" % (16*8192))
a("v_lshlrev_b32 v4, 10, v8\nv_lshl_add_u32 v4, v9, 4, v4\ns_lshl_b32 s50, s46, 13\ns_lshl_b32 s51, s3, 8\ns_add_u32 s50, s50, s51")
for u in range(2): a("buffer_load_dwordx4 v[%d:%d], v4, s[%d:%d], s50 offen offset:%d %s" % (64+4*u, 67+4*u, WD, WD+3, u*128, NT))
a("v_lshlrev_b32 v4, 12, v8\nv_lshl_add_u32 v4, v9, 4, v4\ns_lshl_b32 s50, s42, 17\ns_lshl_b32 s51, s3, 15\ns_add_u32 s50, s50, s51")
for n in range(4):
    for u in range(8):
        v = 128 + n*32 + u*4
        a("buffer_load_dwordx4 v[%d:%d], v4, s[%d:%d], s50 offen offset:%d %s" % (v, v+3, WO, WO+3, n*1024 + u*128, NT))
masks(a, 16)
a("s_waitcnt vmcnt(38)")
a("v_max_f32 v4, v20, v22")
wave_allreduce(a, "v_max_f32", 4, 5)
a("v_sub_f32 v20, v20, v4\nv_sub_f32 v22, v22, v4\nv_exp_f32 v20, v20\nv_exp_f32 v22, v22\ns_nop 0")
round_bf16(a, 20); round_bf16(a, 22)
a("v_mul_f32 v20, v20, v21\nv_fmac_f32 v20, v22, v23")
wave_allreduce(a, "v_add_f32", 20, 5)
a("v_rcp_f32 v20, v20")
for r in range(4): a("v_mov_b32 v%d, 0" % (72+r))
for n in range(4):
    a("v_sub_f32 v5, v%d, v4\nv_exp_f32 v5, v5\ns_nop 0\nv_cvt_pk_bf16_f32 v5, v5, v5" % (24+2*n))
    selA(a, 76, 5, 16)
    a("s_nop 1")
    a("v_mfma_f32_16x16x32_bf16 v[72:75], v[76:79], v[%d:%d], v[72:75]" % (32+4*n, 35+4*n))
a("v_lshrrev_b32 v6, 5, v2\ns_lshl_b32 s53, s3, 1\nv_add_u32 v6, s53, v6\nv_and_b32 v7, 1, v11\nv_lshlrev_b32 v7, 4, v7\nv_lshl_add_u32 v7, v9, 5, v7")
a("v_lshl_add_u32 v5, v6, 8, v7\ns_nop 7")
exec_valid(a)
a("ds_write_b128 v5, v[72:75]\ns_mov_b64 exec, -1\ns_waitcnt lgkmcnt(0)\ns_barrier")
a("s_lshl_b32 s53, s3, 6\nv_lshl_add_u32 v5, v8, 3, s53")
for p in range(8): a("ds_read_b64 v[%d:%d], v5 offset:%d" % (80+2*p, 81+2*p, p*256))
a("s_waitcnt lgkmcnt(0)")
for p in range(1, 8): a("v_add_f32 v80, v80, v%d\nv_add_f32 v81, v81, v%d" % (80+2*p, 81+2*p))
a("v_mul_f32 v80, v80, v20\nv_mul_f32 v81, v81, v20\nv_cvt_pk_bf16_f32 v80, v80, v80\nv_cvt_pk_bf16_f32 v81, v81, v81")
for r in range(8): a("v_mov_b32 v%d, 0" % (84+r))
a("s_waitcnt vmcnt(32)")
for n in range(2):
    selA(a, 76, 80+n, 16); a("s_nop 1")
    for u in range(2):
        v = 48 + n*8 + u*4
        a("v_mfma_f32_16x16x32_bf16 v[%d:%d], v[76:79], v[%d:%d], v[%d:%d]" % (84+4*u, 87+4*u, v, v+3, 84+4*u, 87+4*u))
a("v_lshl_add_u32 v5, v6, 9, v7\ns_nop 7")
exec_valid(a)
a("ds_write_b128 v5, v[84:87] offset:2048\nds_write_b128 v5, v[88:91] offset:2304\ns_mov_b64 exec, -1\ns_waitcnt lgkmcnt(0)\ns_barrier")
a("s_lshl_b32 s53, s3, 7\nv_lshl_add_u32 v5, v8, 4, s53")
for p in range(8): a("ds_read_b128 v[%d:%d], v5 offset:%d" % (24+4*p, 27+4*p, 2048 + p*512))
for v in (12, 13):
    a("s_nop 1\nv_add_f32_dpp v%d, v%d, v%d quad_perm:[1,0,3,2] row_mask:0xf bank_mask:0xf" % (v,v,v))
    a("s_nop 1\nv_add_f32_dpp v%d, v%d, v%d quad_perm:[2,3,0,1] row_mask:0xf bank_mask:0xf" % (v,v,v))
    a("s_nop 1\nv_add_f32_dpp v%d, v%d, v%d row_half_mirror row_mask:0xf bank_mask:0xf" % (v,v,v))
    round_bf16(a, v)
a("v_mul_f32 v12, v12, v13\nv_cvt_pk_bf16_f32 v12, v12, v12")
a("s_cmp_lt_u32 s2, 172\ns_cselect_b32 s53, -1, 0\nv_and_b32 v12, s53, v12")
a("s_waitcnt lgkmcnt(0)")
for p in range(1, 8):
    for n in range(4): a("v_add_f32 v%d, v%d, v%d" % (24+n, 24+n, 24+4*p+n))
for n in range(4): a("v_cvt_pk_bf16_f32 v%d, v%d, v%d" % (24+n, 24+n, 24+n))
for r in range(40): a("v_mov_b32 v%d, 0" % (84+r))
selA(a, 76, 12, 16); a("s_nop 1")
for u in range(2):
    a("v_mfma_f32_16x16x32_bf16 v[%d:%d], v[76:79], v[%d:%d], v[%d:%d]" % (116+4*u, 119+4*u, 64+4*u, 67+4*u, 116+4*u, 119+4*u))
a("s_waitcnt vmcnt(0)")
for n in range(4):
    selA(a, 76, 24+n, 16); a("s_nop 1")
    for u in range(8):
        v = 128 + n*32 + u*4
        a("v_mfma_f32_16x16x32_bf16 v[%d:%d], v[76:79], v[%d:%d], v[%d:%d]" % (84+4*u, 87+4*u, v, v+3, 84+4*u, 87+4*u))
a("v_lshl_add_u32 v5, v6, 11, v7")
a("v_lshrrev_b32 v4, 5, v2\nv_lshl_add_u32 v4, v4, 11, v7\ns_lshl_b32 s53, s3, 9\nv_add_u32 v4, s53, v4\ns_nop 7")
exec_valid(a)
for u in range(8): a("ds_write_b128 v5, v[%d:%d] offset:%d" % (84+4*u, 87+4*u, 8192 + 256*u))
for u in range(2): a("ds_write_b128 v4, v[%d:%d] offset:%d" % (116+4*u, 119+4*u, 8192 + 16384 + 256*u))
a("s_mov_b64 exec, -1\ns_waitcnt lgkmcnt(0)\ns_barrier")
a("v_lshlrev_b32 v5, 3, v0")
for p in range(10): a("ds_read_b64 v[%d:%d], v5 offset:%d" % (24+2*p, 25+2*p, 8192 + p*2048))
a("s_waitcnt lgkmcnt(0)")
for p in range(1, 10): a("v_add_f32 v24, v24, v%d\nv_add_f32 v25, v25, v%d" % (24+2*p, 25+2*p))
a("s_lshl_b32 s50, s2, 11\ns_add_u32 s50, s50, %d" % WS_OUTP)
a("buffer_store_dwordx2 v[24:25], v5, s[%d:%d], s50 offen" % (WS, WS+3))
pend(a, 2, "k3_end")

kernel_begin(a, "k4_kernel")
a("s_cmp_ge_u32 s2, 16\ns_cbranch_scc1 k4_end_x"); pstart(a)
X,OUT,WS = 4,8,12
for r,b in ((X,"x"),(OUT,"out"),(WS,"ws")): load_srd(a, r, b)
a("v_lshrrev_b32 v8, 3, v0\nv_and_b32 v9, 7, v0\nv_lshlrev_b32 v4, 14, v8\nv_lshl_add_u32 v4, v9, 4, v4")
a("s_lshl_b32 s50, s2, 7\ns_add_u32 s50, s50, %d\ns_lshl_b32 s51, s2, 6\nv_lshlrev_b32 v3, 1, v0" % WS_OUTP)
a("s_waitcnt lgkmcnt(0)")
a("buffer_load_ushort v10, v3, s[%d:%d], s51 offen" % (X, X+3))
for n in range(8):
    a("buffer_load_dwordx4 v[%d:%d], v4, s[%d:%d], s50 offen offset:%d" % (16+4*n, 19+4*n, WS, WS+3, (n&1)*2048))
    if n & 1: a("s_add_u32 s50, s50, 4096")
a("s_waitcnt vmcnt(0)")
for n in range(1, 8):
    for r in range(4): a("v_add_f32 v%d, v%d, v%d" % (16+r, 16+r, 16+4*n+r))
a("v_lshlrev_b32 v5, 4, v0\nds_write_b128 v5, v[16:19]\ns_waitcnt lgkmcnt(0)\ns_barrier")
a("v_cmp_gt_u32 vcc, 32, v0\ns_and_saveexec_b64 s[52:53], vcc\ns_cbranch_execz k4_end")
a("v_lshlrev_b32 v5, 2, v0")
for p in range(32): a("ds_read_b32 v%d, v5 offset:%d" % (16+p, p*128))
a("s_waitcnt lgkmcnt(0)\nv_lshlrev_b32 v10, 16, v10")
for p in range(32): a("v_add_f32 v10, v10, v%d" % (16+p))
a("v_cvt_pk_bf16_f32 v10, v10, v10")
a("buffer_store_short v10, v3, s[%d:%d], s51 offen" % (OUT, OUT+3))
pend(a, 3, "k4_end")

if PROBE:
    pk, pw = [int(t) for t in PROBE.split(",")]
    kernel_begin(a, "probe_kernel")
    a("s_cmp_ge_u32 s2, 1\ns_cbranch_scc1 probe_end")
    load_srd(a, 4, "ws")
    a("v_lshlrev_b32 v1, 3, v0\ns_waitcnt lgkmcnt(0)")
    nld = 1 if pk == 3 else 16
    a("s_mov_b32 s10, %d\ns_mov_b32 s11, %d" % (STAMP_OFF, STAMP_OFF + pk*8192 + (4 if pw == 1 else 0)))
    for n in range(16):
        a("buffer_load_dword v%d, v1, s[4:7], s10 offen\ns_add_u32 s10, s10, 512" % (8+n))
    for n in range(nld):
        a("buffer_load_dword v%d, v1, s[4:7], s11 offen\ns_add_u32 s11, s11, 512" % (24+n))
    a("s_waitcnt vmcnt(0)")
    op = "v_min_u32" if pw == 0 else "v_max_u32"
    for n in range(1, 16): a("v_min_u32 v8, v8, v%d" % (8+n))
    for n in range(1, nld): a("%s v24, v24, v%d" % (op, 24+n))
    wave_allreduce(a, "v_min_u32", 8, 9)
    wave_allreduce(a, op, 24, 9)
    a("v_sub_u32 v8, v24, v8\ns_nop 1\nv_readfirstlane_b32 s12, v8\ns_nop 3\ns_min_u32 s12, s12, 10000\ns_mul_i32 s12, s12, 20")
    a("s_memrealtime s[14:15]\ns_waitcnt lgkmcnt(0)\nprobe_loop:\ns_memrealtime s[16:17]\ns_waitcnt lgkmcnt(0)\ns_sub_u32 s16, s16, s14\ns_cmp_lt_u32 s16, s12\ns_cbranch_scc1 probe_loop")
    a("probe_end:\ns_endpgm")
LAT = None
for x in sys.argv:
    if x.startswith("--lat="): LAT = x.split("=")[1].split(",")
if LAT:
    kernel_begin(a, "lat_kernel")
    a("s_cmp_ge_u32 s2, 1\ns_cbranch_scc1 lat_end")
    load_srd(a, 4, LAT[0]); load_srd(a, 8, "dbg")
    a("v_mov_b32 v1, 0\ns_mov_b32 s12, %d\ns_mov_b32 s13, 0\ns_waitcnt lgkmcnt(0)\ns_mov_b64 exec, 1" % int(LAT[1]))
    a("s_memrealtime s[14:15]\ns_waitcnt lgkmcnt(0)")
    a("lat_loop:\nbuffer_load_dword v2, v1, s[4:7], s12 offen %s\ns_waitcnt vmcnt(0)\ns_add_u32 s12, s12, %d\ns_add_u32 s13, s13, 1\ns_cmp_lt_u32 s13, 200\ns_cbranch_scc1 lat_loop" % (LAT[3] if len(LAT) > 3 else "", int(LAT[2])))
    a("s_memrealtime s[16:17]\ns_waitcnt lgkmcnt(0)\ns_sub_u32 s16, s16, s14\nv_mov_b32 v2, s16\nbuffer_store_dword v2, v1, s[8:11], 0 offen")
    a("lat_end:\ns_endpgm")
kernel_begin(a, "empty_kernel"); a("s_endpgm")

launches = ["kernel=k1_kernel grid=(256,1,1) block=(256,1,1) lds=17408",
            "kernel=k2_kernel grid=(256,1,1) block=(256,1,1) lds=%d" % K2_LDS,
            "kernel=k3_kernel grid=(256,1,1) block=(256,1,1) lds=32768",
            "kernel=k4_kernel grid=(16,1,1) block=(256,1,1) lds=4096"]
descs = [descriptor(k) for k in ("k1_kernel","k2_kernel","k3_kernel","k4_kernel")]
nempty = 0
for x in sys.argv:
    if x.startswith("--empty="): nempty = int(x.split("=")[1])
if nempty:
    launches += ["kernel=empty_kernel grid=(256,1,1) block=(256,1,1) lds=0"]*nempty
descs.append(descriptor("empty_kernel", 8, 16, 8))
if PROBE:
    launches.append("kernel=probe_kernel grid=(1,1,1) block=(64,1,1) lds=0")
    descs.append(descriptor("probe_kernel"))
if LAT:
    launches.insert(0, "kernel=lat_kernel grid=(1,1,1) block=(64,1,1) lds=0")
    descs.append(descriptor("lat_kernel"))
open(sys.argv[1], "w").write(finish(launches, a.text(), descs))
```

```python
import sys
from asmlib import *
import math, struct
def f2u(x): return struct.unpack("<I", struct.pack("<f", x))[0]

WS_QABS = 0
WS_GU   = 64<<10
WS_ML   = 192<<10
WS_OUTP = 256<<10
WS_PART = 1<<20
ROW = 1056
NT = "nt" if "--nt" in sys.argv else ""

def ids(a):
    a("""v_lshrrev_b32 v1, 6, v0
    s_and_b32 s40, s2, 7
    v_readfirstlane_b32 s3, v1
    s_lshr_b32 s41, s2, 3
    s_lshr_b32 s42, s41, 3
    s_lshl_b32 s43, s40, 2
    s_add_u32 s42, s42, s43
    s_and_b32 s43, s41, 7
    v_and_b32 v2, 63, v0""")

def masks(a, vm, lane=2, t=3):
    a("v_and_b32 v%d, 1, v%d" % (t, lane))
    a("v_cmp_eq_u32 vcc, 1, v%d" % t)
    a("v_mov_b32 v%d, 0xffff" % t)
    a("v_mov_b32 v%d, 0xffff0000" % vm)
    a("v_cndmask_b32 v%d, v%d, v%d, vcc" % (t, t, vm))
    a("v_bfe_u32 v%d, v%d, 1, 2" % (vm+3, lane))
    for r in range(4):
        a("v_cmp_eq_u32 vcc, %d, v%d" % (r, vm+3))
        a("s_nop 1")
        a("v_cndmask_b32 v%d, 0, v%d, vcc" % (vm+r, t))

def wave_allreduce(a, op, v, t):
    for ror in (8,4,2,1):
        a("s_nop 1")
        a("%s_dpp v%d, v%d, v%d row_ror:%d row_mask:0xf bank_mask:0xf" % (op, v, v, v, ror))
    xrow_allreduce(a, op, v, t)
def xrow_allreduce(a, op, v, t):
    for sw in ("v_permlane16_swap_b32", "v_permlane32_swap_b32"):
        a("v_mov_b32 v%d, v%d" % (t, v))
        a("s_nop 1")
        a("%s v%d, v%d" % (sw, v, t))
        a("s_nop 1")
        a("%s v%d, v%d, v%d" % (op, v, v, t))

def round_bf16(a, v):
    a("v_cvt_pk_bf16_f32 v%d, v%d, v%d" % (v, v, v))
    a("v_and_b32 v%d, 0xffff0000, v%d" % (v, v))

def layernorm(a, vx, vf, t):
    for k in range(4):
        a("v_lshlrev_b32 v%d, 16, v%d" % (vf+2*k, vx+k))
        a("v_and_b32 v%d, 0xffff0000, v%d" % (vf+2*k+1, vx+k))
    a("v_add_f32 v%d, v%d, v%d" % (t, vf, vf+1))
    for k in range(2, 8): a("v_add_f32 v%d, v%d, v%d" % (t, t, vf+k))
    wave_allreduce(a, "v_add_f32", t, t+1)
    a("v_mul_f32 v%d, 0x%x, v%d" % (t, f2u(1/512), t))
    a("v_sub_f32 v%d, v%d, v%d" % (t+1, vf, t))
    a("v_mul_f32 v%d, v%d, v%d" % (t+2, t+1, t+1))
    for k in range(1, 8):
        a("v_sub_f32 v%d, v%d, v%d" % (t+1, vf+k, t))
        a("v_fmac_f32 v%d, v%d, v%d" % (t+2, t+1, t+1))
    wave_allreduce(a, "v_add_f32", t+2, t+1)
    a("v_mul_f32 v%d, 0x%x, v%d" % (t+2, f2u(1/512), t+2))
    round_bf16(a, t+2); round_bf16(a, t)
    a("v_add_f32 v%d, 0x%x, v%d" % (t+2, f2u(1e-5), t+2))
    round_bf16(a, t+2)
    a("v_sqrt_f32 v%d, v%d" % (t+2, t+2)); a("s_nop 0")
    round_bf16(a, t+2)
    a("v_rcp_f32 v%d, v%d" % (t+3, t+2)); a("s_nop 0")
    for k in range(8):
        v = vf+k
        a("v_sub_f32 v%d, v%d, v%d" % (v, v, t))
        round_bf16(a, v)
        a("v_mul_f32 v%d, v%d, v%d" % (t+1, v, t+3))
        a("v_fma_f32 v%d, -v%d, v%d, v%d" % (v, t+1, t+2, v))
        a("v_fma_f32 v%d, v%d, v%d, v%d" % (v, v, t+3, t+1))
        a("v_cvt_pk_bf16_f32 v%d, v%d, v%d" % (v, v, v))

def selA(a, dst, src, vm):
    for r in range(4): a("v_and_b32 v%d, v%d, v%d" % (dst+r, src, vm+r))

VALID = "0xff00ff0000ff00ff"
def exec_valid(a):
    a("s_mov_b32 exec_lo, 0x00ff00ff\ns_mov_b32 exec_hi, 0xff00ff00")

a = Asm()
PROBE = None
for x in sys.argv:
    if x.startswith("--probe="): PROBE = x.split("=")[1]
def pstart(a):
    if PROBE: a("s_memrealtime s[90:91]")
def pend(a, k, lab):
    a(lab + ":")
    if PROBE:
        a("s_mov_b64 exec, -1")
        load_srd(a, 92, "ws")
        a("s_waitcnt vmcnt(0) lgkmcnt(0)\ns_memrealtime s[88:89]\ns_waitcnt lgkmcnt(0)")
        a("v_lshrrev_b32 v1, 6, v0\nv_lshlrev_b32 v1, 3, v1\ns_lshl_b32 s87, s2, 5\ns_add_u32 s87, s87, %d" % (STAMP_OFF + k*8192))
        a("v_mov_b32 v2, s90\nv_mov_b32 v3, s88\nbuffer_store_dwordx2 v[2:3], v1, s[92:95], s87 offen")
    a(lab + "_x:\ns_endpgm")
kernel_begin(a, "k1_kernel")
a("s_cmp_ge_u32 s2, 256\ns_cbranch_scc1 k1_end_x"); pstart(a)
X,WQ,WUK,WG,WU,WS = 4,8,12,16,20,24
for r,b in ((X,"x"),(WQ,"wq"),(WUK,"wuk"),(WG,"wg"),(WU,"wu"),(WS,"ws")): load_srd(a, r, b)
ids(a)
a("v_lshlrev_b32 v3, 4, v2")
a("v_lshrrev_b32 v8, 3, v2\nv_and_b32 v9, 7, v2")
a("v_lshlrev_b32 v10, 17, v8\nv_lshl_add_u32 v10, v9, 4, v10")
a("s_waitcnt lgkmcnt(0)")
a("buffer_load_dwordx4 v[4:7], v3, s[%d:%d], 0 offen" % (X, X+3))
a("s_lshl_b32 s50, s3, 20\ns_lshl_b32 s51, s42, 8\ns_add_u32 s50, s50, s51")
for t in range(16):
    for u in range(2):
        v = 128 + t*8 + u*4
        a("buffer_load_dwordx4 v[%d:%d], v10, s[%d:%d], s50 offen offset:%d %s" % (v, v+3, WQ, WQ+3, u*128, NT))
    a("s_add_u32 s50, s50, 8192")
a("v_lshrrev_b32 v11, 4, v2\nv_and_b32 v12, 15, v2\nv_lshlrev_b32 v13, 15, v11\nv_lshl_add_u32 v13, v12, 4, v13")
a("s_lshl_b32 s50, s43, 19\ns_lshl_b32 s52, s3, 17\ns_add_u32 s50, s50, s52\ns_add_u32 s50, s50, s51")
for t in range(4):
    v = 112 + t*4
    a("buffer_load_dwordx4 v[%d:%d], v13, s[%d:%d], s50 offen %s" % (v, v+3, WUK, WUK+3, NT))
    a("s_add_u32 s50, s50, 8192")
a("v_mul_u32_u24 v14, 5504, v8\nv_lshl_add_u32 v14, v9, 4, v14")
a("s_mul_i32 s50, s40, %d\ns_mul_i32 s52, s3, %d\ns_add_u32 s50, s50, s52\ns_lshl_b32 s52, s41, 7\ns_add_u32 s50, s50, s52" % (64*2752, 16*2752))
for mi, srd in enumerate((WG, WU)):
    for n in range(2):
        v = 96 + mi*8 + n*4
        a("buffer_load_dwordx4 v[%d:%d], v14, s[%d:%d], s50 offen offset:%d %s" % (v, v+3, srd, srd+3, n*2752, NT))
masks(a, 16)
a("s_waitcnt vmcnt(40)")
layernorm(a, 4, 24, 20)
a("s_lshl_b32 s53, s3, 11\nv_lshl_add_u32 v3, v2, 5, s53")
a("ds_write_b128 v3, v[24:27]\nds_write_b128 v3, v[28:31] offset:16")
a("s_lshl_b32 s54, s3, 9\ns_add_u32 s54, s54, s53\nv_lshl_add_u32 v3, v8, 6, s54")
a("s_lshl_b32 s54, s40, 8\ns_lshl_b32 s55, s3, 6\ns_add_u32 s54, s54, s55\ns_add_u32 s54, s54, s53\nv_lshl_add_u32 v15, v8, 3, s54")
a("s_waitcnt lgkmcnt(0)")
for q in range(4): a("ds_read_b128 v[%d:%d], v3 offset:%d" % (32+4*q, 35+4*q, 16*q))
a("ds_read_b64 v[48:49], v15")
a("s_waitcnt lgkmcnt(0)")
for r in range(16): a("v_mov_b32 v%d, 0" % (64+r))
for t in range(16):
    d = 52 + (t & 1)*4
    selA(a, d, 32+t, 16)
    a("s_waitcnt vmcnt(%d)" % (8 + 30 - 2*t))
    a("s_nop 0")
    for u in range(2):
        v = 128 + t*8 + u*4
        a("v_mfma_f32_16x16x32_bf16 v[%d:%d], v[%d:%d], v[%d:%d], v[%d:%d]" % (64+4*u, 67+4*u, d, d+3, v, v+3, 64+4*u, 67+4*u))
a("s_waitcnt vmcnt(0)")
for n in range(2):
    d = 52 + n*4
    selA(a, d, 48+n, 16)
    a("s_nop 1")
    for mi in range(2):
        v = 96 + mi*8 + n*4
        a("v_mfma_f32_16x16x32_bf16 v[%d:%d], v[%d:%d], v[%d:%d], v[%d:%d]" % (72+4*mi, 75+4*mi, d, d+3, v, v+3, 72+4*mi, 75+4*mi))
a("v_lshrrev_b32 v3, 5, v2\ns_lshl_b32 s53, s3, 1\nv_add_u32 v3, s53, v3\nv_lshlrev_b32 v3, 10, v3")
a("v_lshl_add_u32 v3, v9, 5, v3\nv_and_b32 v15, 1, v11\nv_lshl_add_u32 v3, v15, 4, v3")
a("s_nop 7")
exec_valid(a)
for q in range(4): a("ds_write_b128 v3, v[%d:%d] offset:%d" % (64+4*q, 67+4*q, 8192 + 256*q))
a("s_mov_b64 exec, -1\ns_waitcnt lgkmcnt(0)\ns_barrier")
a("v_lshlrev_b32 v3, 5, v12")
for p in range(8):
    for q in range(2):
        v = 128 + p*8 + q*4
        a("ds_read_b128 v[%d:%d], v3 offset:%d" % (v, v+3, 8192 + p*1024 + q*16))
a("v_lshlrev_b32 v15, 2, v0")
for p in range(8): a("ds_read_b32 v%d, v15 offset:%d" % (200+p, 8192 + 512 + p*1024))
a("s_waitcnt lgkmcnt(0)")
for p in range(1, 8):
    for e in range(8): a("v_add_f32 v%d, v%d, v%d" % (128+e, 128+e, 128+p*8+e))
    a("v_add_f32 v200, v200, v%d" % (200+p))
for k in range(4): a("v_cvt_pk_bf16_f32 v%d, v%d, v%d" % (32+k, 128+2*k, 129+2*k))
for t in range(4):
    a("v_mov_b32 v%d, 0" % (40+t))
for k in range(4):
    for t in range(4):
        a("v_dot2c_f32_bf16 v%d, v%d, v%d" % (40+t, 112+4*t+k, 32+k))
a("s_nop 2")
for ror in (8,4,2,1):
    for t in range(4):
        a("v_add_f32_dpp v%d, v%d, v%d row_ror:%d row_mask:0xf bank_mask:0xf" % (40+t, 40+t, 40+t, ror))
SC = (128 ** -0.5) * math.log2(math.e)
for t in range(4): a("v_mul_f32 v%d, 0x%x, v%d" % (40+t, f2u(SC), 40+t))
a("v_cvt_pk_bf16_f32 v44, v40, v41\nv_cvt_pk_bf16_f32 v45, v42, v43")
a("""s_lshr_b32 s50, s42, 4
s_lshl_b32 s50, s50, 14
s_and_b32 s51, s42, 15
s_lshl_b32 s51, s51, 4
s_add_u32 s50, s50, s51
s_lshl_b32 s51, s43, 11
s_add_u32 s50, s50, s51
s_lshl_b32 s51, s3, 9
s_add_u32 s50, s50, s51
v_lshrrev_b32 v3, 1, v11
v_lshlrev_b32 v3, 8, v3
v_and_b32 v15, 1, v11
v_lshl_add_u32 v3, v15, 3, v3
s_mov_b32 exec_lo, 0x00010001
s_mov_b32 exec_hi, 0x00010001""")
a("buffer_store_dwordx2 v[44:45], v3, s[%d:%d], s50 offen offset:%d" % (WS, WS+3, WS_QABS))
a("s_mov_b64 exec, -1")
a("s_cmp_ge_u32 s41, 22\ns_cbranch_scc1 k1_end\ns_cmp_ge_u32 s3, 2\ns_cbranch_scc1 k1_end")
a("""v_lshlrev_b32 v3, 9, v8
v_lshl_add_u32 v3, v9, 2, v3
s_lshl_b32 s50, s41, 12
s_lshl_b32 s51, s40, 6
s_add_u32 s50, s50, s51
s_lshl_b32 s51, s3, 5
s_add_u32 s50, s50, s51
s_add_u32 s50, s50, %d""" % WS_GU)
a("buffer_store_dword v200, v3, s[%d:%d], s50 offen" % (WS, WS+3))
pend(a, 0, "k1_end")

kernel_begin(a, "k2_kernel")
a("s_cmp_ge_u32 s2, 256\ns_cbranch_scc1 k2_end_x"); pstart(a)
CK,WS = 4,8
load_srd(a, CK, "ckv"); load_srd(a, WS, "ws")
ids(a)
a("s_lshl_b32 s44, s40, 4\ns_lshr_b32 s45, s41, 1\ns_add_u32 s44, s44, s45\ns_and_b32 s45, s41, 1")
a("v_lshlrev_b32 v3, 4, v2")
a("v_lshrrev_b32 v11, 4, v2\nv_and_b32 v12, 15, v2")
a("s_waitcnt lgkmcnt(0)")
a("s_lshl_b32 s50, s45, 14")
for s in range(16):
    a("buffer_load_dwordx4 v[%d:%d], v3, s[%d:%d], s50 offen offset:%d" % (64+4*s, 67+4*s, WS, WS+3, (s&3)*1024))
    if s & 3 == 3: a("s_add_u32 s50, s50, 4096")
a("s_lshl_b32 s50, s44, 17\ns_lshl_b32 s51, s3, 15\ns_add_u32 s50, s50, s51\ns_mul_i32 s52, s3, %d" % (32*ROW))
for r in range(32):
    a("s_mov_b32 m0, s52\ns_add_u32 s52, s52, %d" % ROW)
    a("buffer_load_dwordx4 v3, s[%d:%d], s50 offen %s lds" % (CK, CK+3, NT))
    a("s_add_u32 s50, s50, 1024")
a("s_mul_i32 s52, s3, %d\nv_mul_u32_u24 v4, %d, v12\nv_lshl_add_u32 v4, v11, 4, v4\nv_add_u32 v4, s52, v4" % (32*ROW, ROW))
for r in range(8): a("v_mov_b32 v%d, 0" % (16+r))
a("s_waitcnt vmcnt(0)")
for s in range(16):
    for T in range(2):
        v = 128 + s*8 + T*4
        a("ds_read_b128 v[%d:%d], v4 offset:%d" % (v, v+3, 16*T*ROW + s*64))
    if s % 4 == 3:
        a("s_waitcnt lgkmcnt(0)")
        for s2 in range(s-3, s+1):
            for T in range(2):
                v = 128 + s2*8 + T*4
                a("v_mfma_f32_16x16x32_bf16 v[%d:%d], v[%d:%d], v[%d:%d], v[%d:%d]" % (16+4*T, 19+4*T, v, v+3, 64+4*s2, 67+4*s2, 16+4*T, 19+4*T))
a("s_nop 7")
a("v_max3_f32 v24, v16, v17, v18\nv_max3_f32 v24, v24, v19, v20\nv_max3_f32 v24, v24, v21, v22\nv_max_f32 v24, v24, v23")
xrow_allreduce(a, "v_max_f32", 24, 25)
LMX = 128*ROW; LPX = LMX + 256
a("s_lshl_b32 s52, s3, 2\ns_add_u32 s52, s52, %d\nv_lshl_add_u32 v5, v12, 4, s52" % LMX)
a("ds_write_b32 v5, v24\ns_waitcnt lgkmcnt(0)\ns_barrier")
a("v_lshlrev_b32 v5, 4, v12\nv_add_u32 v5, %d, v5\nds_read_b128 v[28:31], v5\ns_waitcnt lgkmcnt(0)" % LMX)
a("v_max3_f32 v24, v28, v29, v30\nv_max_f32 v24, v24, v31")
for r in range(8):
    a("v_sub_f32 v%d, v%d, v24" % (16+r, 16+r))
for r in range(8):
    a("v_exp_f32 v%d, v%d" % (16+r, 16+r))
a("s_nop 0")
for k in range(4): a("v_cvt_pk_bf16_f32 v%d, v%d, v%d" % (28+k, 16+2*k, 17+2*k))
a("s_lshl_b32 s52, s3, 10\ns_add_u32 s52, s52, %d\nv_add_u32 v5, s52, v3\nds_write_b128 v5, v[28:31]\ns_waitcnt lgkmcnt(0)\ns_barrier" % LPX)
a("v_add_u32 v5, %d, v3" % LPX)
for ks in range(4): a("ds_read_b128 v[%d:%d], v5 offset:%d" % (32+4*ks, 35+4*ks, ks*1024))
a("v_lshrrev_b32 v6, 2, v2\nv_mul_u32_u24 v6, %d, v6\nv_and_b32 v7, 3, v2\nv_lshl_add_u32 v6, v7, 3, v6\ns_lshl_b32 s52, s3, 8\nv_add_u32 v6, s52, v6\nv_add_u32 v7, %d, v6" % (ROW, 64*ROW))
for r in range(36): a("v_mov_b32 v%d, 0" % (64+r))
a("v_mov_b32 v48, 0x3f803f80\nv_mov_b32 v49, 0x3f803f80\nv_mov_b32 v50, 0x3f803f80\nv_mov_b32 v51, 0x3f803f80")
for ks in range(4):
    for t in range(8):
        for T in range(2):
            v = 128 + ks*32 + t*4 + T*2
            a("ds_read_b64_tr_b16 v[%d:%d], v%d offset:%d" % (v, v+1, 6 + (ks>>1), (32*(ks&1) + 16*T)*ROW + 32*t))
    a("s_waitcnt lgkmcnt(0)")
    for t in range(8):
        v = 128 + ks*32 + t*4
        a("v_mfma_f32_16x16x32_bf16 v[%d:%d], v[%d:%d], v[%d:%d], v[%d:%d]" % (64+4*t, 67+4*t, 32+4*ks, 35+4*ks, v, v+3, 64+4*t, 67+4*t))
    a("v_mfma_f32_16x16x32_bf16 v[96:99], v[48:51], v[%d:%d], v[96:99]" % (32+4*ks, 35+4*ks))
a("s_nop 7")
a("""v_lshlrev_b32 v5, 19, v11
v_lshrrev_b32 v6, 3, v12
v_lshl_add_u32 v5, v6, 14, v5
v_and_b32 v6, 7, v12
v_lshl_add_u32 v5, v6, 4, v5
s_lshl_b32 s50, s45, 21
s_lshl_b32 s51, s3, 15
s_add_u32 s50, s50, s51
s_lshl_b32 s51, s44, 7
s_add_u32 s50, s50, s51
s_add_u32 s50, s50, %d""" % WS_PART)
for r in range(4):
    for k in range(4):
        a("v_cvt_pk_bf16_f32 v%d, v%d, v%d" % (128+4*r+k, 64+8*k+r, 68+8*k+r))
    a("buffer_store_dwordx4 v[%d:%d], v5, s[%d:%d], s50 offen" % (128+4*r, 131+4*r, WS, WS+3))
    a("s_add_u32 s50, s50, %d" % (1<<17))
a("s_cmp_lg_u32 s3, 0\ns_cbranch_scc1 k2_end")
a("v_mov_b32 v25, v96\nv_lshlrev_b32 v5, 10, v12\ns_lshl_b32 s50, s45, 14\ns_lshl_b32 s51, s44, 3\ns_add_u32 s50, s50, s51\ns_add_u32 s50, s50, %d" % WS_ML)
a("s_mov_b64 exec, 0xffff")
a("buffer_store_dwordx2 v[24:25], v5, s[%d:%d], s50 offen" % (WS, WS+3))
pend(a, 1, "k2_end")
K2_LDS = LPX + 4096

kernel_begin(a, "k3_kernel")
a("s_cmp_ge_u32 s2, 256\ns_cbranch_scc1 k3_end_x"); pstart(a)
WUV,WO,WD,WS = 4,8,12,16
for r,b in ((WUV,"wuv"),(WO,"wo"),(WD,"wd"),(WS,"ws")): load_srd(a, r, b)
ids(a)
a("v_lshlrev_b32 v3, 4, v2\nv_lshrrev_b32 v8, 3, v2\nv_and_b32 v9, 7, v2\nv_lshrrev_b32 v11, 4, v2")
a("s_waitcnt lgkmcnt(0)")
a("s_lshl_b32 s50, s42, 10\ns_add_u32 s50, s50, %d" % WS_ML)
a("buffer_load_dwordx4 v[20:23], v3, s[%d:%d], s50 offen" % (WS, WS+3))
a("s_lshl_b32 s51, s3, 8\ns_add_u32 s50, s50, s51\nv_lshlrev_b32 v4, 5, v8")
a("buffer_load_dwordx4 v[24:27], v4, s[%d:%d], s50 offen" % (WS, WS+3))
a("buffer_load_dwordx4 v[28:31], v4, s[%d:%d], s50 offen offset:16" % (WS, WS+3))
a("s_lshl_b32 s50, s42, 17\ns_lshl_b32 s51, s43, 14\ns_add_u32 s50, s50, s51\ns_lshl_b32 s51, s3, 12\ns_add_u32 s50, s50, s51\ns_add_u32 s50, s50, %d" % WS_PART)
a("v_lshlrev_b32 v4, 9, v8\nv_lshl_add_u32 v4, v9, 4, v4")
for n in range(4): a("buffer_load_dwordx4 v[%d:%d], v4, s[%d:%d], s50 offen offset:%d" % (32+4*n, 35+4*n, WS, WS+3, n*128))
a("s_min_u32 s46, s2, 171\ns_lshl_b32 s50, s46, 9\ns_add_u32 s50, s50, %d\nv_lshlrev_b32 v4, 6, v9\nv_lshl_add_u32 v4, v8, 2, v4" % WS_GU)
a("buffer_load_dword v12, v4, s[%d:%d], s50 offen\nbuffer_load_dword v13, v4, s[%d:%d], s50 offen offset:32" % (WS, WS+3, WS, WS+3))
a("""v_and_b32 v4, 3, v8
v_lshlrev_b32 v4, 5, v4
v_lshrrev_b32 v5, 2, v8
v_add_u32 v4, v4, v5
v_lshlrev_b32 v4, 13, v4
v_lshl_add_u32 v4, v9, 4, v4
s_lshr_b32 s50, s43, 1
s_lshl_b32 s50, s50, 7
s_and_b32 s51, s43, 1
s_lshl_b32 s51, s51, 3
s_add_u32 s50, s50, s51
s_lshl_b32 s51, s3, 1
s_add_u32 s50, s50, s51
s_lshl_b32 s50, s50, 13
s_lshl_b32 s51, s42, 8
s_add_u32 s50, s50, s51""")
for n in range(2):
    for u in range(2):
        v = 48 + n*8 + u*4
        a("buffer_load_dwordx4 v[%d:%d], v4, s[%d:%d], s50 offen offset:%d %s" % (v, v+3, WUV, WUV+3, u*128, NT))
    a("s_add_u32 s50, s50, %d" % (16*8192))
a("v_lshlrev_b32 v4, 10, v8\nv_lshl_add_u32 v4, v9, 4, v4\ns_lshl_b32 s50, s46, 13\ns_lshl_b32 s51, s3, 8\ns_add_u32 s50, s50, s51")
for u in range(2): a("buffer_load_dwordx4 v[%d:%d], v4, s[%d:%d], s50 offen offset:%d %s" % (64+4*u, 67+4*u, WD, WD+3, u*128, NT))
a("v_lshlrev_b32 v4, 12, v8\nv_lshl_add_u32 v4, v9, 4, v4\ns_lshl_b32 s50, s42, 17\ns_lshl_b32 s51, s3, 15\ns_add_u32 s50, s50, s51")
for n in range(4):
    for u in range(8):
        v = 128 + n*32 + u*4
        a("buffer_load_dwordx4 v[%d:%d], v4, s[%d:%d], s50 offen offset:%d %s" % (v, v+3, WO, WO+3, n*1024 + u*128, NT))
masks(a, 16)
a("s_waitcnt vmcnt(38)")
a("v_max_f32 v4, v20, v22")
wave_allreduce(a, "v_max_f32", 4, 5)
a("v_sub_f32 v20, v20, v4\nv_sub_f32 v22, v22, v4\nv_exp_f32 v20, v20\nv_exp_f32 v22, v22\ns_nop 0")
round_bf16(a, 20); round_bf16(a, 22)
a("v_mul_f32 v20, v20, v21\nv_fmac_f32 v20, v22, v23")
wave_allreduce(a, "v_add_f32", 20, 5)
a("v_rcp_f32 v20, v20")
for r in range(4): a("v_mov_b32 v%d, 0" % (72+r))
for n in range(4):
    a("v_sub_f32 v5, v%d, v4\nv_exp_f32 v5, v5\ns_nop 0\nv_cvt_pk_bf16_f32 v5, v5, v5" % (24+2*n))
    selA(a, 76, 5, 16)
    a("s_nop 1")
    a("v_mfma_f32_16x16x32_bf16 v[72:75], v[76:79], v[%d:%d], v[72:75]" % (32+4*n, 35+4*n))
a("v_lshrrev_b32 v6, 5, v2\ns_lshl_b32 s53, s3, 1\nv_add_u32 v6, s53, v6\nv_and_b32 v7, 1, v11\nv_lshlrev_b32 v7, 4, v7\nv_lshl_add_u32 v7, v9, 5, v7")
a("v_lshl_add_u32 v5, v6, 8, v7\ns_nop 7")
exec_valid(a)
a("ds_write_b128 v5, v[72:75]\ns_mov_b64 exec, -1\ns_waitcnt lgkmcnt(0)\ns_barrier")
a("s_lshl_b32 s53, s3, 6\nv_lshl_add_u32 v5, v8, 3, s53")
for p in range(8): a("ds_read_b64 v[%d:%d], v5 offset:%d" % (80+2*p, 81+2*p, p*256))
a("s_waitcnt lgkmcnt(0)")
for p in range(1, 8): a("v_add_f32 v80, v80, v%d\nv_add_f32 v81, v81, v%d" % (80+2*p, 81+2*p))
a("v_mul_f32 v80, v80, v20\nv_mul_f32 v81, v81, v20\nv_cvt_pk_bf16_f32 v80, v80, v80\nv_cvt_pk_bf16_f32 v81, v81, v81")
for r in range(8): a("v_mov_b32 v%d, 0" % (84+r))
a("s_waitcnt vmcnt(32)")
for n in range(2):
    selA(a, 76, 80+n, 16); a("s_nop 1")
    for u in range(2):
        v = 48 + n*8 + u*4
        a("v_mfma_f32_16x16x32_bf16 v[%d:%d], v[76:79], v[%d:%d], v[%d:%d]" % (84+4*u, 87+4*u, v, v+3, 84+4*u, 87+4*u))
a("v_lshl_add_u32 v5, v6, 9, v7\ns_nop 7")
exec_valid(a)
a("ds_write_b128 v5, v[84:87] offset:2048\nds_write_b128 v5, v[88:91] offset:2304\ns_mov_b64 exec, -1\ns_waitcnt lgkmcnt(0)\ns_barrier")
a("s_lshl_b32 s53, s3, 7\nv_lshl_add_u32 v5, v8, 4, s53")
for p in range(8): a("ds_read_b128 v[%d:%d], v5 offset:%d" % (24+4*p, 27+4*p, 2048 + p*512))
for v in (12, 13):
    a("s_nop 1\nv_add_f32_dpp v%d, v%d, v%d quad_perm:[1,0,3,2] row_mask:0xf bank_mask:0xf" % (v,v,v))
    a("s_nop 1\nv_add_f32_dpp v%d, v%d, v%d quad_perm:[2,3,0,1] row_mask:0xf bank_mask:0xf" % (v,v,v))
    a("s_nop 1\nv_add_f32_dpp v%d, v%d, v%d row_half_mirror row_mask:0xf bank_mask:0xf" % (v,v,v))
    round_bf16(a, v)
a("v_mul_f32 v12, v12, v13\nv_cvt_pk_bf16_f32 v12, v12, v12")
a("s_cmp_lt_u32 s2, 172\ns_cselect_b32 s53, -1, 0\nv_and_b32 v12, s53, v12")
a("s_waitcnt lgkmcnt(0)")
for p in range(1, 8):
    for n in range(4): a("v_add_f32 v%d, v%d, v%d" % (24+n, 24+n, 24+4*p+n))
for n in range(4): a("v_cvt_pk_bf16_f32 v%d, v%d, v%d" % (24+n, 24+n, 24+n))
for r in range(40): a("v_mov_b32 v%d, 0" % (84+r))
selA(a, 76, 12, 16); a("s_nop 1")
for u in range(2):
    a("v_mfma_f32_16x16x32_bf16 v[%d:%d], v[76:79], v[%d:%d], v[%d:%d]" % (116+4*u, 119+4*u, 64+4*u, 67+4*u, 116+4*u, 119+4*u))
a("s_waitcnt vmcnt(0)")
for n in range(4):
    selA(a, 76, 24+n, 16); a("s_nop 1")
    for u in range(8):
        v = 128 + n*32 + u*4
        a("v_mfma_f32_16x16x32_bf16 v[%d:%d], v[76:79], v[%d:%d], v[%d:%d]" % (84+4*u, 87+4*u, v, v+3, 84+4*u, 87+4*u))
a("v_lshl_add_u32 v5, v6, 11, v7")
a("v_lshrrev_b32 v4, 5, v2\nv_lshl_add_u32 v4, v4, 11, v7\ns_lshl_b32 s53, s3, 9\nv_add_u32 v4, s53, v4\ns_nop 7")
exec_valid(a)
for u in range(8): a("ds_write_b128 v5, v[%d:%d] offset:%d" % (84+4*u, 87+4*u, 8192 + 256*u))
for u in range(2): a("ds_write_b128 v4, v[%d:%d] offset:%d" % (116+4*u, 119+4*u, 8192 + 16384 + 256*u))
a("s_mov_b64 exec, -1\ns_waitcnt lgkmcnt(0)\ns_barrier")
a("v_lshlrev_b32 v5, 3, v0")
for p in range(10): a("ds_read_b64 v[%d:%d], v5 offset:%d" % (24+2*p, 25+2*p, 8192 + p*2048))
a("s_waitcnt lgkmcnt(0)")
for p in range(1, 10): a("v_add_f32 v24, v24, v%d\nv_add_f32 v25, v25, v%d" % (24+2*p, 25+2*p))
a("s_lshl_b32 s50, s2, 11\ns_add_u32 s50, s50, %d" % WS_OUTP)
a("buffer_store_dwordx2 v[24:25], v5, s[%d:%d], s50 offen" % (WS, WS+3))
pend(a, 2, "k3_end")

kernel_begin(a, "k4_kernel")
a("s_cmp_ge_u32 s2, 16\ns_cbranch_scc1 k4_end_x"); pstart(a)
X,OUT,WS = 4,8,12
for r,b in ((X,"x"),(OUT,"out"),(WS,"ws")): load_srd(a, r, b)
a("v_lshrrev_b32 v8, 3, v0\nv_and_b32 v9, 7, v0\nv_lshlrev_b32 v4, 14, v8\nv_lshl_add_u32 v4, v9, 4, v4")
a("s_lshl_b32 s50, s2, 7\ns_add_u32 s50, s50, %d\ns_lshl_b32 s51, s2, 6\nv_lshlrev_b32 v3, 1, v0" % WS_OUTP)
a("s_waitcnt lgkmcnt(0)")
a("buffer_load_ushort v10, v3, s[%d:%d], s51 offen" % (X, X+3))
for n in range(8):
    a("buffer_load_dwordx4 v[%d:%d], v4, s[%d:%d], s50 offen offset:%d" % (16+4*n, 19+4*n, WS, WS+3, (n&1)*2048))
    if n & 1: a("s_add_u32 s50, s50, 4096")
a("s_waitcnt vmcnt(0)")
for n in range(1, 8):
    for r in range(4): a("v_add_f32 v%d, v%d, v%d" % (16+r, 16+r, 16+4*n+r))
a("v_lshlrev_b32 v5, 4, v0\nds_write_b128 v5, v[16:19]\ns_waitcnt lgkmcnt(0)\ns_barrier")
a("v_cmp_gt_u32 vcc, 32, v0\ns_and_saveexec_b64 s[52:53], vcc\ns_cbranch_execz k4_end")
a("v_lshlrev_b32 v5, 2, v0")
for p in range(32): a("ds_read_b32 v%d, v5 offset:%d" % (16+p, p*128))
a("s_waitcnt lgkmcnt(0)\nv_lshlrev_b32 v10, 16, v10")
for p in range(32): a("v_add_f32 v10, v10, v%d" % (16+p))
a("v_cvt_pk_bf16_f32 v10, v10, v10")
a("buffer_store_short v10, v3, s[%d:%d], s51 offen" % (OUT, OUT+3))
pend(a, 3, "k4_end")

if PROBE:
    pk, pw = [int(t) for t in PROBE.split(",")]
    kernel_begin(a, "probe_kernel")
    a("s_cmp_ge_u32 s2, 1\ns_cbranch_scc1 probe_end")
    load_srd(a, 4, "ws")
    a("v_lshlrev_b32 v1, 3, v0\ns_waitcnt lgkmcnt(0)")
    nld = 1 if pk == 3 else 16
    a("s_mov_b32 s10, %d\ns_mov_b32 s11, %d" % (STAMP_OFF, STAMP_OFF + pk*8192 + (4 if pw == 1 else 0)))
    for n in range(16):
        a("buffer_load_dword v%d, v1, s[4:7], s10 offen\ns_add_u32 s10, s10, 512" % (8+n))
    for n in range(nld):
        a("buffer_load_dword v%d, v1, s[4:7], s11 offen\ns_add_u32 s11, s11, 512" % (24+n))
    a("s_waitcnt vmcnt(0)")
    op = "v_min_u32" if pw == 0 else "v_max_u32"
    for n in range(1, 16): a("v_min_u32 v8, v8, v%d" % (8+n))
    for n in range(1, nld): a("%s v24, v24, v%d" % (op, 24+n))
    wave_allreduce(a, "v_min_u32", 8, 9)
    wave_allreduce(a, op, 24, 9)
    a("v_sub_u32 v8, v24, v8\ns_nop 1\nv_readfirstlane_b32 s12, v8\ns_nop 3\ns_min_u32 s12, s12, 10000\ns_mul_i32 s12, s12, 20")
    a("s_memrealtime s[14:15]\ns_waitcnt lgkmcnt(0)\nprobe_loop:\ns_memrealtime s[16:17]\ns_waitcnt lgkmcnt(0)\ns_sub_u32 s16, s16, s14\ns_cmp_lt_u32 s16, s12\ns_cbranch_scc1 probe_loop")
    a("probe_end:\ns_endpgm")
LAT = None
for x in sys.argv:
    if x.startswith("--lat="): LAT = x.split("=")[1].split(",")
if LAT:
    kernel_begin(a, "lat_kernel")
    a("s_cmp_ge_u32 s2, 1\ns_cbranch_scc1 lat_end")
    load_srd(a, 4, LAT[0]); load_srd(a, 8, "dbg")
    a("v_mov_b32 v1, 0\ns_mov_b32 s12, %d\ns_mov_b32 s13, 0\ns_waitcnt lgkmcnt(0)\ns_mov_b64 exec, 1" % int(LAT[1]))
    a("s_memrealtime s[14:15]\ns_waitcnt lgkmcnt(0)")
    a("lat_loop:\nbuffer_load_dword v2, v1, s[4:7], s12 offen %s\ns_waitcnt vmcnt(0)\ns_add_u32 s12, s12, %d\ns_add_u32 s13, s13, 1\ns_cmp_lt_u32 s13, 200\ns_cbranch_scc1 lat_loop" % (LAT[3] if len(LAT) > 3 else "", int(LAT[2])))
    a("s_memrealtime s[16:17]\ns_waitcnt lgkmcnt(0)\ns_sub_u32 s16, s16, s14\nv_mov_b32 v2, s16\nbuffer_store_dword v2, v1, s[8:11], 0 offen")
    a("lat_end:\ns_endpgm")
JMP = None
for x in sys.argv:
    if x.startswith("--jmp="): JMP = [int(t) for t in x.split("=")[1].split(",")]
if JMP:
    kernel_begin(a, "jmp_kernel")
    if JMP[2]:
        a("s_getpc_b64 s[10:11]\nv_lshlrev_b32 v2, 7, v0")
        for i in range((JMP[0]*JMP[1])//8192 + 1):
            a("global_load_dword v3, v2, s[10:11]\nv_add_u32 v2, 8192, v2")
        a("s_waitcnt vmcnt(0)")
    for k in range(JMP[0]):
        if JMP[1] > 8: a("s_branch J%d\n.fill %d, 4, 0xbf800000\nJ%d:" % (k, JMP[1]//4 - 1, k))
        else: a("v_add3_u32 v1, v0, v0, v0")
    a("s_endpgm\n.fill 2200, 4, 0xbf800000")
kernel_begin(a, "empty_kernel"); a("s_endpgm")

launches = ["kernel=k1_kernel grid=(256,1,1) block=(256,1,1) lds=17408",
            "kernel=k2_kernel grid=(256,1,1) block=(256,1,1) lds=%d" % K2_LDS,
            "kernel=k3_kernel grid=(256,1,1) block=(256,1,1) lds=32768",
            "kernel=k4_kernel grid=(16,1,1) block=(256,1,1) lds=4096"]
descs = [descriptor(k) for k in ("k1_kernel","k2_kernel","k3_kernel","k4_kernel")]
nempty = 0
for x in sys.argv:
    if x.startswith("--empty="): nempty = int(x.split("=")[1])
if nempty:
    launches += ["kernel=empty_kernel grid=(256,1,1) block=(256,1,1) lds=0"]*nempty
descs.append(descriptor("empty_kernel", 8, 16, 8))
if PROBE:
    launches.append("kernel=probe_kernel grid=(1,1,1) block=(64,1,1) lds=0")
    descs.append(descriptor("probe_kernel"))
if JMP:
    launches.insert(0, "kernel=jmp_kernel grid=(256,1,1) block=(64,1,1) lds=131072")
    descs.append(descriptor("jmp_kernel"))
if LAT:
    launches.insert(0, "kernel=lat_kernel grid=(1,1,1) block=(64,1,1) lds=0")
    descs.append(descriptor("lat_kernel"))
open(sys.argv[1], "w").write(finish(launches, a.text(), descs))
```

```python
import re
REG = re.compile(r'(?<![\w.])([vas])(?:(\d+)|\[(\d+):(\d+)\])')
TRANS = ("v_exp_f32","v_log_f32","v_rcp_f32","v_rsq_f32","v_sqrt_f32","v_sin_f32","v_cos_f32","v_rcp_iflag_f32")
def regs(tok):
    out = set()
    for m in REG.finditer(tok):
        k = m.group(1)
        if m.group(2) is not None: out.add((k, int(m.group(2))))
        else: out |= {(k, r) for r in range(int(m.group(3)), int(m.group(4))+1)}
    if re.search(r'\bvcc\b', tok): out |= {("s","vcc_lo"),("s","vcc_hi")}
    if re.search(r'\bvcc_lo\b', tok): out.add(("s","vcc_lo"))
    if re.search(r'\bvcc_hi\b', tok): out.add(("s","vcc_hi"))
    if re.search(r'\bexec(_lo|_hi)?\b', tok): out.add(("s","exec"))
    if re.search(r'\bm0\b', tok): out.add(("s","m0"))
    return out
def split_ops(s):
    ops, depth, cur = [], 0, ""
    for c in s:
        if c == "[": depth += 1
        if c == "]": depth -= 1
        if c == "," and depth == 0: ops.append(cur.strip()); cur = ""
        else: cur += c
    if cur.strip(): ops.append(cur.strip())
    return ops
class I:
    def __init__(self, line):
        self.line = line
        t = line.split(";")[0].strip()
        p = t.split(None, 1)
        self.op = op = p[0]
        ops = split_ops(p[1]) if len(p) > 1 else []
        self.ops = ops
        self.valu = op.startswith("v_") and not op.startswith("v_mfma")
        self.mfma = op.startswith("v_mfma")
        self.vmem = op.startswith(("buffer_","global_","flat_"))
        self.ds = op.startswith("ds_")
        self.salu = op.startswith("s_")
        self.dpp = "_dpp" in op or " row_" in t or "quad_perm" in t
        self.perml = op.startswith("v_permlane")
        self.trans = op.replace("_e32","").replace("_e64","") in TRANS
        self.dot = op.startswith("v_dot")
        self.rdlane = op.startswith(("v_readlane","v_readfirstlane"))
        self.lds_dma = self.vmem and (re.search(r'\blds\b', t) is not None or "load_lds" in op)
        self.w = set(); self.r = set(); self.srcC = set(); self.srcAB = set(); self.stdata = set()
        R = [regs(o) for o in ops]
        allr = set().union(*R) if R else set()
        if self.mfma:
            self.w = R[0]; self.srcAB = R[1] | R[2]; self.srcC = R[3]; self.r = self.srcAB | self.srcC
            self.passes = 8 if "32x32x16" in op else 4
        elif self.valu:
            if self.perml: self.w = R[0] | R[1]; self.r = R[0] | R[1]
            else:
                self.w = set(R[0]); self.r = set().union(*R[1:]) if len(R) > 1 else set()
                if op.startswith(("v_add_co","v_sub_co","v_addc_co","v_subb_co","v_div_scale","v_mad_u64")): self.w |= R[1]
                if op.startswith(("v_fmac","v_dot2c","v_writelane")) or self.dpp: self.r |= R[0]
                if op.startswith("v_cmpx"): self.w.add(("s","exec"))
        elif self.vmem:
            if "store" in op or "atomic" in op:
                self.r = allr
                if "x4" in op or "x3" in op: self.stdata = R[0] if op.startswith("buffer_") else R[1]
            elif self.lds_dma or op in ("buffer_inv","buffer_wbl2"): self.r = allr
            else: self.w = R[0]; self.r = set().union(*R[1:])
        elif self.ds:
            if op.startswith(("ds_read","ds_bpermute","ds_permute","ds_swizzle")) or "_rtn" in op: self.w = R[0]; self.r = set().union(*R[1:])
            else: self.r = allr
        elif self.salu and R:
            if op.startswith(("s_cmp","s_cbranch","s_branch","s_waitcnt","s_nop","s_sleep","s_setprio","s_bitcmp")): self.r = allr
            else: self.w = R[0]; self.r = set().union(*R[1:]) if len(R) > 1 else set()
        self.states = int(ops[0], 0) + 1 if op == "s_nop" else 1
def vg(s): return {x for x in s if x[0] in "va"}
def sg(s): return {x for x in s if x[0] == "s"}
def need(p, c):
    n = 0
    if p.valu:
        vw = vg(p.w); sw = sg(p.w)
        if vw & c.r:
            if c.dpp or c.perml or c.mfma: n = max(n, 2)
            if c.rdlane: n = max(n, 1)
            if p.trans and c.valu and not c.trans: n = max(n, 1)
            if p.trans and (c.vmem or c.ds): n = max(n, 1)
        if p.dot and (vw & (c.r | c.w)):
            if not (c.op == p.op and not (vw & (set().union(*[regs(o) for o in c.ops[1:3]])))): n = max(n, 3)
        if sw & c.r:
            if c.valu: n = max(n, 4 if c.op.startswith(("v_readlane","v_writelane")) else 2)
            if c.vmem: n = max(n, 5)
            if c.salu and not c.op.startswith("s_cbranch"): n = max(n, 1)
        if ("s","exec") in sw and (c.dpp or c.perml or c.mfma or c.rdlane): n = max(n, 5)
    if p.mfma:
        d = {4: 8, 8: 12}[p.passes]
        if c.mfma:
            if p.w & c.srcAB: n = max(n, d)
            elif p.w & c.srcC and (p.w != c.srcC or p.passes != c.passes): n = max(n, d-2)
            elif p.w & c.w and p.w != c.srcC: n = max(n, d)
        elif (p.w & (c.r | c.w)): n = max(n, d)
        if c.valu and (p.srcC & c.w): n = max(n, p.passes - 1)
    if p.stdata and (p.stdata & c.w): n = max(n, 2)
    if p.salu and ("s","m0") in p.w and c.lds_dma: n = max(n, 1)
    return n
def fix(text, verbose=False):
    out = []; hist = []; added = 0
    for line in text.split("\n"):
        t = line.split(";")[0].strip()
        if not t or t.endswith(":") or t.startswith("."):
            out.append(line); continue
        c = I(line)
        dist = 0; pad = 0
        for p in reversed(hist):
            pad = max(pad, need(p, c) - dist)
            dist += p.states
            if dist >= 20: break
        if pad > 0:
            nop = I("s_nop %d" % (pad-1)); out.append("    s_nop %d" % (pad-1)); hist.append(nop); added += pad
        out.append(line); hist.append(c)
        if c.op in ("s_endpgm", "s_branch"): hist = []
    if verbose: print("hazard pads added:", added)
    return "\n".join(out)
```

```python
import sys, math, struct
from asmlib import *
import hazard
def f2u(x): return struct.unpack("<I", struct.pack("<f", x))[0]
opt = dict(stamps=0, spin=1<<16, nt="", ntw="", win=4, nstar=12, nb=0, tk=3, asym=1, dly=0, kmap=1, ta=6, tu=1, pre=1, mlpos=4, t2=6, loc1=1, loc4=1, h1k=16, hold=0)
for x in sys.argv[2:]:
    k, v = x.split("=")
    assert k in opt, k
    opt[k] = v if k.startswith("nt") else int(v)
NT = opt["nt"]; NTW = opt["ntw"]; SPIN = opt["spin"]; WIN = opt["win"]

QA = 0x40000; QD = 0x50000; DF = 0x58000; ML = 0x60000; GU = 0x70000; H4 = 0x80000; H4X = 0x10000; H5 = 0xC0000; PART = 0x100000
Q1 = 0x600000; Q1X = 0x20000
L_Q = 131072; L_MX = L_Q; L_PX = L_Q + 8192; L_XN = L_Q
L_FP = 0; L_R1 = 8192; L_DP = 12288; L_EP = 16384; L_WT = 20480; L_HV = 22528
S = dict(ws=4, x=8, ckv=12, wq=16, wuk=20, wuv=24, wo=28, wg=32, wu=36, wd=92, out=96)
def srd(b): return "s[%d:%d]" % (S[b], S[b]+3)
WS = srd("ws")
a = Asm(); K = NAME + "_kernel"
cold = []

def st(k):
    if opt["stamps"]: a("s_memrealtime s[62:63]\ns_waitcnt lgkmcnt(0)\ns_mov_b32 s%d, s62" % (64+k))
def cnt(k):
    if opt["stamps"]: a("s_mov_b32 s%d, s48" % (76+k))
def stz():
    if opt["stamps"]:
        for k in range(2, 16): a("s_mov_b32 s%d, 0" % (64+k))
def ptr(b): a("s_load_dwordx2 s[%d:%d], s[0:1], %d" % (S[b], S[b]+1, KOFF[b]))
def fmt(b): a("s_mov_b32 s%d, %d\ns_mov_b32 s%d, 0x20000" % (S[b]+2, SIZES[b], S[b]+3))
def vr(v, n=4): return "v[%d:%d]" % (v, v+n-1)
def mfma(d, A, B, c=None):
    a("v_mfma_f32_16x16x32_bf16 %s, %s, %s, %s" % (vr(d), vr(A), vr(B), vr(d) if c is None else c))
def selA(dst, src, vm):
    for r in range(4): a("v_and_b32 v%d, v%d, v%d" % (dst+r, src, vm+r))
def dpp(op, d, s0, s1, ctl, bank=0xf):
    a("%s_dpp v%d, v%d, v%d %s row_mask:0xf bank_mask:0x%x" % (op, d, s0, s1, ctl, bank))
def xrow(op, v, t):
    for sw in ("v_permlane16_swap_b32", "v_permlane32_swap_b32"):
        a("v_mov_b32 v%d, v%d\n%s v%d, v%d\n%s v%d, v%d, v%d" % (t, v, sw, v, t, op, v, v, t))
def allred(op, v, t):
    for ror in (8,4,2,1): dpp(op, v, v, v, "row_ror:%d" % ror)
    xrow(op, v, t)
def red8(op, regs):
    for ctl in ("quad_perm:[1,0,3,2]", "quad_perm:[2,3,0,1]", "row_half_mirror"):
        for v in regs: dpp(op, v, v, v, ctl)
def rbf(v): a("v_cvt_pk_bf16_f32 v%d, v%d, v%d\nv_and_b32 v%d, 0xffff0000, v%d" % (v, v, v, v, v))
def setexec(lo, hi): a("s_mov_b32 exec_lo, 0x%x\ns_mov_b32 exec_hi, 0x%x" % (lo, hi))
def execall(): a("s_mov_b64 exec, -1")
def loop_head(name):
    L = a.label(name); a("s_mov_b32 s48, 0\n%s:" % L); return L
def retry(L, flip=None, lim=None):
    R = a.label("rt"); D = a.label("ok")
    a("s_cbranch_vccnz %s\n%s:" % (R, D))
    fl = ""
    if flip: fl = "s_cmp_ge_u32 s48, 12\ns_cselect_b32 s87, 0x%x, 0\ns_xor_b32 s%d, s%d, s87\n" % (flip[1], flip[0], flip[0])
    cold.append("%s:\ns_add_u32 s48, s48, 1\n%ss_cmp_lt_u32 s48, %d\ns_cbranch_scc1 %s\ns_branch %s" % (R, fl, lim or SPIN, L, D))
def tagmasks(vm, t):
    a("v_mul_u32_u24 v%d, 33, v9\nv_add_u32 v%d, s46, v%d" % (t, t, t))
    for k in range(4):
        a("v_bfe_u32 v%d, v%d, %d, 1\nv_lshlrev_b32 v%d, 14, v%d" % (vm+k, t, 2*k, vm+k, vm+k))
        a("v_bfe_u32 v%d, v%d, %d, 1\nv_lshl_or_b32 v%d, v%d, 30, v%d" % (t+1, t, 2*k+1, vm+k, t+1, vm+k))
def tagmasks2(vm, t):
    a("v_lshrrev_b32 v%d, 1, v12\nv_mul_u32_u24 v%d, 33, v%d\nv_add_u32 v%d, s46, v%d\nv_and_b32 v%d, 1, v2\nv_lshlrev_b32 v%d, 2, v%d\nv_lshrrev_b32 v%d, v%d, v%d" % (t, t, t, t, t, t+1, t+1, t+1, t, t+1, t))
    for k in range(2):
        a("v_bfe_u32 v%d, v%d, %d, 1\nv_lshlrev_b32 v%d, 14, v%d" % (vm+k, t, 2*k, vm+k, vm+k))
        a("v_bfe_u32 v%d, v%d, %d, 1\nv_lshl_or_b32 v%d, v%d, 30, v%d" % (t+1, t, 2*k+1, vm+k, t+1, vm+k))
def masks(vm, t):
    a("v_lshrrev_b32 v8, 3, v2\nv_and_b32 v9, 7, v2")
    a("v_and_b32 v%d, 1, v2\nv_cmp_eq_u32 vcc, 1, v%d\nv_mov_b32 v%d, 0xffff\nv_mov_b32 v%d, 0xffff0000\nv_cndmask_b32 v%d, v%d, v%d, vcc\nv_bfe_u32 v%d, v2, 1, 2" % (t, t, t, vm, t, t, vm, vm+3))
    for r in range(4): a("v_cmp_eq_u32 vcc, %d, v%d\nv_cndmask_b32 v%d, 0, v%d, vcc" % (r, vm+3, vm+r, t))

def tailsetup():
    for b in ("wuv","wo","wg","wu","wd","out"): ptr(b)
    for b in ("wuv","wo","wg","wu","wd","out","x","ckv"): fmt(b)
    tagmasks(20, 4)
    a("v_cmp_gt_u32 vcc, 8, v12")
    for r in range(4): a("v_cndmask_b32 v%d, 0, v%d, vcc" % (24+r, 16+r))
    a("""s_lshr_b32 s90, s43, 1
s_and_b32 s87, s3, 3
s_cmp_lt_u32 s40, 3
s_cselect_b32 s56, 6, 5
s_cselect_b32 s57, 0, 12
s_mul_i32 s51, s42, s56
s_add_u32 s57, s57, s51
v_and_b32 v50, 1, v8
v_lshlrev_b32 v50, 5, v50
v_lshrrev_b32 v5, 1, v8
v_add_u32 v50, v50, v5
v_lshlrev_b32 v50, 13, v50
v_lshl_add_u32 v50, v9, 4, v50
v_lshlrev_b32 v51, 12, v11
v_lshl_add_u32 v51, v12, 4, v51
v_lshlrev_b32 v52, 11, v11
v_lshl_add_u32 v52, v12, 4, v52
s_cmp_lt_u32 s3, s56
s_cselect_b32 s51, 0, 0x80000000
v_add_u32 v52, s51, v52
v_mul_u32_u24 v10, 5504, v8
v_lshl_add_u32 v10, v9, 4, v10
v_bfrev_b32 v5, 1
v_cmp_gt_u32 vcc, s56, v9
v_cndmask_b32 v10, v5, v10, vcc
s_lshl_b32 s50, s43, 6
s_lshl_b32 s51, s87, 2
s_add_u32 s50, s50, s51
s_lshl_b32 s50, s50, 13
s_lshl_b32 s51, s42, 8
s_add_u32 s58, s50, s51
s_lshl_b32 s50, s42, 17
s_lshl_b32 s51, s3, 14
s_add_u32 s50, s50, s51
s_lshl_b32 s51, s90, 8
s_add_u32 s59, s50, s51
s_add_u32 s50, s57, s3
s_lshl_b32 s50, s50, 13
s_add_u32 s60, s50, s51
s_lshl3_add_u32 s50, s90, s3
s_mul_i32 s50, s50, %d
s_lshl_b32 s51, s57, 4
s_add_u32 s61, s50, s51
s_lshl_b32 s50, s43, 12
s_lshr_b32 s53, s42, 4
s_lshl_b32 s53, s53, 11
s_add_u32 s50, s50, s53
s_and_b32 s53, s42, 3
s_lshl_b32 s53, s53, 9
s_add_u32 s50, s50, s53
s_bfe_u32 s53, s42, 0x20002
s_lshl_b32 s53, s53, 7
s_add_u32 s50, s50, s53
s_lshl_b32 s53, s87, 20
s_add_u32 s50, s50, s53
s_add_u32 s80, s50, %d
s_add_u32 s81, s80, 0x8000
s_add_u32 s82, s81, 0x8000
s_add_u32 s83, s82, 0x8000
v_lshlrev_b32 v7, 17, v8
v_lshl_add_u32 v7, v9, 4, v7
s_lshl_b32 s50, s42, 11
s_add_u32 s84, s50, %d
s_lshl_b32 s51, s3, 8
s_add_u32 s85, s50, s51
s_add_u32 s85, s85, %d
v_and_b32 v62, 3, v2
v_lshlrev_b32 v62, 4, v62
v_lshl_add_u32 v62, v11, 6, v62
s_lshl_b32 s55, s42, 4
s_add_u32 s55, s55, %d
s_lshl_b32 s86, s40, 4
s_lshr_b32 s50, s41, 1
s_add_u32 s86, s86, s50
s_lshl_b32 s86, s86, 4
s_add_u32 s86, s86, s3
s_add_u32 s86, s86, %d
s_lshl_b32 s86, s86, 13
v_lshlrev_b32 v58, 7, v2
v_lshlrev_b32 v53, 3, v2
s_lshl_b32 s53, s87, 7
v_lshl_add_u32 v54, v8, 4, s53
s_lshl_b32 s53, s3, 5
v_lshl_add_u32 v55, v11, 3, s53
v_and_b32 v59, 1, v11
v_lshlrev_b32 v59, 4, v59
v_lshl_add_u32 v59, v9, 5, v59
v_lshrrev_b32 v6, 5, v2
v_lshl_add_u32 v59, v6, 8, v59
s_lshl_b32 s53, s3, 9
v_add_u32 v56, s53, v59
v_add_u32 v57, s53, v59
v_lshlrev_b32 v63, 5, v12
v_lshl_add_u32 v63, v11, 4, v63
v_add_u32 v63, s53, v63
s_lshl_b32 s53, s45, 11
s_lshl_b32 s50, s87, 6
s_add_u32 s53, s53, s50
v_lshl_add_u32 v4, v8, 3, s53
s_waitcnt lgkmcnt(0)""" % (16*2752, PART, GU, H4 + H4X*opt["loc4"], ML, 16 - opt["nb"]))

kernel_begin(a, K)
a("s_cmpk_ge_u32 s2, 256\ns_cbranch_scc1 L_end")
if opt["stamps"]: a("s_memrealtime s[64:65]")
for b in ("x","wq","ws","wuk","ckv"): ptr(b)
a("""v_lshrrev_b32 v1, 6, v0
v_and_b32 v2, 63, v0
v_readfirstlane_b32 s3, v1
s_lshr_b32 s41, s2, 3
s_cmp_lg_u32 s3, 3
s_cbranch_scc1 L_e1
s_getpc_b64 s[50:51]
s_lshl_b32 s52, s41, 9
v_lshl_add_u32 v1, v2, 7, s52
s_mov_b64 exec, 15
global_load_dword v60, v1, s[50:51]
s_mov_b64 exec, -1
L_e1:
s_and_b32 s40, s2, 7
s_lshr_b32 s42, s41, 3
s_lshl_b32 s43, s40, 2
s_add_u32 s42, s42, s43
s_and_b32 s43, s41, 6
s_lshl_b32 s51, s42, 8
v_lshlrev_b32 v3, 4, v2
v_lshrrev_b32 v11, 4, v2
v_and_b32 v12, 15, v2
v_lshlrev_b32 v10, 17, v11
v_lshl_add_u32 v10, v12, 4, v10
s_and_b32 s91, s41, 1
s_cmp_eq_u32 s3, 0
s_cbranch_scc0 L_notw0""")
fmt("x"); fmt("wq")
a("s_xor_b32 s45, s91, 1\ns_add_u32 s45, s45, s43\ns_lshl_b32 s50, s45, 19\ns_add_u32 s50, s50, s51\ns_lshl_b32 s52, s43, 7\nv_lshlrev_b32 v1, 1, v2\ns_waitcnt lgkmcnt(0)")
a("buffer_load_dwordx4 v[4:7], v3, %s, 0 offen" % srd("x"))
a("buffer_load_ushort v13, v1, %s, s52 offen\nbuffer_load_ushort v14, v1, %s, s52 offen offset:128" % (srd("x"), srd("x")))
for t in range(16):
    a("buffer_load_dwordx4 %s, v10, %s, s50 offen %s" % (vr(128+4*t), srd("wq"), NTW))
    if t < 15: a("s_addk_i32 s50, 8192")
fmt("ws")
a("s_lshl_b32 s50, s42, 3\ns_add_u32 s50, s50, s45\ns_lshl_b32 s50, s50, 9\ns_add_u32 s50, s50, %d\ns_mov_b32 exec_hi, 0\nv_mov_b32 v28, -1\nv_mov_b32 v29, 0\nv_mov_b32 v30, -1\nv_mov_b32 v31, 0" % (Q1 + Q1X))
a("buffer_store_dwordx4 v[28:31], v3, %s, s50 offen" % WS); execall()
a("s_barrier")
stz(); st(1)
a("s_load_dword s46, s[4:5], 0")
masks(16, 1)
a("v_cmp_gt_u32 vcc, 8, v12")
for r in range(4): a("v_cndmask_b32 v%d, 0, v%d, vcc" % (24+r, 16+r))
a("s_waitcnt vmcnt(17)")
vf = 32
for k in range(4): a("v_lshlrev_b32 v%d, 16, v%d\nv_and_b32 v%d, 0xffff0000, v%d" % (vf+2*k, 4+k, vf+2*k+1, 4+k))
a("v_add_f32 v40, v32, v33\nv_add_f32 v41, v34, v35\nv_add_f32 v42, v36, v37\nv_add_f32 v43, v38, v39\nv_add_f32 v40, v40, v41\nv_add_f32 v42, v42, v43\nv_add_f32 v40, v40, v42")
allred("v_add_f32", 40, 41)
a("v_mul_f32 v40, 0x%x, v40" % f2u(1/512))
for k in range(8): a("v_sub_f32 v%d, v%d, v40" % (vf+k, vf+k))
a("v_mul_f32 v42, v32, v32")
for k in range(1, 8): a("v_fmac_f32 v42, v%d, v%d" % (vf+k, vf+k))
allred("v_add_f32", 42, 41)
a("v_mul_f32 v42, 0x%x, v42" % f2u(1/512))
rbf(42); rbf(40)
a("v_add_f32 v42, 0x%x, v42" % f2u(1e-5)); rbf(42)
a("v_sqrt_f32 v42, v42\nv_lshlrev_b32 v13, 16, v13\nv_sub_f32 v13, v13, v40\nv_lshlrev_b32 v14, 16, v14\nv_sub_f32 v14, v14, v40"); rbf(42)
a("v_rcp_f32 v43, v42"); rbf(13); rbf(14)
for v in (13, 14): a("v_mul_f32 v41, v%d, v43\nv_fma_f32 v%d, -v41, v42, v%d\nv_fma_f32 v%d, v%d, v43, v41\nv_cvt_pk_bf16_f32 v%d, v%d, v%d" % ((v,)*8))
a("v_lshlrev_b32 v1, 2, v2\nv_add_u32 v1, %d, v1\nds_write2st64_b32 v1, v13, v14 offset1:1" % L_XN)
a("s_and_b32 s55, s45, 1\ns_lshl_b32 s55, s55, 8\ns_add_u32 s55, s55, %d\nv_lshl_add_u32 v1, v11, 6, s55" % L_XN)
for q in range(4): a("ds_read_b128 %s, v1 offset:%d" % (vr(32+4*q), 16*q))
a("v_lshlrev_b32 v1, 5, v12\nv_lshl_add_u32 v1, v11, 4, v1\ns_xor_b32 s52, s50, 0x%x" % Q1X)
a("s_waitcnt lgkmcnt(0)\ns_add_u32 s46, s46, 1\ns_and_b32 s47, s46, 0xff\nv_mov_b32 v13, s47\ns_movk_i32 s51, 0xff")
st(2)
for t in range(16):
    selA(64+4*(t&1), 32+t, 24)
    a("s_waitcnt vmcnt(%d)" % (16-t))
    mfma(28, 64+4*(t&1), 128+4*t, "0" if t == 0 else None)
for r in range(4): a("v_bfi_b32 v%d, s51, v13, v%d" % (28+r, 28+r))
setexec(0xffffffff, 0)
a("buffer_store_dwordx4 v[28:31], v1, %s, s50 offen" % WS)
a("buffer_store_dwordx4 v[28:31], v1, %s, s52 offen sc1" % WS)
execall()
a("s_barrier")
st(3)
a("s_cmp_eq_u32 s91, 0\ns_cbranch_scc1 L_attn0\ns_mov_b32 s44, 0\ns_mov_b32 s45, 0\ns_lshl_b32 s49, s42, 3\ns_add_u32 s49, s49, s43\ns_branch L_wtail")
a("L_notw0:\ns_cmp_eq_u32 s91, 0\ns_cbranch_scc1 L_attn")
a("""s_lshr_b32 s45, s3, 2
s_add_u32 s43, s43, s45
s_lshl1_add_u32 s44, s45, s3
s_and_b32 s44, s44, 3
s_lshl_b32 s50, s43, 19
s_add_u32 s50, s50, s51
s_lshl_b32 s49, s42, 3
s_add_u32 s49, s49, s43""")
fmt("ws"); fmt("wuk"); stz()
a("s_cmp_eq_u32 s3, 1\ns_waitcnt lgkmcnt(0)\ns_barrier\ns_load_dword s46, s[4:5], 0\ns_cbranch_scc0 L_noearly")
def wukloads():
    for t in range(16):
        a("buffer_load_dwordx4 %s, v10, %s, s50 offen" % (vr(128+4*t), srd("wuk")))
        if t < 15: a("s_addk_i32 s50, 8192")
wukloads()
a("L_noearly:\nv_and_b32 v24, 31, v2\nv_lshrrev_b32 v25, 5, v2\nv_lshlrev_b32 v26, 6, v24\nv_lshl_add_u32 v26, v25, 16, v26\ns_cmp_eq_u32 s3, 2\ns_cbranch_scc0 L_noclr")
for r in range(4): a("v_mov_b32 v%d, -1" % (20+r))
a("""s_lshl_b32 s53, s42, 11
s_lshl_b32 s54, s43, 3
s_add_u32 s54, s54, s53
s_add_u32 s54, s54, %d
buffer_store_dwordx4 v[20:23], v26, %s, s54 offen sc1
s_lshl_b32 s55, s43, 8
s_add_u32 s53, s53, s55
s_add_u32 s53, s53, %d
s_lshl_b32 s55, s43, 4
s_add_u32 s55, s55, s42
s_lshl_b32 s55, s55, 9
s_add_u32 s55, s55, %d
s_sub_u32 s55, s55, s53
v_mul_lo_u32 v25, v25, s55
v_lshl_add_u32 v25, v24, 4, v25
buffer_store_dwordx4 v[20:23], v25, %s, s53 offen sc1""" % (H4, WS, GU, H5, WS))
a("L_noclr:")
masks(16, 1)
a("s_waitcnt lgkmcnt(0)\ns_add_u32 s46, s46, 1\ns_and_b32 s47, s46, 0xff")
a("v_lshlrev_b32 v1, 10, v11\nv_lshl_add_u32 v1, v12, 5, v1\ns_lshl_b32 s52, s42, 12\ns_add_u32 s52, s52, %d" % (Q1 + Q1X*opt["loc1"]))
a("s_cmp_eq_u32 s44, 1\ns_barrier\ns_cbranch_scc1 L_stageb")
a("s_cmp_eq_u32 s3, 2\ns_cbranch_scc0 L_wtail\ns_waitcnt vmcnt(0)\ns_mov_b32 exec_lo, 0\nbuffer_store_dwordx4 v[20:23], v26, %s, s54 offen\ns_mov_b64 exec, -1\ns_branch L_wtail" % WS)
a("L_stageb:\ns_cmp_eq_u32 s3, 1\ns_cbranch_scc1 L_wukdone")
wukloads()
a("L_wukdone:")
tailsetup()
tagmasks2(48, 5)
a("s_waitcnt vmcnt(%d)" % opt["h1k"])
st(1)
L = loop_head("h1")
for n in range(4): a("buffer_load_dwordx4 %s, v1, %s, s52 offen offset:%d sc1" % (vr(32+4*n), WS, (n>>1)*512 + (n&1)*16))
a("s_waitcnt vmcnt(0)")
for r in range(16): a("v_xor_b32 v%d, s47, v%d" % (32+r, 32+r))
a("v_or_b32 v5, v32, v33")
for r in range(2, 16, 2): a("v_or3_b32 v5, v5, v%d, v%d" % (32+r, 33+r))
a("v_and_b32 v5, 0xff, v5\nv_cmp_ne_u32 vcc, 0, v5")
retry(L, (52, Q1X))
st(2); cnt(0)
for e in range(8): a("v_add_f32 v%d, v%d, v%d" % (32+e, 32+e, 40+e))
for e in range(4): a("v_permlane32_swap_b32 v%d, v%d" % (32+e, 36+e))
for e in range(4): a("v_add_f32 v%d, v%d, v%d" % (32+e, 32+e, 36+e))
for e in range(2): a("v_permlane16_swap_b32 v%d, v%d" % (32+e, 34+e))
for e in range(2): a("v_add_f32 v%d, v%d, v%d" % (32+e, 32+e, 34+e))
a("v_cvt_pk_bf16_f32 v40, v32, v33\nv_cvt_pk_bf16_f32 v41, v32, v33\nv_permlane16_swap_b32 v40, v41")
a("v_mov_b32 v42, v40\nv_mov_b32 v43, v41\nv_permlane32_swap_b32 v40, v42\nv_permlane32_swap_b32 v41, v43")
for t in range(16): a("v_dot2_f32_bf16 v%d, v%d, v40, 0" % (64+t, 128+4*t))
for k in range(1, 4):
    for t in range(16): a("v_dot2c_f32_bf16 v%d, v%d, v%d" % (64+t, 128+4*t+k, 40+k))
for t in range(8): dpp("v_add_f32", 64+t, 64+t, 64+t, "row_ror:8", 0x3)
for t in range(8): dpp("v_add_f32", 64+t, 72+t, 72+t, "row_ror:8", 0xc)
for t in range(4): dpp("v_add_f32", 64+t, 64+t, 64+t, "row_shl:4", 0x5)
for t in range(4): dpp("v_add_f32", 64+t, 68+t, 68+t, "row_shr:4", 0xa)
for ctl in ("quad_perm:[1,0,3,2]", "quad_perm:[2,3,0,1]"):
    for t in range(4): dpp("v_add_f32", 64+t, 64+t, 64+t, ctl)
SC = (128 ** -0.5) * math.log2(math.e)
for t in range(4): a("v_mul_f32 v%d, 0x%x, v%d" % (64+t, f2u(SC * 2.0**-20), 64+t))
a("v_cvt_pk_bf16_f32 v68, v64, v65\nv_cvt_pk_bf16_f32 v69, v66, v67")
a("ds_bpermute_b32 v68, v3, v68\nds_bpermute_b32 v69, v3, v69")
a("v_lshlrev_b32 v1, 3, v2\ns_lshl_b32 s50, s49, 7\ns_add_u32 s50, s50, %d\ns_mov_b64 exec, 0xffff\ns_barrier\ns_waitcnt lgkmcnt(0)" % QA)
a("v_xor_b32 v68, v68, v48\nv_xor_b32 v69, v69, v49\nbuffer_store_dwordx2 v[68:69], v1, %s, s50 offen sc1" % WS)
execall()
st(3)
a("s_branch L_wtail2")
a("L_wtail:")
tailsetup()
a("s_barrier\nL_wtail2:\ns_barrier")
for k in range(opt["dly"]): a("s_sleep 8")
st(4)
if opt["nb"]:
    a("s_cmp_lt_u32 s3, %d\ns_cbranch_scc0 L_nockt\nbuffer_load_dword v61, v58, %s, s86 offen\nL_nockt:" % (opt["nb"], srd("ckv")))
TK = opt["tk"]
for n in range(2):
    for mi, b in enumerate(("wg", "wu")):
        a("buffer_load_dwordx4 %s, v10, %s, s61 offen offset:%d" % (vr(128+8*n+4*mi), srd(b), n*2752))
        if 2*n + mi < TK: a("s_waitcnt vmcnt(0)")
OWN = []
for n in range(2):
    for u in range(2): OWN.append(("s_add_u32 s58, s58, %d\n" % (16*8192) if (n, u) == (1, 0) else "") + "buffer_load_dwordx4 %s, v50, %s, s58 offen offset:%d %s" % (vr(192+8*n+4*u), srd("wuv"), u*128, NTW))
for n in range(2): OWN.append("buffer_load_dwordx4 %s, v52, %s, s60 offen offset:%d" % (vr(224+4*n), srd("wd"), n*1024))
for n in range(4): OWN.append("buffer_load_dwordx4 %s, v51, %s, s59 offen offset:%d" % (vr(208+4*n), srd("wo"), n*1024))
T2 = opt["t2"]; OWN1 = OWN[:len(OWN)-T2]; OWN2 = OWN[len(OWN)-T2:]
a("s_lshl_b32 s50, s3, 6\ns_add_u32 s50, s50, %d\nv_lshl_add_u32 v1, v8, 3, s50\nds_read_b64 v[32:33], v1\ns_barrier" % L_XN)
for k, l in enumerate(OWN1):
    a(l)
    if 4 + k < TK: a("s_waitcnt vmcnt(0)")
a("s_waitcnt lgkmcnt(0)")
selA(64, 32, 16); selA(68, 33, 16)
a("s_waitcnt vmcnt(%d)" % len(OWN1))
for n in range(2):
    for mi in range(2): mfma(72+4*mi, 64+4*n, 128+8*n+4*mi, "0" if n == 0 else None)
a("s_cmp_eq_u32 s44, 1\ns_cbranch_scc0 L_noqd\ns_lshl_b32 s50, s49, 2\ns_add_u32 s50, s50, %d\nv_mov_b32 v70, s46\ns_mov_b64 exec, 1\nbuffer_store_dword v70, v3, %s, s50 offen sc1\ns_mov_b64 exec, -1\nL_noqd:\ns_nop 7" % (QD, WS))
def comb(x, y):
    for r in range(4): a("v_permlane32_swap_b32 v%d, v%d" % (x+r, y+r))
    for r in range(4): dpp("v_add_f32", x+r, y+r, x+r, "row_ror:8")
def sum8(base):
    for p in range(8): a("ds_read_b64 v[%d:%d], v53 offset:%d" % (32+2*p, 33+2*p, base + p*512))
    a("s_waitcnt lgkmcnt(0)")
    for stp in (8, 4, 2):
        for e in range(stp): a("v_add_f32 v%d, v%d, v%d" % (32+e, 32+e, 32+stp+e))
comb(72, 76)
setexec(0x00ff00ff, 0x00ff00ff)
a("ds_write_b128 v57, v[72:75] offset:%d" % L_FP); execall()
a("s_cmp_eq_u32 s3, 5\ns_waitcnt lgkmcnt(0)\ns_barrier\ns_cbranch_scc0 L_nogup")
sum8(L_FP)
a("s_lshl_b32 s50, s90, 9\ns_add_u32 s50, s50, s84\nbuffer_store_dwordx2 v[32:33], v53, %s, s50 offen sc1\nL_nogup:" % WS)
st(5)
BULK = "\n".join("buffer_load_dwordx4 %s, v7, %s, s%d offen sc1" % (vr(96+4*n), WS, 80+n) for n in range(4))
GULD = "\n".join("buffer_load_dword v%d, v1, %s, s84 offen offset:%d sc1" % (40+k, WS, 256*k) for k in range(8))
a("s_cmp_eq_u32 s3, 3\ns_cbranch_scc1 L_mlpoll\ns_barrier")
st(6)
a(BULK)
a("s_branch L_mljoin\nL_mlpoll:\nv_lshlrev_b32 v5, 10, v2\nv_lshlrev_b32 v1, 2, v2\ns_waitcnt vmcnt(%d)" % opt["mlpos"])
L = loop_head("ml")
a("buffer_load_dwordx4 v[28:31], v5, %s, s55 offen sc1\nbuffer_load_dwordx4 v[32:35], v5, %s, s55 offen offset:512 sc1\ns_waitcnt vmcnt(0)" % (WS, WS))
a("v_xor_b32 v30, s46, v30\nv_xor_b32 v31, s46, v31\nv_xor_b32 v34, s46, v34\nv_xor_b32 v35, s46, v35\nv_or_b32 v30, v30, v31\nv_or3_b32 v30, v30, v34, v35\nv_cmp_ne_u32 vcc, 0, v30")
retry(L)
cnt(1)
a(GULD)
a("s_barrier")
st(6)
a(BULK)
a("v_max_f32 v5, v28, v32")
allred("v_max_f32", 5, 6)
a("v_sub_f32 v28, v28, v5\nv_sub_f32 v32, v32, v5\nv_exp_f32 v28, v28\nv_exp_f32 v32, v32")
a("v_cvt_pk_bf16_f32 v30, v28, v28\nv_cvt_pk_bf16_f32 v31, v32, v32\nds_write_b64 v53, v[30:31] offset:%d" % L_WT)
a("v_and_b32 v28, 0xffff0000, v30\nv_and_b32 v32, 0xffff0000, v31\nv_mul_f32 v28, v28, v29\nv_fmac_f32 v28, v32, v33")
allred("v_add_f32", 28, 6)
a("v_rcp_f32 v28, v28\nds_write_b32 v53, v28 offset:%d" % (L_WT + 512))
a("s_mov_b32 s48, 0\ns_waitcnt vmcnt(4)\nL_guw:")
for stp in (4, 2):
    for e in range(stp): a("v_add_f32 v%d, v%d, v%d" % (40+e, 40+e, 40+stp+e))
rbf(40); rbf(41)
a("v_mul_f32 v40, v40, v41\nv_cmp_u_f32 vcc, v40, v40")
cold.append("L_gure:\n" + GULD + "\ns_waitcnt vmcnt(0)\ns_branch L_guw")
retry("L_gure")
cnt(0)
a("v_cvt_pk_bf16_f32 v40, v40, v40\nds_write_b32 v1, v40 offset:%d\ns_waitcnt lgkmcnt(0)" % L_HV)
a("L_mljoin:\ns_barrier")
a("ds_read_b128 v[32:35], v54 offset:%d\nds_read_b32 v28, v54 offset:%d\nds_read_b64 v[36:37], v55 offset:%d" % (L_WT, L_WT + 512, L_HV))
a("s_mov_b32 s54, 0x40004000\ns_mov_b32 s48, 0\ns_mov_b64 s[88:89], -1\ns_waitcnt lgkmcnt(0)")
st(7)
for n in range(4): selA(64+4*n, 32+n, 16)
selA(112, 36, 24); selA(116, 37, 24)
for l in OWN2: a(l)
a("s_waitcnt vmcnt(%d)\nL_pt:" % T2)
for n in range(4):
    for k in range(4): a("v_xor_b32 v%d, v%d, v%d" % (96+4*n+k, 96+4*n+k, 20+k))
    if n: mfma(80, 64+4*(n-1), 96+4*(n-1), "0" if n == 1 else None)
a("v_or_b32 v5, v96, v97")
mfma(80, 76, 108)
for r in range(2, 16, 2): a("v_or3_b32 v5, v5, v%d, v%d" % (96+r, 97+r))
a("v_and_b32 v5, s54, v5\nv_cmp_ne_u32 vcc, 0, v5\ns_and_b64 vcc, vcc, s[88:89]\ns_cbranch_vccnz L_ptslow\nL_ptok:")
cold.append("L_ptslow:\ns_add_u32 s48, s48, 1\ns_cmp_ge_u32 s48, %d\ns_cbranch_scc1 L_ptok\n" % SPIN +
  "s_cmp_lt_u32 s48, 8\ns_cbranch_scc1 L_ptre\n" +
  "s_lshl_b32 s50, s43, 2\ns_and_b32 s51, s3, 3\ns_lshl_b32 s51, s51, 10\ns_add_u32 s50, s50, s51\ns_add_u32 s50, s50, %d\n" % DF +
  "v_and_b32 v5, 31, v2\nv_lshlrev_b32 v5, 5, v5\nbuffer_load_dword v5, v5, %s, s50 offen sc1\ns_waitcnt vmcnt(0)\nv_cmp_ne_u32 vcc, s46, v5\n" % WS +
  "s_cmp_eq_u64 vcc, 0\ns_cselect_b64 s[88:89], 0, -1\nL_ptre:\n" + BULK + "\ns_waitcnt vmcnt(0)\ns_branch L_pt")
cnt(2); st(8)
setexec(0x00ff00ff, 0xff00ff00)
a("ds_write_b128 v56, v[80:83] offset:%d" % L_R1); execall()
a("s_waitcnt lgkmcnt(0)\ns_barrier")
for p in range(8): a("ds_read_b64 v[%d:%d], v4 offset:%d" % (32+2*p, 33+2*p, L_R1 + p*256))
a("s_waitcnt lgkmcnt(0)")
for stp in (8, 4, 2):
    for e in range(stp): a("v_add_f32 v%d, v%d, v%d" % (32+e, 32+e, 32+stp+e))
a("v_mul_f32 v32, v32, v28\nv_mul_f32 v33, v33, v28\nv_cvt_pk_bf16_f32 v32, v32, v32\nv_cvt_pk_bf16_f32 v33, v33, v33")
for n in range(2): selA(64+4*n, 32+n, 16)
for n in range(2):
    for u in range(2): mfma(84+4*u, 64+4*n, 192+8*n+4*u, "0" if n == 0 else None)
a("v_lshrrev_b32 v5, 1, v2\nv_lshlrev_b32 v5, 6, v5\nv_and_b32 v6, 1, v2\nv_lshl_add_u32 v5, v6, 3, v5\ns_lshl_b32 s50, s42, 11\ns_lshl_b32 s51, s90, 4\ns_add_u32 s50, s50, s51\ns_add_u32 s50, s50, %d\ns_xor_b32 s51, s50, 0x%x" % (H4, H4X))
comb(84, 88)
setexec(0x00ff00ff, 0x00ff00ff)
a("ds_write_b128 v57, v[84:87] offset:%d" % L_DP); execall()
a("s_cmp_eq_u32 s3, 0\ns_waitcnt lgkmcnt(0)\ns_barrier\ns_cbranch_scc0 L_nopub4")
sum8(L_DP)
a("buffer_store_dwordx2 v[32:33], v5, %s, s51 offen" % WS)
a("L_nopub4:")
st(9)
a("buffer_load_dwordx4 v[36:39], v62, %s, s85 offen sc1" % WS)
a("s_mov_b32 s48, 0\ns_waitcnt vmcnt(1)")
mfma(92, 112, 224, "0"); mfma(92, 116, 228)
a("L_h4w:\ns_waitcnt vmcnt(0)")
for ctl in ("quad_perm:[1,0,3,2]", "quad_perm:[2,3,0,1]"):
    for v in range(36, 40): dpp("v_add_f32", v, v, v, ctl)
a("v_cmp_u_f32 vcc, v36, v37\nv_cmp_u_f32 s[88:89], v38, v39\ns_or_b64 vcc, vcc, s[88:89]")
PUB4G = "s_cmp_eq_u32 s3, 0\ns_cbranch_scc0 %s\nbuffer_store_dwordx2 v[32:33], v5, " + WS + ", s50 offen sc1\n%s:"
cold.append("L_h4:\ns_cmp_eq_u32 s48, %d\ns_cbranch_scc0 L_h4b\n" % (8 if opt["loc4"] else 1) + PUB4G % ("L_h4b", "L_h4b") + "\nbuffer_load_dwordx4 v[36:39], v62, %s, s85 offen sc1\ns_branch L_h4w" % WS)
retry("L_h4", (85, H4X))
cnt(3); st(10)
for n in range(4): a("v_cvt_pk_bf16_f32 v%d, v%d, v%d" % (36+n, 36+n, 36+n))
for n in range(4):
    selA(64+4*n, 36+n, 24)
    if n: mfma(92, 64+4*(n-1), 208+4*(n-1))
mfma(92, 76, 220)
a(PUB4G % ("L_h4c", "L_h4c"))
a("s_lshl_b32 s50, s90, 5\ns_add_u32 s50, s50, s42\ns_lshl_b32 s50, s50, 9\ns_add_u32 s50, s50, %d\ns_mov_b32 exec_hi, 0\ns_nop 2" % H5)
a("ds_write_b128 v63, v[92:95] offset:%d" % L_EP); execall()
a("s_cmp_eq_u32 s3, 1\ns_waitcnt lgkmcnt(0)\ns_barrier\ns_cbranch_scc0 L_nopub5")
sum8(L_EP)
a("buffer_store_dwordx2 v[32:33], v53, %s, s50 offen sc1" % WS)
st(11)
a("s_branch L_fin")
a("L_nopub5:\ns_cmp_eq_u32 s3, 2\ns_cbranch_scc0 L_fin\ns_lshr_b32 s53, s40, 1\ns_cmp_eq_u32 s53, s90\ns_cbranch_scc0 L_fin\ns_and_b32 s53, s42, 3\ns_cmp_lt_u32 s53, 2\ns_cbranch_scc0 L_fin")
a("s_and_b32 s51, s40, 1\ns_lshl1_add_u32 s51, s51, s53\ns_lshl_b32 s51, s51, 7\ns_lshl_b32 s50, s90, 14\ns_add_u32 s50, s50, s51\ns_add_u32 s50, s50, %d" % H5)
a("s_lshl1_add_u32 s52, s40, s53\ns_lshl_b32 s52, s52, 6\nv_lshlrev_b32 v5, 3, v9\nv_lshlrev_b32 v4, 11, v8\nv_lshl_add_u32 v4, v9, 4, v4")
a("buffer_load_dwordx2 v[30:31], v5, %s, s52 offen" % srd("x"))
L = loop_head("h5")
for n in range(4): a("buffer_load_dwordx4 %s, v4, %s, s50 offen offset:%d sc1" % (vr(32+4*n), WS, n*512))
a("s_waitcnt vmcnt(0)")
for stp in (8, 4):
    for e in range(stp): a("v_add_f32 v%d, v%d, v%d" % (32+e, 32+e, 32+stp+e))
a("v_cmp_u_f32 vcc, v32, v33\nv_cmp_u_f32 s[88:89], v34, v35\ns_or_b64 vcc, vcc, s[88:89]")
retry(L)
a("v_permlane32_swap_b32 v32, v34\nv_permlane32_swap_b32 v33, v35\nv_add_f32 v32, v32, v34\nv_add_f32 v33, v33, v35\nv_permlane16_swap_b32 v32, v33\nv_add_f32 v32, v32, v33")
dpp("v_add_f32", 32, 32, 32, "row_ror:8")
a("v_cmp_gt_u32 vcc, 32, v2\nv_cndmask_b32 v30, v31, v30, vcc\nv_and_b32 v6, 16, v2\nv_lshrrev_b32 v30, v6, v30\nv_lshlrev_b32 v30, 16, v30\nv_add_f32 v32, v32, v30\nv_cvt_pk_bf16_f32 v32, v32, v32\nv_lshl_add_u32 v5, v11, 1, v5")
setexec(0x00ff00ff, 0x00ff00ff)
a("buffer_store_short v32, v5, %s, s52 offen" % srd("out"))
cnt(0); st(11)
a("s_cmp_eq_u32 s42, 0\ns_cbranch_scc0 L_fin\ns_mov_b64 exec, 1\nv_mov_b32 v4, s46\nbuffer_store_dword v4, v3, %s, 0 offen" % WS)
a("s_branch L_fin")

a("L_attn:")
fmt("wuk"); fmt("ws"); stz()
a("""v_lshrrev_b32 v28, 1, v2
v_lshlrev_b32 v28, 13, v28
v_and_b32 v29, 1, v2
v_lshl_add_u32 v28, v29, 7, v28
s_lshl_b32 s53, s43, 1
s_add_u32 s53, s53, s3
s_add_u32 s53, s53, 1
s_lshl_b32 s53, s53, 18
s_add_u32 s53, s53, s51
s_cmp_lt_u32 s3, 3
s_waitcnt lgkmcnt(0)
s_barrier
s_load_dword s46, s[4:5], 0""")
if opt["tu"]: a("s_cbranch_scc0 L_notouch\nbuffer_load_dword v61, v28, %s, s53 offen\nL_notouch:" % srd("wuk"))
KSH, KSTEP = ((13, 0x100000), (17, 8192))[opt["kmap"]]
def asetup():
    fmt("ckv")
    a("s_lshl_b32 s44, s40, 4\ns_lshr_b32 s50, s41, 1\ns_add_u32 s44, s44, s50\ns_lshl_b32 s54, s3, 5\nv_xor_b32 v58, s54, v3")
    a("s_lshl_b32 s50, s44, %d\ns_lshl_b32 s52, s3, 10\ns_add_u32 s50, s50, s52" % KSH)
DMA = "s_mov_b32 m0, s52\ns_addk_i32 s52, 8192\nbuffer_load_dwordx4 v58, %s, s50 offen %s lds\ns_add_u32 s50, s50, %d" % (srd("ckv"), NT, KSTEP)
asetup()
for n in range(opt["pre"]): a(DMA)
if opt["hold"]: a("s_waitcnt vmcnt(%d)" % opt["pre"])
a("s_waitcnt lgkmcnt(0)\ns_add_u32 s46, s46, 1\ns_barrier\ns_branch L_attn1\nL_attn0:")
asetup()
for n in range(opt["pre"]): a(DMA)
a("L_attn1:")
st(1)
NSTAR = opt["nstar"]
assert NSTAR >= 10
def ard(dst, s, base=4): a("ds_read_b128 %s, v%d offset:%d" % (vr(dst), base + (s&3), (s>>2)*256))
def trrd(ks, t, T):
    v = 192 + ks*16 + t*4 + T*2
    a("ds_read_b64_tr_b16 v[%d:%d], v%d offset:%d" % (v, v+1, (36, 40)[T] + t, ks*16384))
QLD = "\n".join("buffer_load_dwordx4 %s, v3, %s, s%d offen sc1" % (vr(64+4*k), WS, 80+k) for k in range(4))
for n in range(opt["pre"], 17):
    if n == 4:
        a("s_and_b32 s45, s3, 1\ns_lshr_b32 s55, s3, 1\nv_and_b32 v9, 7, v2")
        a("s_lshl_b32 s80, s3, 10\ns_add_u32 s80, s80, %d\ns_add_u32 s81, s80, 0x2000\ns_add_u32 s82, s81, 0x2000\ns_add_u32 s83, s82, 0x2000" % QA)
        a("s_lshl_b32 s61, s44, 9\ns_lshl_b32 s51, s45, 8\ns_add_u32 s61, s61, s51\ns_add_u32 s61, s61, %d\ns_cmp_eq_u32 s55, 0\ns_cbranch_scc0 L_nomlp" % ML)
        a("v_mov_b32 v36, 0\nv_mov_b32 v37, 0\nv_mov_b32 v38, 0\nv_mov_b32 v39, -1\ns_mov_b64 exec, 0xffff\nbuffer_store_dwordx4 v[36:39], v3, %s, s61 offen sc1\ns_mov_b64 exec, -1\nL_nomlp:" % WS)
    if n == 5:
        tagmasks(20, 28); tagmasks2(46, 28)
    if n == 6:
        a("v_lshlrev_b32 v29, 1, v9\nv_lshlrev_b32 v30, 10, v12")
        for k in range(4): a("v_add_u32 v%d, %d, v11\nv_xor_b32 v%d, v%d, v29\nv_lshl_add_u32 v%d, v%d, 4, v30" % (4+k, 4*k, 4+k, 4+k, 4+k, 4+k))
        a("s_lshl_b32 s56, s55, 14\ns_lshl_b32 s53, s45, 14\ns_add_u32 s53, s53, %d" % L_Q)
        for k in range(4): a("v_add_u32 v%d, s53, v%d\nv_add_u32 v%d, s56, v%d" % (32+k, 4+k, 4+k, 4+k))
    if n == 7:
        a("v_lshrrev_b32 v29, 2, v2\nv_lshlrev_b32 v30, 10, v29\nv_and_b32 v31, 3, v2\nv_lshl_add_u32 v30, v31, 3, v30\ns_lshl_b32 s56, s55, 8\nv_add_u32 v30, s56, v30\nv_and_b32 v29, 7, v29\ns_lshl_b32 s56, s45, 2\nv_xor_b32 v29, s56, v29")
        for t in range(4): a("v_xor_b32 v%d, %d, v29\nv_lshl_add_u32 v%d, v%d, 5, v30\nv_add_u32 v%d, 0x10000, v%d" % (36+t, t, 36+t, 36+t, 40+t, 36+t))
    if n == 8:
        a("s_lshl_b32 s56, s45, 8\ns_add_u32 s56, s56, %d\nv_lshl_add_u32 v31, v12, 4, s56\ns_lshl_b32 s56, s55, 2\nv_add_u32 v30, s56, v31" % L_MX)
        a("s_lshl_b32 s56, s45, 12\ns_add_u32 s56, s56, %d\nv_add_u32 v53, s56, v3\nv_xor_b32 v54, 0x1000, v53\ns_lshl_b32 s56, s55, 10\nv_add_u32 v52, s56, v53" % L_PX)
        a("s_lshl_b32 s56, s3, 10\ns_add_u32 s56, s56, %d\nv_add_u32 v55, s56, v58\nv_lshlrev_b32 v56, 3, v2" % L_Q)
        a("s_lshl_b32 s84, s44, 15\ns_lshl_b32 s56, s3, 12\ns_add_u32 s84, s84, s56\ns_lshl_b32 s56, s45, 11\ns_add_u32 s84, s84, s56\ns_add_u32 s84, s84, %d\ns_xor_b32 s85, s84, 0x800" % PART)
        for k in range(4): a("v_mov_b32 v%d, 0x3f803f80" % (48+k))
    if n == 9:
        ptr("wo"); ptr("wd"); fmt("wo")
        a("""s_cmp_lt_u32 s40, 3
s_cselect_b32 s56, 6, 5
s_cselect_b32 s57, 0, 12
s_mul_i32 s51, s42, s56
s_add_u32 s57, s57, s51
s_lshl_b32 s57, s57, 3
s_sub_u32 s57, s57, 128
s_lshl_b32 s56, s56, 3
s_add_u32 s56, s56, 128
s_min_u32 s56, s56, %d
s_lshl_b32 s51, s42, 7
s_cmp_lt_u32 s3, 4
s_cselect_b32 s57, s51, s57
s_waitcnt lgkmcnt(0)
s_cselect_b64 s[28:29], s[28:29], s[92:93]
s_cselect_b32 s30, s30, %d
s_lshl_b32 s51, s3, 5
v_lshrrev_b32 v28, 1, v2
v_add_u32 v28, s51, v28
v_cmp_gt_u32 vcc, s56, v28
v_add_u32 v28, s57, v28
v_lshlrev_b32 v28, 10, v28
v_and_b32 v29, 1, v2
v_lshl_add_u32 v28, v29, 7, v28
v_bfrev_b32 v29, 1
v_cndmask_b32 v57, v29, v28, vcc
s_lshl_b32 s86, s43, 7""" % (32*opt["ta"], SIZES["wd"]))
    if n == NSTAR:
        st(2); a(QLD)
        a("s_waitcnt vmcnt(%d)\ns_barrier" % (NSTAR - 8 + 4))
        for s in range(16): ard(128+4*s, s)
        for ks in range(4):
            for t in range(4): trrd(ks, t, 0)
        for k in range(4): a("v_add_u32 v%d, 0x10000, v%d" % (4+k, 4+k))
    if n < 16:
        a("s_waitcnt vmcnt(%d)" % (WIN-1 if n < NSTAR else WIN+1))
        a(DMA)
TA = 1 if opt["ta"] else 0
st(3)
a("s_mov_b32 s54, 0x40004000\ns_mov_b32 s48, 0\ns_mov_b64 s[88:89], -1\ns_mov_b32 s59, 0x%x\ns_waitcnt vmcnt(%d)\nL_qchk:" % (f2u(2.0**20), 16 - NSTAR))
for k in range(4):
    for e in range(4): a("v_xor_b32 v%d, v%d, v%d" % (64+4*k+e, 64+4*k+e, 20+e))
    a("ds_write_b128 v55, %s offset:%d" % (vr(64+4*k), 8192*k))
a("v_or_b32 v28, v64, v65")
for r in range(2, 16, 2): a("v_or3_b32 v28, v28, v%d, v%d" % (64+r, 65+r))
a("v_and_b32 v28, s54, v28\nv_cmp_ne_u32 vcc, 0, v28\ns_and_b64 vcc, vcc, s[88:89]\ns_cbranch_vccnz L_qslow\nL_qok:")
cold.append("L_qslow:\ns_add_u32 s48, s48, 1\ns_cmp_ge_u32 s48, %d\ns_cbranch_scc1 L_qok\ns_cmp_lt_u32 s48, 8\ns_cbranch_scc1 L_qre\n" % SPIN +
  "s_mov_b32 s51, %d\nbuffer_load_dwordx4 v[80:83], v3, %s, s51 offen sc1\ns_waitcnt vmcnt(0)\n" % (QD, WS) +
  "v_xor_b32 v80, s46, v80\nv_xor_b32 v81, s46, v81\nv_xor_b32 v82, s46, v82\nv_xor_b32 v83, s46, v83\nv_or_b32 v80, v80, v81\nv_or3_b32 v80, v80, v82, v83\nv_cmp_ne_u32 vcc, 0, v80\n" +
  "s_cmp_eq_u64 vcc, 0\ns_cselect_b64 s[88:89], 0, -1\nL_qre:\ns_waitcnt lgkmcnt(0)\n" + QLD + "\ns_waitcnt vmcnt(0)\ns_branch L_qchk")
cnt(0)
a("s_waitcnt vmcnt(4) lgkmcnt(0)\ns_barrier")
if TA: a("buffer_load_dword v61, v57, %s, s86 offen" % srd("wo"))
st(4)
for s in range(8): ard(64+4*s, s, 32)
for s in range(16):
    a("s_waitcnt lgkmcnt(%d)" % min(7, 15-s))
    mfma(16, 128+4*s, 64+4*s, "0" if s == 0 else None)
    if s < 8: ard(96+4*s, s+8, 32)
st(5)
if opt["asym"]: a("s_cmp_lt_u32 s3, 4\ns_cbranch_scc1 L_qk1\ns_setprio 1")
a("s_waitcnt vmcnt(%d)\ns_barrier\nL_qk1:" % TA)
st(6)
for s in range(8): ard(128+4*s, s)
for s in range(16):
    a("s_waitcnt lgkmcnt(%d)" % min(7, 15-s))
    mfma(24, 128+4*s, 64+4*s, "0" if s == 0 else None)
    if s < 8: ard(160+4*s, s+8)
    if s == 8: a("v_max3_f32 v28, v16, v17, v18\nv_max_f32 v28, v28, v19")
LATE = [(ks, t, 1) for ks in range(4) for t in range(4)]
for x in LATE[:6]: trrd(*x)
a("v_max3_f32 v28, v28, v24, v25\nv_max3_f32 v28, v28, v26, v27")
xrow("v_max_f32", 28, 29)
if opt["asym"]: a("s_cmp_lt_u32 s3, 4\ns_cbranch_scc0 L_qk1d\ns_waitcnt vmcnt(%d)\ns_barrier\nL_qk1d:\ns_setprio 0" % TA)
a("ds_write_b32 v30, v28\ns_waitcnt lgkmcnt(0)\ns_barrier\nds_read_b128 v[32:35], v31")
st(7)
for x in LATE[6:]: trrd(*x)
a("v_mov_b32 v29, 0x%x\ns_waitcnt lgkmcnt(10)\nv_max3_f32 v28, v32, v33, v34\nv_max_f32 v28, v28, v35\nv_fma_f32 v28, v28, s59, v29" % f2u(20.0))
for r in (16,17,18,19,24,25,26,27): a("v_fma_f32 v%d, v%d, s59, -v28\nv_exp_f32 v%d, v%d" % (r, r, r, r))
for k, r in enumerate((16,18,24,26)): a("v_cvt_pk_bf16_f32 v%d, v%d, v%d" % (32+k, r, r+1))
a("ds_write_b128 v52, v[32:35]\ns_waitcnt lgkmcnt(0)\ns_barrier")
for b in range(2):
    for ks in range(4): a("ds_read_b128 %s, v%d offset:%d" % (vr(64+16*b+4*ks), 53+b, ks*1024))
st(8)
a("s_cmp_eq_u32 s55, 0\ns_cbranch_scc0 L_noml\ns_waitcnt lgkmcnt(4)")
for ks in range(4): mfma(24, 48, 64+4*ks, "0" if ks == 0 else None)
a("L_noml:")
def epi(b, r):
    o = 128 + 8*b + 2*r
    return ["v_cvt_pk_bf16_f32 v%d, v%d, v%d" % (o, 96+16*b+r, 100+16*b+r), "v_cvt_pk_bf16_f32 v%d, v%d, v%d" % (o+1, 104+16*b+r, 108+16*b+r),
            "v_xor_b32 v%d, v%d, v46" % (o, o), "v_xor_b32 v%d, v%d, v47" % (o+1, o+1),
            "buffer_store_dwordx2 v[%d:%d], v56, %s, s%d offen offset:%d sc1" % (o, o+1, WS, 84+b, r*512)]
fill = sum((epi(0, r) for r in range(4)), [])
for b in range(2):
    for ks in range(4):
        a("s_waitcnt lgkmcnt(%d)" % (7 - 4*b - ks))
        for t in range(4):
            mfma(96+16*b+4*t, 64+16*b+4*ks, 192+16*ks+4*t, "0" if ks == 0 else None)
            if b == 1 and 4*ks + t >= 3:
                for _ in range(2):
                    if fill: a(fill.pop(0))
        if b == 0 and ks == 1:
            a("s_cbranch_scc0 L_noml2\nv_mov_b32 v30, s46\nv_mov_b32 v31, s46\nv_mov_b32 v29, v24\ns_mov_b64 exec, 0xffff\nbuffer_store_dwordx4 v[28:31], v3, %s, s61 offen sc1\ns_mov_b64 exec, -1\nL_noml2:" % WS)
st(9)
for r in range(4):
    for l in epi(1, r): a(l)
st(10)
a("s_lshl_b32 s50, s44, 5\ns_lshl_b32 s51, s3, 2\ns_add_u32 s50, s50, s51\ns_add_u32 s50, s50, %d\nv_mov_b32 v4, s46\ns_waitcnt vmcnt(0)" % DF)
a("s_mov_b64 exec, 1\nbuffer_store_dword v4, v3, %s, s50 offen sc1" % WS)
st(11)
a("L_fin:")
if opt["stamps"]:
    execall()
    write_stamps(a, 16, 4, 2, 3, 8)
a("L_end:\ns_endpgm")
for c in cold: a(c)
a("L_codeend:\n.fill (16384 + 256 - (L_codeend - %s))/4, 4, 0xbf800000" % K)
body = hazard.fix(a.text(), False)
open(sys.argv[1], "w").write(finish(["grid=(256,1,1) block=(512,1,1) lds=163840"], body, [descriptor(K, 256, 102, 256)]))
```

```python
import sys, re
from asmlib import *
import hazard
src, dst, k, typ = sys.argv[1], sys.argv[2], int(sys.argv[3]), int(sys.argv[4])
s = open(src).read()
K = NAME + "_kernel"
s = s.replace(K, "main_kernel")
m = re.search(r"; @launch (grid=.*)\n", s)
s = s.replace(m.group(0), "; @launch kernel=main_kernel %s\n; @launch kernel=probe_kernel grid=(1,1,1) block=(64,1,1) lds=0\n" % m.group(1))
a = Asm()
kernel_begin(a, "probe_kernel")
a("s_cmp_ge_u32 s2, 1\ns_cbranch_scc1 probe_end")
load_srd(a, 4, "ws")
a("v_lshlrev_b32 v1, 6, v0\ns_mov_b32 s10, %d\ns_waitcnt lgkmcnt(0)" % STAMP_OFF)
for n in range(32):
    a("buffer_load_dword v%d, v1, s[4:7], s10 offen\nbuffer_load_dword v%d, v1, s[4:7], s10 offen offset:%d\ns_add_u32 s10, s10, 4096" % (8+n, 48+n, 4*max(k,0)))
    if n == 15: a("s_waitcnt vmcnt(0)")
a("s_waitcnt vmcnt(0)\nv_mov_b32 v4, 0")
for n in range(1, 32): a("v_min_u32 v8, v8, v%d" % (8+n))
for n in range(32):
    if typ == 2 or (n & 1) == typ: a("v_max_u32 v4, v4, v%d" % (48+n))
for op, v in (("v_min_u32", 8), ("v_max_u32", 4)):
    for ror in (8,4,2,1): a("%s_dpp v%d, v%d, v%d row_ror:%d row_mask:0xf bank_mask:0xf" % (op, v, v, v, ror))
    for sw in ("v_permlane16_swap_b32", "v_permlane32_swap_b32"): a("v_mov_b32 v5, v%d\n%s v%d, v5\n%s v%d, v%d, v5" % (v, sw, v, op, v, v))
a("v_sub_u32 v8, v4, v8\nv_readfirstlane_b32 s12, v8\ns_min_u32 s12, s12, 10000\ns_mul_i32 s12, s12, %d" % (20 if k >= 0 else 0))
a("s_memrealtime s[14:15]\ns_waitcnt lgkmcnt(0)\nprobe_loop:\ns_memrealtime s[16:17]\ns_waitcnt lgkmcnt(0)\ns_sub_u32 s16, s16, s14\ns_cmp_lt_u32 s16, s12\ns_cbranch_scc1 probe_loop\nprobe_end:\ns_endpgm")
s = s.replace('.section .rodata,"a"\n', hazard.fix(a.text()) + '.section .rodata,"a"\n') + descriptor("probe_kernel")
open(dst, "w").write(s)
```

```python
import sys, math, struct
from asmlib import *
import hazard
def f2u(x): return struct.unpack("<I", struct.pack("<f", x))[0]
opt = dict(stamps=0, smask=0xfff, spin=1<<16, nt="nt", ntw="nt", win=4, nsig=16, ksig=12, tk=0, kmap=0, tu=1, pre=1, hold=0, mlpos=0,
           loc1=1, loc4=1, dly=0, noplain=0, h1k=16, cyc=0, qwin=3, k0=5, qpf=4, walk=0, fill=1, ta=0, tapos=0, mlat=0, epos=20, prog=1)
for x in sys.argv[2:]:
    k, v = x.split("=")
    assert k in opt, k
    opt[k] = v if k.startswith("nt") else int(v, 0)
NT = opt["nt"]; NTW = opt["ntw"]; SPIN = opt["spin"]; WIN = opt["win"]

QA = 0x40000; QD = 0x50000; DF = 0x58000; ML = 0x60000; GU = 0x70000; SG = 0xA0000; H4 = 0x80000; H4X = 0x10000; H5 = 0xC0000; PART = 0x100000
Q1 = 0x600000; Q1X = 0x20000
L_Q = 131072; L_MX = L_Q; L_PX = L_Q + 8192; L_XN = L_Q
L_FP = 0; L_R1 = 8192; L_DP = 12288; L_EP = 16384; L_WT = 20480; L_HV = 22528
S = dict(ws=4, x=8, ckv=12, wq=16, wuk=20, wuv=24, wo=28, wg=32, wu=36, wd=92, out=96)
def srd(b): return "s[%d:%d]" % (S[b], S[b]+3)
WS = srd("ws")
a = Asm(); K = NAME + "_kernel"
cold = []

def st(k):
    if opt["stamps"] and (opt["smask"] >> k) & 1: a("s_memrealtime s[62:63]\ns_waitcnt lgkmcnt(0)\ns_mov_b32 s%d, s62" % (64+k))
def cnt(k):
    if opt["stamps"]: a("s_mov_b32 s%d, s48" % (76+k))
def stz():
    if opt["stamps"]:
        for k in range(2, 16): a("s_mov_b32 s%d, 0" % (64+k))
stubs = {"A": [], "B": []}
def stub(kind, dead=False):
    if opt["walk"]:
        n = len(stubs[kind]); stubs[kind].append(n)
        if dead: a("WK%s%d:\ns_branch WK%s%d" % (kind, n, kind, n+1))
        else: a("WK%s%d:\ns_cmp_eq_u32 s100, 1\ns_cbranch_scc1 WK%s%d" % (kind, n, kind, n+1))
def walk(kind, wave):
    if opt["walk"]: a("s_cmp_eq_u32 s3, %d\ns_cbranch_scc0 L_nowalk%s\ns_mov_b32 s100, 1\ns_branch WK%s0\nL_walked%s:\ns_mov_b32 s100, 0\nL_nowalk%s:" % (wave, kind, kind, kind, kind))
def ptr(b): a("s_load_dwordx2 s[%d:%d], s[0:1], %d" % (S[b], S[b]+1, KOFF[b]))
def fmt(b): a("s_mov_b32 s%d, %d\ns_mov_b32 s%d, 0x20000" % (S[b]+2, SIZES[b], S[b]+3))
def vr(v, n=4): return "v[%d:%d]" % (v, v+n-1)
def mfma(d, A, B, c=None):
    a("v_mfma_f32_16x16x32_bf16 %s, %s, %s, %s" % (vr(d), vr(A), vr(B), vr(d) if c is None else c))
def selA(dst, src, vm):
    for r in range(4): a("v_and_b32 v%d, v%d, v%d" % (dst+r, src, vm+r))
def dpp(op, d, s0, s1, ctl, bank=0xf):
    a("%s_dpp v%d, v%d, v%d %s row_mask:0xf bank_mask:0x%x" % (op, d, s0, s1, ctl, bank))
def xrow(op, v, t):
    for sw in ("v_permlane16_swap_b32", "v_permlane32_swap_b32"):
        a("v_mov_b32 v%d, v%d\n%s v%d, v%d\n%s v%d, v%d, v%d" % (t, v, sw, v, t, op, v, v, t))
def allred(op, v, t):
    for ror in (8,4,2,1): dpp(op, v, v, v, "row_ror:%d" % ror)
    xrow(op, v, t)
def red8(op, regs):
    for ctl in ("quad_perm:[1,0,3,2]", "quad_perm:[2,3,0,1]", "row_half_mirror"):
        for v in regs: dpp(op, v, v, v, ctl)
def rbf(v): a("v_cvt_pk_bf16_f32 v%d, v%d, v%d\nv_and_b32 v%d, 0xffff0000, v%d" % (v, v, v, v, v))
def setexec(lo, hi): a("s_mov_b32 exec_lo, 0x%x\ns_mov_b32 exec_hi, 0x%x" % (lo, hi))
def execall(): a("s_mov_b64 exec, -1")
def loop_head(name):
    L = a.label(name); a("s_mov_b32 s48, 0\n%s:" % L); return L
def retry(L, flip=None, lim=None, after=12):
    R = a.label("rt"); D = a.label("ok")
    a("s_cbranch_vccnz %s\n%s:" % (R, D))
    fl = ""
    if flip: fl = "s_cmp_ge_u32 s48, %d\ns_cselect_b32 s87, 0x%x, 0\ns_xor_b32 s%d, s%d, s87\n" % (after, flip[1], flip[0], flip[0])
    cold.append("%s:\ns_add_u32 s48, s48, 1\n%ss_cmp_lt_u32 s48, %d\ns_cbranch_scc1 %s\ns_branch %s" % (R, fl, lim or SPIN, L, D))
def tagmasks(vm, t):
    a("v_mul_u32_u24 v%d, 33, v9\nv_add_u32 v%d, s46, v%d" % (t, t, t))
    for k in range(4):
        a("v_bfe_u32 v%d, v%d, %d, 1\nv_lshlrev_b32 v%d, 14, v%d" % (vm+k, t, 2*k, vm+k, vm+k))
        a("v_bfe_u32 v%d, v%d, %d, 1\nv_lshl_or_b32 v%d, v%d, 30, v%d" % (t+1, t, 2*k+1, vm+k, t+1, vm+k))
def tagmasks2(vm, t):
    a("v_lshrrev_b32 v%d, 1, v12\nv_mul_u32_u24 v%d, 33, v%d\nv_add_u32 v%d, s46, v%d\nv_and_b32 v%d, 1, v2\nv_lshlrev_b32 v%d, 2, v%d\nv_lshrrev_b32 v%d, v%d, v%d" % (t, t, t, t, t, t+1, t+1, t+1, t, t+1, t))
    for k in range(2):
        a("v_bfe_u32 v%d, v%d, %d, 1\nv_lshlrev_b32 v%d, 14, v%d" % (vm+k, t, 2*k, vm+k, vm+k))
        a("v_bfe_u32 v%d, v%d, %d, 1\nv_lshl_or_b32 v%d, v%d, 30, v%d" % (t+1, t, 2*k+1, vm+k, t+1, vm+k))
def masks(vm, t):
    a("v_lshrrev_b32 v8, 3, v2\nv_and_b32 v9, 7, v2")
    a("v_and_b32 v%d, 1, v2\nv_cmp_eq_u32 vcc, 1, v%d\nv_mov_b32 v%d, 0xffff\nv_mov_b32 v%d, 0xffff0000\nv_cndmask_b32 v%d, v%d, v%d, vcc\nv_bfe_u32 v%d, v2, 1, 2" % (t, t, t, vm, t, t, vm, vm+3))
    for r in range(4): a("v_cmp_eq_u32 vcc, %d, v%d\nv_cndmask_b32 v%d, 0, v%d, vcc" % (r, vm+3, vm+r, t))

def units():
    a("s_lshr_b32 s90, s43, 1\ns_cmp_lt_u32 s40, 3\ns_cselect_b32 s56, 6, 5\ns_cselect_b32 s57, 0, 12\ns_mul_i32 s51, s42, s56\ns_add_u32 s57, s57, s51")
def mask4(dst, src):
    a("v_cmp_gt_u32 vcc, 8, v12")
    for r in range(4): a("v_cndmask_b32 v%d, 0, v%d, vcc" % (dst+r, src+r))
def sum8(base):
    for p in range(8): a("ds_read_b64 v[%d:%d], v53 offset:%d" % (32+2*p, 33+2*p, base + p*512))
    a("s_waitcnt lgkmcnt(0)")
    for stp in (8, 4, 2):
        for e in range(stp): a("v_add_f32 v%d, v%d, v%d" % (32+e, 32+e, 32+stp+e))
def tailsetup():
    for b in ("wuv","wg","wu"): ptr(b)
    for b in ("wuv","wg","wu"): fmt(b)
    tagmasks(20, 4)
    mask4(24, 16)
    units()
    a("""s_and_b32 s87, s3, 3
v_and_b32 v50, 3, v8
v_lshlrev_b32 v50, 5, v50
v_lshrrev_b32 v5, 2, v8
v_add_u32 v50, v50, v5
v_lshlrev_b32 v50, 13, v50
v_lshl_add_u32 v50, v9, 4, v50
v_mul_u32_u24 v10, 5504, v8
v_lshl_add_u32 v10, v9, 4, v10
v_bfrev_b32 v5, 1
v_cmp_gt_u32 vcc, s56, v9
v_cndmask_b32 v10, v5, v10, vcc
s_lshl_b32 s50, s90, 7
s_lshl_b32 s51, s45, 3
s_add_u32 s50, s50, s51
s_lshl_b32 s51, s87, 1
s_add_u32 s50, s50, s51
s_lshl_b32 s50, s50, 13
s_lshl_b32 s51, s42, 8
s_add_u32 s58, s50, s51
s_lshl3_add_u32 s50, s90, s3
s_mul_i32 s50, s50, %d
s_lshl_b32 s51, s57, 4
s_add_u32 s61, s50, s51
s_lshl_b32 s50, s90, 13
s_lshr_b32 s53, s42, 4
s_lshl_b32 s53, s53, 12
s_add_u32 s50, s50, s53
s_and_b32 s53, s42, 3
s_lshl_b32 s53, s53, 10
s_add_u32 s50, s50, s53
s_bfe_u32 s53, s42, 0x20002
s_lshl_b32 s53, s53, 8
s_add_u32 s50, s50, s53
s_lshl_b32 s53, s3, 19
s_add_u32 s50, s50, s53
s_add_u32 s80, s50, %d
s_add_u32 s81, s80, 0x8000
s_add_u32 s82, s81, 0x8000
s_add_u32 s83, s82, 0x8000
v_lshlrev_b32 v7, 17, v11
v_lshl_add_u32 v7, v12, 4, v7
s_lshl_b32 s50, s42, 11
s_lshl_b32 s51, s90, 9
s_add_u32 s84, s50, s51
s_add_u32 s84, s84, %d
s_lshl_b32 s51, s90, 4
s_add_u32 s85, s50, s51
s_add_u32 s85, s85, %d
s_xor_b32 s86, s85, 0x%x
v_lshrrev_b32 v62, 1, v2
v_lshlrev_b32 v62, 6, v62
v_and_b32 v6, 1, v2
v_lshl_add_u32 v62, v6, 3, v62
s_lshl_b32 s55, s42, 4
s_lshl_b32 s51, s3, 13
s_add_u32 s55, s55, s51
s_add_u32 s55, s55, %d
v_lshl_add_u32 v54, v11, 2, v12
s_lshl_b32 s53, s3, 7
v_lshl_add_u32 v55, v54, 3, s53
v_lshlrev_b32 v54, 9, v54
v_lshlrev_b32 v53, 3, v2
v_and_b32 v59, 1, v11
v_lshlrev_b32 v59, 4, v59
v_lshl_add_u32 v59, v9, 5, v59
v_lshrrev_b32 v6, 5, v2
v_lshl_add_u32 v59, v6, 8, v59
s_lshl_b32 s53, s3, 9
v_add_u32 v57, s53, v59
v_lshlrev_b32 v63, 5, v12
v_lshl_add_u32 v63, v11, 4, v63
v_add_u32 v63, s53, v63
s_lshl_b32 s53, s3, 6
v_lshl_add_u32 v4, v8, 3, s53
s_waitcnt lgkmcnt(0)""" % (16*2752, PART, GU, H4, H4X, ML))

kernel_begin(a, K)
a("s_cmpk_ge_u32 s2, 256\ns_cbranch_scc1 L_end")
if opt["stamps"]: a("s_memrealtime s[64:65]")
for b in ("x","wq","ws","wuk","ckv"): ptr(b)
a("""v_lshrrev_b32 v1, 6, v0
v_and_b32 v2, 63, v0
v_readfirstlane_b32 s3, v1
s_lshr_b32 s41, s2, 3
s_mov_b32 s100, 0
s_cmp_lg_u32 s3, 3
s_cbranch_scc1 L_e1
s_getpc_b64 s[50:51]
s_lshl_b32 s52, s41, 9
v_lshl_add_u32 v1, v2, 7, s52
s_mov_b64 exec, 15
global_load_dword v60, v1, s[50:51]
s_mov_b64 exec, -1
L_e1:
s_and_b32 s40, s2, 7
s_lshr_b32 s42, s41, 3
s_lshl_b32 s43, s40, 2
s_add_u32 s42, s42, s43
s_and_b32 s43, s41, 6
s_lshl_b32 s51, s42, 8
v_lshlrev_b32 v3, 4, v2
v_lshrrev_b32 v11, 4, v2
v_and_b32 v12, 15, v2
v_lshlrev_b32 v10, 17, v11
v_lshl_add_u32 v10, v12, 4, v10
s_and_b32 s91, s41, 1
s_cmp_eq_u32 s3, 0
s_cbranch_scc0 L_notw0""")
fmt("x"); fmt("wq")
a("s_xor_b32 s45, s91, 1\ns_add_u32 s45, s45, s43\ns_lshl_b32 s50, s45, 19\ns_add_u32 s50, s50, s51\ns_lshl_b32 s52, s43, 7\nv_lshlrev_b32 v1, 1, v2\ns_waitcnt lgkmcnt(0)")
a("buffer_load_dwordx4 v[4:7], v3, %s, 0 offen" % srd("x"))
a("buffer_load_ushort v13, v1, %s, s52 offen\nbuffer_load_ushort v14, v1, %s, s52 offen offset:128" % (srd("x"), srd("x")))
for t in range(16):
    a("buffer_load_dwordx4 %s, v10, %s, s50 offen %s" % (vr(128+4*t), srd("wq"), NTW))
    if t < 15: a("s_addk_i32 s50, 8192")
fmt("ws")
a("s_lshl_b32 s50, s42, 3\ns_add_u32 s50, s50, s45\ns_lshl_b32 s50, s50, 9\ns_add_u32 s50, s50, %d\ns_mov_b32 exec_hi, 0\nv_mov_b32 v28, -1\nv_mov_b32 v29, 0\nv_mov_b32 v30, -1\nv_mov_b32 v31, 0" % (Q1 + Q1X))
a("buffer_store_dwordx4 v[28:31], v3, %s, s50 offen" % WS); execall()
a("s_barrier")
stz(); st(1)
a("s_load_dword s46, s[4:5], 0")
masks(16, 1)
a("v_cmp_gt_u32 vcc, 8, v12")
for r in range(4): a("v_cndmask_b32 v%d, 0, v%d, vcc" % (24+r, 16+r))
a("s_waitcnt vmcnt(17)")
vf = 32
for k in range(4): a("v_lshlrev_b32 v%d, 16, v%d\nv_and_b32 v%d, 0xffff0000, v%d" % (vf+2*k, 4+k, vf+2*k+1, 4+k))
a("v_add_f32 v40, v32, v33\nv_add_f32 v41, v34, v35\nv_add_f32 v42, v36, v37\nv_add_f32 v43, v38, v39\nv_add_f32 v40, v40, v41\nv_add_f32 v42, v42, v43\nv_add_f32 v40, v40, v42")
allred("v_add_f32", 40, 41)
a("v_mul_f32 v40, 0x%x, v40" % f2u(1/512))
for k in range(8): a("v_sub_f32 v%d, v%d, v40" % (vf+k, vf+k))
a("v_mul_f32 v42, v32, v32")
for k in range(1, 8): a("v_fmac_f32 v42, v%d, v%d" % (vf+k, vf+k))
allred("v_add_f32", 42, 41)
a("v_mul_f32 v42, 0x%x, v42" % f2u(1/512))
rbf(42); rbf(40)
a("v_add_f32 v42, 0x%x, v42" % f2u(1e-5)); rbf(42)
a("v_sqrt_f32 v42, v42\nv_lshlrev_b32 v13, 16, v13\nv_sub_f32 v13, v13, v40\nv_lshlrev_b32 v14, 16, v14\nv_sub_f32 v14, v14, v40"); rbf(42)
a("v_rcp_f32 v43, v42"); rbf(13); rbf(14)
for v in (13, 14): a("v_mul_f32 v41, v%d, v43\nv_fma_f32 v%d, -v41, v42, v%d\nv_fma_f32 v%d, v%d, v43, v41\nv_cvt_pk_bf16_f32 v%d, v%d, v%d" % ((v,)*8))
a("v_lshlrev_b32 v1, 2, v2\nv_add_u32 v1, %d, v1\nds_write2st64_b32 v1, v13, v14 offset1:1" % L_XN)
a("s_and_b32 s55, s45, 1\ns_lshl_b32 s55, s55, 8\ns_add_u32 s55, s55, %d\nv_lshl_add_u32 v1, v11, 6, s55" % L_XN)
for q in range(4): a("ds_read_b128 %s, v1 offset:%d" % (vr(32+4*q), 16*q))
a("v_lshlrev_b32 v1, 5, v12\nv_lshl_add_u32 v1, v11, 4, v1\ns_xor_b32 s52, s50, 0x%x" % Q1X)
a("s_waitcnt lgkmcnt(0)\ns_add_u32 s46, s46, 1\ns_and_b32 s47, s46, 0xff\nv_mov_b32 v13, s47\ns_movk_i32 s51, 0xff")
st(2)
for t in range(16):
    selA(64+4*(t&1), 32+t, 24)
    a("s_waitcnt vmcnt(%d)" % (16-t))
    mfma(28, 64+4*(t&1), 128+4*t, "0" if t == 0 else None)
for r in range(4): a("v_bfi_b32 v%d, s51, v13, v%d" % (28+r, 28+r))
setexec(0xffffffff, 0)
a("buffer_store_dwordx4 v[28:31], v1, %s, s50 offen" % WS)
a("buffer_store_dwordx4 v[28:31], v1, %s, s52 offen sc1" % WS)
execall()
a("s_barrier")
st(3)
a("s_cmp_eq_u32 s91, 0\ns_cbranch_scc1 L_attn0\ns_mov_b32 s44, 0\ns_mov_b32 s45, 0\ns_lshl_b32 s49, s42, 3\ns_add_u32 s49, s49, s43\ns_branch L_wtail")
a("L_notw0:\ns_cmp_eq_u32 s91, 0\ns_cbranch_scc1 L_attn")
a("""s_lshr_b32 s45, s3, 2
s_add_u32 s43, s43, s45
s_lshl1_add_u32 s44, s45, s3
s_and_b32 s44, s44, 3
s_lshl_b32 s50, s43, 19
s_add_u32 s50, s50, s51
s_lshl_b32 s49, s42, 3
s_add_u32 s49, s49, s43""")
fmt("ws"); fmt("wuk"); stz()
a("s_cmp_eq_u32 s3, 1\ns_waitcnt lgkmcnt(0)\ns_barrier\ns_load_dword s46, s[4:5], 0\ns_cbranch_scc0 L_noearly")
def wukloads(vo=10, so=50):
    for t in range(16):
        a("buffer_load_dwordx4 %s, v%d, %s, s%d offen" % (vr(128+4*t), vo, srd("wuk"), so))
        if t < 15: a("s_addk_i32 s%d, 8192" % so)
wukloads()
a("L_noearly:\nv_and_b32 v24, 31, v2\nv_lshrrev_b32 v25, 5, v2\nv_lshlrev_b32 v26, 6, v24\nv_lshl_add_u32 v26, v25, 16, v26\ns_cmp_eq_u32 s3, 2\ns_cbranch_scc0 L_noclr")
for r in range(4): a("v_mov_b32 v%d, -1" % (20+r))
a("""s_lshl_b32 s53, s42, 11
s_lshl_b32 s54, s43, 3
s_add_u32 s54, s54, s53
s_add_u32 s54, s54, %d
buffer_store_dwordx4 v[20:23], v26, %s, s54 offen sc1
s_lshl_b32 s55, s43, 8
s_add_u32 s53, s53, s55
s_add_u32 s53, s53, %d
s_lshl_b32 s55, s43, 4
s_add_u32 s55, s55, s42
s_lshl_b32 s55, s55, 9
s_add_u32 s55, s55, %d
s_sub_u32 s55, s55, s53
v_mul_lo_u32 v25, v25, s55
v_lshl_add_u32 v25, v24, 4, v25
buffer_store_dwordx4 v[20:23], v25, %s, s53 offen sc1""" % (H4, WS, GU, H5, WS))
a("L_noclr:")
masks(16, 1)
a("s_waitcnt lgkmcnt(0)\ns_add_u32 s46, s46, 1\ns_and_b32 s47, s46, 0xff")
a("v_lshlrev_b32 v1, 10, v11\nv_lshl_add_u32 v1, v12, 5, v1\ns_lshl_b32 s52, s42, 12\ns_add_u32 s52, s52, %d" % (Q1 + Q1X*opt["loc1"]))
a("s_cmp_eq_u32 s44, 1\ns_cbranch_scc1 L_stageb")
walk("B", 4)
a("s_barrier")
a("s_cmp_eq_u32 s3, 2\ns_cbranch_scc0 L_wtail\ns_waitcnt vmcnt(0)\ns_mov_b32 exec_lo, 0\nbuffer_store_dwordx4 v[20:23], v26, %s, s54 offen\ns_mov_b64 exec, -1\ns_branch L_wtail" % WS)
a("L_stageb:\nv_mov_b32 v15, v10\ns_mov_b32 s91, s50")
tailsetup()
tagmasks2(48, 5)
a("s_cmp_eq_u32 s3, 1\ns_barrier\ns_cbranch_scc1 L_wukdone")
wukloads(15, 91)
a("L_wukdone:\ns_waitcnt vmcnt(%d)" % opt["h1k"])
st(1)
L = loop_head("h1")
for n in range(4): a("buffer_load_dwordx4 %s, v1, %s, s52 offen offset:%d sc1" % (vr(32+4*n), WS, (n>>1)*512 + (n&1)*16))
stub("B")
a("s_waitcnt vmcnt(0)")
for r in range(16): a("v_xor_b32 v%d, s47, v%d" % (32+r, 32+r))
a("v_or_b32 v5, v32, v33")
for r in range(2, 16, 2): a("v_or3_b32 v5, v5, v%d, v%d" % (32+r, 33+r))
a("v_and_b32 v5, 0xff, v5\nv_cmp_ne_u32 vcc, 0, v5")
retry(L, (52, Q1X))
st(2); cnt(0)
for e in range(8): a("v_add_f32 v%d, v%d, v%d" % (32+e, 32+e, 40+e))
for e in range(4): a("v_permlane32_swap_b32 v%d, v%d" % (32+e, 36+e))
for e in range(4): a("v_add_f32 v%d, v%d, v%d" % (32+e, 32+e, 36+e))
for e in range(2): a("v_permlane16_swap_b32 v%d, v%d" % (32+e, 34+e))
for e in range(2): a("v_add_f32 v%d, v%d, v%d" % (32+e, 32+e, 34+e))
a("v_cvt_pk_bf16_f32 v40, v32, v33\nv_cvt_pk_bf16_f32 v41, v32, v33\nv_permlane16_swap_b32 v40, v41")
a("v_mov_b32 v42, v40\nv_mov_b32 v43, v41\nv_permlane32_swap_b32 v40, v42\nv_permlane32_swap_b32 v41, v43")
for t in range(16): a("v_dot2_f32_bf16 v%d, v%d, v40, 0" % (64+t, 128+4*t))
for k in range(1, 4):
    for t in range(16): a("v_dot2c_f32_bf16 v%d, v%d, v%d" % (64+t, 128+4*t+k, 40+k))
for t in range(8): dpp("v_add_f32", 64+t, 64+t, 64+t, "row_ror:8", 0x3)
for t in range(8): dpp("v_add_f32", 64+t, 72+t, 72+t, "row_ror:8", 0xc)
for t in range(4): dpp("v_add_f32", 64+t, 64+t, 64+t, "row_shl:4", 0x5)
for t in range(4): dpp("v_add_f32", 64+t, 68+t, 68+t, "row_shr:4", 0xa)
for ctl in ("quad_perm:[1,0,3,2]", "quad_perm:[2,3,0,1]"):
    for t in range(4): dpp("v_add_f32", 64+t, 64+t, 64+t, ctl)
SC = (128 ** -0.5) * math.log2(math.e)
for t in range(4): a("v_mul_f32 v%d, 0x%x, v%d" % (64+t, f2u(SC * 2.0**-20), 64+t))
a("v_cvt_pk_bf16_f32 v68, v64, v65\nv_cvt_pk_bf16_f32 v69, v66, v67")
a("ds_bpermute_b32 v68, v3, v68\nds_bpermute_b32 v69, v3, v69")
a("v_lshlrev_b32 v1, 3, v2\ns_lshl_b32 s50, s49, 7\ns_add_u32 s50, s50, %d\ns_mov_b64 exec, 0xffff\ns_barrier\ns_waitcnt lgkmcnt(0)" % QA)
a("v_xor_b32 v68, v68, v48\nv_xor_b32 v69, v69, v49\nbuffer_store_dwordx2 v[68:69], v1, %s, s50 offen sc1" % WS)
execall()
st(3)
a("s_branch L_wtail2")
stub("B", True)
a("L_wtail:")
tailsetup()
a("s_barrier")
if opt["nsig"]:
    a("s_cmp_eq_u32 s3, 3\ns_cbranch_scc0 L_wtail2\ns_lshl_b32 s50, s40, 7\ns_add_u32 s50, s50, %d\nv_lshlrev_b32 v5, 2, v12\ns_movk_i32 s48, 24" % SG)
    a("L_sg:\nbuffer_load_dword v6, v5, %s, s50 offen sc1\ns_sub_u32 s48, s48, 1\ns_cbranch_scc1 L_wtail2\ns_waitcnt vmcnt(0)\nv_cmp_eq_u32 vcc, s46, v6\ns_bcnt1_i32_b64 s51, vcc\ns_cmp_lt_u32 s51, %d\ns_cbranch_scc1 L_sg" % (WS, 4*opt["ksig"]))
a("L_wtail2:")
stub("B")
a("s_barrier")
for k in range(opt["dly"]): a("s_sleep 8")
st(4)
TK = opt["tk"]
for n in range(2):
    for mi, b in enumerate(("wg", "wu")):
        a("buffer_load_dwordx4 %s, v10, %s, s61 offen offset:%d" % (vr(128+8*n+4*mi), srd(b), n*2752))
        if 2*n + mi < TK: a("s_waitcnt vmcnt(0)")
OWN = []
for n in range(2):
    for u in range(2): OWN.append(("s_add_u32 s58, s58, %d\n" % (16*8192) if (n, u) == (1, 0) else "") + "buffer_load_dwordx4 %s, v50, %s, s58 offen offset:%d %s" % (vr(192+8*n+4*u), srd("wuv"), u*128, NTW))
OWN1 = OWN
a("s_lshl_b32 s50, s3, 6\ns_add_u32 s50, s50, %d\nv_lshl_add_u32 v1, v8, 3, s50\nds_read_b64 v[32:33], v1\ns_barrier" % L_XN)
for k, l in enumerate(OWN1):
    a(l)
    if 4 + k < TK: a("s_waitcnt vmcnt(0)")
a("s_waitcnt lgkmcnt(0)")
selA(64, 32, 16); selA(68, 33, 16)
a("s_waitcnt vmcnt(%d)" % len(OWN1))
for n in range(2):
    for mi in range(2): mfma(72+4*mi, 64+4*n, 128+8*n+4*mi, "0" if n == 0 else None)
a("s_cmp_eq_u32 s44, 1\ns_cbranch_scc0 L_noqd\ns_lshl_b32 s50, s49, 2\ns_add_u32 s50, s50, %d\nv_mov_b32 v70, s46\ns_mov_b64 exec, 1\nbuffer_store_dword v70, v3, %s, s50 offen sc1\ns_mov_b64 exec, -1\nL_noqd:\ns_nop 7" % (QD, WS))
def comb(x, y):
    for r in range(4): a("v_permlane32_swap_b32 v%d, v%d" % (x+r, y+r))
    for r in range(4): dpp("v_add_f32", x+r, y+r, x+r, "row_ror:8")
comb(72, 76)
setexec(0x00ff00ff, 0x00ff00ff)
a("ds_write_b128 v57, v[72:75] offset:%d" % L_FP); execall()
a("s_cmp_eq_u32 s3, 5\ns_waitcnt lgkmcnt(0)\ns_barrier\ns_cbranch_scc0 L_nogup")
sum8(L_FP)
a("buffer_store_dwordx2 v[32:33], v53, %s, s84 offen sc1\nL_nogup:" % WS)
st(5)
BULK = "\n".join("buffer_load_dwordx4 %s, v7, %s, s%d offen sc1" % (vr(96+4*n), WS, 80+n) for n in range(4))
a("s_mov_b32 s52, 0x000f000f\ns_mov_b32 s53, s52\ns_mov_b32 s60, 0x00010001\ns_mov_b32 s61, s60\ns_mov_b32 s59, 0xffff\ns_mov_b32 s48, 0\ns_waitcnt vmcnt(%d)" % opt["mlpos"])
st(6)
a("L_ml:\ns_mov_b64 exec, s[52:53]\nbuffer_load_dwordx4 v[28:31], v54, %s, s55 offen sc1\ns_add_u32 s48, s48, 1\ns_cmp_ge_u32 s48, %d\ns_cselect_b64 s[50:51], s[52:53], 0\ns_waitcnt vmcnt(0)" % (WS, SPIN))
a("v_cmp_eq_u32 vcc, s46, v30\nv_cmp_eq_u32 s[88:89], s46, v31\ns_and_b64 vcc, vcc, s[88:89]\ns_or_b64 vcc, vcc, s[50:51]\ns_cbranch_vccz L_ml")
if opt["prog"]:
    for n in range(4):
        a("s_lshr_b64 s[50:51], vcc, %d\ns_and_b64 s[50:51], s[50:51], s[60:61]\ns_cbranch_scc0 L_mls%d\ns_mul_i32 exec_lo, s50, s59\ns_mul_i32 exec_hi, s51, s59" % (n, n))
        a("buffer_load_dwordx4 %s, v7, %s, s%d offen sc1\nL_mls%d:" % (vr(96+4*n), WS, 80+n, n))
a("s_andn2_b64 s[52:53], s[52:53], vcc\ns_cbranch_scc1 L_ml")
cnt(1)
setexec(0x000f000f, 0x000f000f)
a("ds_write_b64 v55, v[28:29] offset:%d\ns_mov_b64 exec, -1\ns_waitcnt lgkmcnt(0)\ns_barrier" % L_WT)
if not opt["prog"]: a(BULK)
a("ds_read_b128 v[32:35], v3 offset:%d\ns_mov_b32 s54, 0x40004000\ns_mov_b32 s48, 0\ns_mov_b64 s[88:89], -1\ns_waitcnt lgkmcnt(0)" % L_WT)
st(7)
a("v_max_f32 v5, v32, v34")
allred("v_max_f32", 5, 6)
a("v_sub_f32 v29, v28, v5\nv_sub_f32 v32, v32, v5\nv_sub_f32 v34, v34, v5\nv_exp_f32 v29, v29\nv_exp_f32 v32, v32\nv_exp_f32 v34, v34\nv_cvt_pk_bf16_f32 v29, v29, v29")
rbf(32); rbf(34)
a("v_mul_f32 v28, v32, v33\nv_fmac_f32 v28, v34, v35")
for n in range(4):
    for r in range(4): dpp("v_and_b32", 64+4*n+r, 29, 24+r, "row_newbcast:%d" % n)
    dpp("v_add_f32", 28, 28, 28, "row_ror:%d" % (8 >> n))
xrow("v_add_f32", 28, 6)
a("v_rcp_f32 v28, v28\ns_waitcnt vmcnt(0)\nL_pt:")
for n in range(4):
    for k in range(4): a("v_xor_b32 v%d, v%d, v%d" % (96+4*n+k, 96+4*n+k, 20+k))
    if n: mfma(80, 64+4*(n-1), 96+4*(n-1), "0" if n == 1 else None)
a("v_or_b32 v5, v96, v97")
mfma(80, 76, 108)
for r in range(2, 16, 2): a("v_or3_b32 v5, v5, v%d, v%d" % (96+r, 97+r))
a("v_and_b32 v5, s54, v5\nv_cmp_ne_u32 vcc, 0, v5\ns_and_b64 vcc, vcc, s[88:89]\ns_cbranch_vccnz L_ptslow\nL_ptok:")
cold.append("L_ptslow:\ns_add_u32 s48, s48, 1\ns_cmp_ge_u32 s48, %d\ns_cbranch_scc1 L_ptok\n" % SPIN +
  "s_cmp_lt_u32 s48, 8\ns_cbranch_scc1 L_ptre\n" +
  "s_lshl_b32 s50, s90, 2\ns_lshl_b32 s51, s3, 9\ns_add_u32 s50, s50, s51\ns_add_u32 s50, s50, %d\n" % DF +
  "v_lshlrev_b32 v5, 5, v12\nbuffer_load_dword v5, v5, %s, s50 offen sc1\ns_waitcnt vmcnt(0)\nv_cmp_ne_u32 vcc, s46, v5\n" % WS +
  "s_cmp_eq_u64 vcc, 0\ns_cselect_b64 s[88:89], 0, -1\nL_ptre:\n" + BULK + "\ns_waitcnt vmcnt(0)\ns_branch L_pt")
cnt(2); st(8)
a("s_mov_b32 exec_hi, 0\nds_write_b128 v63, v[80:83] offset:%d" % L_R1); execall()
a("s_waitcnt lgkmcnt(0)\ns_barrier")
for p in range(8): a("ds_read_b64 v[%d:%d], v4 offset:%d" % (32+2*p, 33+2*p, L_R1 + p*512))
a("s_waitcnt lgkmcnt(0)")
for stp in (8, 4, 2):
    for e in range(stp): a("v_add_f32 v%d, v%d, v%d" % (32+e, 32+e, 32+stp+e))
a("v_mul_f32 v32, v32, v28\nv_mul_f32 v33, v33, v28\nv_cvt_pk_bf16_f32 v32, v32, v32\nv_cvt_pk_bf16_f32 v33, v33, v33")
for n in range(2): selA(64+4*n, 32+n, 16)
for n in range(2):
    for u in range(2): mfma(84+4*u, 64+4*n, 192+8*n+4*u, "0" if n == 0 else None)
comb(84, 88)
setexec(0x00ff00ff, 0x00ff00ff)
a("ds_write_b128 v57, v[84:87] offset:%d" % L_DP); execall()
a("s_cmp_eq_u32 s3, 0\ns_waitcnt lgkmcnt(0)\ns_barrier\ns_cbranch_scc0 L_fin")
sum8(L_DP)
a("buffer_store_dwordx2 v[32:33], v62, %s, s86 offen\nbuffer_store_dwordx2 v[32:33], v62, %s, s85 offen sc1" % (WS, WS))
st(9)
a("s_branch L_fin")

a("L_attn:")
fmt("wuk"); fmt("ws"); stz()
a("""v_lshrrev_b32 v28, 1, v2
v_lshlrev_b32 v28, 13, v28
v_and_b32 v29, 1, v2
v_lshl_add_u32 v28, v29, 7, v28
s_lshl_b32 s53, s43, 1
s_add_u32 s53, s53, s3
s_add_u32 s53, s53, 1
s_lshl_b32 s53, s53, 18
s_add_u32 s53, s53, s51
s_cmp_lt_u32 s3, 3
s_waitcnt lgkmcnt(0)
s_barrier
s_load_dword s46, s[4:5], 0""")
if opt["tu"]: a("s_cbranch_scc0 L_notouch\nbuffer_load_dword v61, v28, %s, s53 offen\nL_notouch:" % srd("wuk"))
KSH, KSTEP = ((13, 0x100000), (17, 8192))[opt["kmap"]]
def asetup():
    fmt("ckv")
    a("s_lshl_b32 s44, s40, 4\ns_lshr_b32 s50, s41, 1\ns_add_u32 s44, s44, s50\ns_lshl_b32 s54, s3, 5\nv_xor_b32 v14, s54, v3")
    a("s_lshl_b32 s50, s44, %d\ns_lshl_b32 s52, s3, 10\ns_add_u32 s50, s50, s52" % KSH)
DMA = "s_mov_b32 m0, s52\ns_addk_i32 s52, 8192\nbuffer_load_dwordx4 v14, %s, s50 offen %s lds\ns_add_u32 s50, s50, %d\nv_xor_b32 v14, 16, v14" % (srd("ckv"), NT, KSTEP)
asetup()
for n in range(opt["pre"]): a(DMA)
a("s_movk_i32 s60, %d\ns_waitcnt lgkmcnt(0)\ns_add_u32 s46, s46, 1\ns_branch L_aset\nL_attn0:" % (16 - opt["pre"]))
asetup()
for n in range(opt["k0"]): a(DMA)
a("s_movk_i32 s60, %d" % (16 - opt["k0"]))
a("s_lshl_b32 s61, s44, 9\ns_add_u32 s61, s61, %d" % ML)
a("v_mov_b32 v36, 0\nv_mov_b32 v37, 0\nv_mov_b32 v38, 0\nv_mov_b32 v39, -1\ns_mov_b32 exec_hi, 0\nbuffer_store_dwordx4 v[36:39], v3, %s, s61 offen sc1\ns_mov_b64 exec, -1" % WS)
a("L_aset:\ns_and_b32 s55, s3, 3\nv_and_b32 v9, 7, v2\nv_lshrrev_b32 v8, 3, v2\nv_lshrrev_b32 v10, 5, v2")
a("s_lshl_b32 s51, s40, 6\ns_add_u32 s51, s51, s41\ns_lshl_b32 s51, s51, 1\ns_add_u32 s87, s51, %d\ns_lshl_b32 s61, s44, 9\ns_add_u32 s61, s61, %d" % (SG, ML))
a("v_lshlrev_b32 v7, 9, v11\nv_lshl_add_u32 v7, v12, 4, v7\nv_add_u32 v7, %d, v7" % L_PX)
if opt["ta"]:
    ptr("wo"); fmt("wo")
    a("v_lshrrev_b32 v13, 1, v2\nv_lshlrev_b32 v13, 12, v13\nv_and_b32 v29, 1, v2\nv_lshl_add_u32 v13, v29, 7, v13\ns_cmp_lt_u32 s55, %d\ns_cselect_b32 s56, 0, 0x80000000\nv_add_u32 v13, s56, v13" % opt["ta"])
    a("s_lshl_b32 s86, s42, 17\ns_sub_u32 s56, 3, s55\ns_lshl_b32 s56, s56, 10\ns_add_u32 s86, s86, s56\ns_lshl_b32 s56, s43, 7\ns_add_u32 s86, s86, s56\ns_waitcnt lgkmcnt(0)")
for b in ("wo","wd","out"): ptr(b)
for b in ("wo","wd","out","x"): fmt(b)
units()
a("""v_lshlrev_b32 v13, 12, v11
v_lshl_add_u32 v13, v12, 4, v13
v_lshlrev_b32 v15, 11, v11
v_lshl_add_u32 v15, v12, 4, v15
s_cmp_lt_u32 s3, s56
s_cselect_b32 s51, 0, 0x80000000
v_add_u32 v15, s51, v15
s_lshl_b32 s81, s42, 17
s_lshl_b32 s51, s3, 14
s_add_u32 s81, s81, s51
s_lshl_b32 s51, s90, 8
s_add_u32 s81, s81, s51
s_add_u32 s82, s57, s3
s_lshl_b32 s82, s82, 13
s_add_u32 s82, s82, s51
s_waitcnt lgkmcnt(0)""")
ELD = ["buffer_load_dwordx4 %s, v13, %s, s81 offen offset:%d %s" % (vr(128+4*n), srd("wo"), n*1024, NTW) for n in range(4)] + \
      ["buffer_load_dwordx4 %s, v15, %s, s82 offen offset:%d %s" % (vr(144+4*n), srd("wd"), n*1024, NTW) for n in range(2)]
a("s_cmp_lt_u32 s3, 4\ns_cbranch_scc0 L_pvset")
a("""v_and_b32 v28, 3, v2
v_bfe_u32 v29, v2, 2, 1
v_bfe_u32 v30, v2, 3, 1
v_lshl_add_u32 v31, v28, 1, v29
v_lshl_add_u32 v29, v31, 1, v30
v_lshl_add_u32 v31, v30, 3, v31
v_and_b32 v30, 16, v2
v_add_u32 v31, v31, v30
s_lshl_b32 s56, s55, 15
v_lshl_add_u32 v31, v31, 10, s56
v_xor_b32 v29, v29, v10""")
for k in range(8): a("v_xor_b32 v%d, %d, v29\nv_lshl_add_u32 v%d, v%d, 4, v31" % (16+k, 2*k, 16+k, 16+k))
a("v_xor_b32 v29, v2, v10")
for k in range(4): a("v_xor_b32 v%d, %d, v29\nv_lshlrev_b32 v%d, 4, v%d\nv_add_u32 v%d, %d, v%d" % (24+k, 2*k, 24+k, 24+k, 24+k, L_Q, 24+k))
a("v_and_b32 v5, 31, v2\nv_lshlrev_b32 v5, 4, v5\nv_add_u32 v5, %d, v5\ns_lshl_b32 s56, s55, 2\nv_add_u32 v4, s56, v5" % L_MX)
a("v_add_u32 v6, %d, v3\ns_lshl_b32 s56, s55, 11\nv_add_u32 v6, s56, v6\ns_mov_b32 s59, 0x%x\ns_branch L_setdone\nL_pvset:" % (L_PX, f2u(2.0**20)))
tagmasks(24, 28)
a("""v_bfe_u32 v28, v2, 2, 2
v_bfe_u32 v29, v2, 4, 1
v_lshl_add_u32 v29, v28, 1, v29
v_bfe_u32 v28, v2, 1, 1
v_lshl_add_u32 v30, v29, 1, v28
v_lshl_add_u32 v29, v10, 4, v29
v_and_b32 v31, 1, v2
v_lshlrev_b32 v31, 3, v31
v_lshl_add_u32 v31, v29, 10, v31
s_lshl_b32 s56, s55, 8
v_add_u32 v31, s56, v31""")
for t in range(8): a("v_xor_b32 v%d, %d, v30\nv_lshl_add_u32 v%d, v%d, 4, v31" % (16+t, 2*t, 16+t, 16+t))
a("""v_lshlrev_b32 v4, 10, v8
v_lshl_add_u32 v4, v9, 4, v4
s_lshl_b32 s80, s55, 13
s_add_u32 s80, s80, %d
v_xor_b32 v5, v8, v9
v_lshlrev_b32 v5, 4, v5
v_lshl_add_u32 v5, v9, 9, v5
s_lshl_b32 s56, s55, 7
s_add_u32 s56, s56, %d
v_add_u32 v5, s56, v5
s_lshl_b32 s84, s44, 15
s_lshl_b32 s56, s55, 13
s_add_u32 s84, s84, s56
s_add_u32 s84, s84, %d
s_add_u32 s85, s84, 0x1000
s_mov_b32 s54, 0x40004000
L_setdone:
s_cmp_eq_u32 s3, 7
s_cselect_b32 s57, %d, -1
s_cmp_eq_u32 s3, 0
s_cbranch_scc1 L_dma""" % (QA, L_Q, PART, 16 - opt["nsig"] if opt["nsig"] <= 16 else -1))
walk("A", 3)
if opt["hold"]: a("s_waitcnt vmcnt(%d)" % opt["pre"])
a("s_barrier")
SIG = "v_mov_b32 v1, s46\ns_mov_b64 exec, 1\nbuffer_store_dword v1, v3, %s, s87 offen\ns_mov_b64 exec, -1" % WS
def signal(): a("s_cmp_eq_u32 s3, 7\ns_cbranch_scc0 L_nosg\n" + SIG + "\nL_nosg:")
TOUCH = "buffer_load_dword v15, v13, %s, s86 offen" % srd("wo")
def mfma32(d, A, B, c=None):
    a("v_mfma_f32_32x32x16_bf16 %s, %s, %s, %s" % (vr(d, 16), vr(A), vr(B), vr(d, 16) if c is None else c))
a("L_dma:\ns_waitcnt vmcnt(%d)\n%s\ns_sub_u32 s60, s60, 1\ns_cmp_eq_u32 s60, s57\ns_cbranch_scc0 L_dmans\n%s\nL_dmans:\ns_cmp_lg_u32 s60, 0\ns_cbranch_scc1 L_dma" % (WIN-1, DMA, SIG))
a("s_cmp_lt_u32 s3, 4\ns_waitcnt vmcnt(%d)\ns_barrier\ns_cbranch_scc1 L_qkw" % min(4, opt["qwin"]))
def QLD(j): return "buffer_load_dwordx4 %s, v4, %s, s80 offen offset:%d sc1" % (vr(64+4*j), WS, 128*j)
def trrd(kb, T):
    for t in range(8):
        v = 128 + kb*32 + t*4 + T*2
        a("ds_read_b64_tr_b16 v[%d:%d], v%d offset:%d" % (v, v+1, 16+t, (kb&1)*32768 + T*8192))
def trx(x):
    for t in range(8): a("v_xor_b32 v%d, 0x%x, v%d" % (16+t, x, 16+t))
for j in range(8): a(QLD(j))
a("s_setprio 1")
st(3)
trrd(0, 0); trrd(1, 0)
TP = 1 if opt["ta"] and opt["tapos"] == 2 else 0
if TP: a(TOUCH)
trx(16); trrd(0, 1); trrd(1, 1); trx(0x10000); trrd(2, 1); trx(16); trrd(2, 0)
stub("A")
a("s_mov_b32 s48, 0\ns_mov_b64 s[88:89], -1")
for k in range(4):
    a("s_waitcnt vmcnt(%d)\nL_qchk%d:" % (6 - 2*k + TP, k))
    for j in (2*k, 2*k+1):
        for e in range(4): a("v_xor_b32 v%d, v%d, v%d" % (64+4*j+e, 64+4*j+e, 24+e))
        a("ds_write_b128 v5, %s offset:%d" % (vr(64+4*j), 4096*j))
    b = 64 + 8*k
    a("v_or_b32 v29, v%d, v%d\nv_or3_b32 v29, v29, v%d, v%d\nv_or3_b32 v29, v29, v%d, v%d\nv_or3_b32 v29, v29, v%d, v%d" % tuple(range(b, b+8)))
    a("v_and_b32 v29, s54, v29\nv_cmp_ne_u32 vcc, 0, v29\ns_and_b64 vcc, vcc, s[88:89]\ns_cbranch_vccnz L_qslow%d\nL_qok%d:" % (k, k))
    if k: a("s_waitcnt lgkmcnt(2)\ns_barrier")
    if k == 1:
        st(4)
        if opt["nsig"] == 17: signal()
    cold.append("L_qslow%d:\ns_movk_i32 s60, %d\ns_branch L_qslow\nL_qre%d:\n" % (k, k, k) + "\n".join(QLD(j) for j in range(2*k, 8)) + "\ns_waitcnt vmcnt(0)\ns_branch L_qchk%d" % k)
cold.append("L_qslow:\ns_add_u32 s48, s48, 1\ns_cmp_lt_u32 s48, 8\ns_cbranch_scc1 L_qre\n" +
  "s_mov_b32 s51, %d\nbuffer_load_dwordx4 v[96:99], v3, %s, s51 offen sc1\ns_waitcnt vmcnt(0)\n" % (QD, WS) +
  "v_xor_b32 v96, s46, v96\nv_xor_b32 v97, s46, v97\nv_xor_b32 v98, s46, v98\nv_xor_b32 v99, s46, v99\nv_or_b32 v96, v96, v97\nv_or3_b32 v96, v96, v98, v99\nv_cmp_ne_u32 vcc, 0, v96\n" +
  "s_cmp_eq_u64 vcc, 0\ns_cselect_b64 s[88:89], 0, -1\ns_cmp_ge_u32 s48, %d\ns_cselect_b64 s[88:89], 0, s[88:89]\nL_qre:\ns_waitcnt vmcnt(0) lgkmcnt(0)\n" % SPIN +
  "s_cmp_eq_u32 s60, 0\ns_cbranch_scc1 L_qre0\ns_cmp_eq_u32 s60, 1\ns_cbranch_scc1 L_qre1\ns_cmp_eq_u32 s60, 2\ns_cbranch_scc1 L_qre2\ns_branch L_qre3")
a("s_waitcnt lgkmcnt(0)\ns_barrier\ns_setprio 0")
cnt(0); st(5)
if opt["ta"] and opt["tapos"] == 0: a(TOUCH)
trrd(3, 0); trx(16); trrd(3, 1)
a("s_barrier")
if opt["nsig"] == 18: signal()
if opt["ta"] and opt["tapos"] == 3: a(TOUCH)
st(7)
a("s_waitcnt lgkmcnt(0)\ns_barrier")
for b in range(2):
    for kb in range(4): a("ds_read_b128 %s, v7 offset:%d" % (vr(32+16*b+4*kb), kb*2048 + b*256))
st(8)
def epi(b, r):
    o = (32, 64)[b] + 4*r; acc = 64 + 32*b
    return (["v_cvt_pk_bf16_f32 v%d, v%d, v%d" % (o+k, acc+8*k+r, acc+8*k+4+r) for k in range(4)] + ["v_xor_b32 v%d, v%d, v%d" % (o+k, o+k, 24+k) for k in range(4)] +
            ["buffer_store_dwordx4 %s, v3, %s, s%d offen offset:%d sc1" % (vr(o), WS, 84+b, r*1024)])
fill = sum((epi(0, r) for r in range(4)), [])
for b in range(2):
    for kb in range(4):
        if b == 0: a("s_waitcnt lgkmcnt(%d)" % (7 - kb if kb < 3 else 0))
        for t in range(8):
            mfma(64+32*b+4*t, 32+16*b+4*kb, 128+32*kb+4*t, "0" if kb == 0 else None)
            if (b, kb, t) == (0, 1, 4): stub("A")
            if opt["mlat"] and 32*b + 8*kb + t == opt["mlat"]: a("s_barrier")
            if b == 1 and 8*kb + t >= 5:
                for _ in range(2 if (t & 1 or not opt["fill"]) else 1):
                    if fill: a(fill.pop(0))
assert not fill
st(9)
for r in range(4):
    for l in epi(1, r): a(l)
st(10)
if opt["mlat"] >= 99: a("s_waitcnt vmcnt(%d)\ns_barrier" % (107 - opt["mlat"]))
a("s_barrier")
for l in ELD: a(l)
a("s_lshl_b32 s50, s44, 5\ns_lshl_b32 s51, s55, 2\ns_add_u32 s50, s50, s51\ns_add_u32 s50, s50, %d\nv_mov_b32 v4, s46\ns_waitcnt vmcnt(6)" % DF)
a("s_mov_b64 exec, 1\nbuffer_store_dword v4, v3, %s, s50 offen sc1\ns_mov_b64 exec, -1\ns_branch L_e" % WS)
def ard(s): a("ds_read_b128 %s, v%d offset:%d" % (vr(128+4*s), 16 + (s&7), (s>>3)*256))
def brd(s): a("ds_read_b128 %s, v%d offset:%d" % (vr(64+4*(s&7)), 24 + (s&3), s*1024))
def qkloop(late):
    q = []
    def lw(*xs):
        nonlocal q
        idx = [q.index(x) for x in xs if x in q]
        if idx:
            i = max(idx); a("s_waitcnt lgkmcnt(%d)" % (len(q) - 1 - i)); q = q[i+1:]
    a("s_waitcnt vmcnt(0) lgkmcnt(0)\ns_barrier")
    st(4)
    nb = 0; na = 0
    for s in range(opt["qpf"]):
        brd(s); q.append(("b", s)); nb += 1
        if late: ard(s); q.append(("a", s)); na += 1
    for s in range(32):
        lw(("b", s), ("a", s))
        mfma32(96, 128+4*s, 64+4*(s&7), "0" if s == 0 else None)
        if s % 8 == 8 - opt["qpf"] and s < 24: a("s_barrier")
        if nb < 32: brd(nb); q.append(("b", nb)); nb += 1
        if late and na < 32: ard(na); q.append(("a", na)); na += 1
        if 0 <= s - opt["epos"] < 6: a(ELD[s - opt["epos"]])
stub("A", True)
a("L_qkw:\ns_cmp_eq_u32 s3, 3\ns_cbranch_scc1 L_qklate")
for s in range(32): ard(s)
qkloop(False)
a("s_branch L_qkdone")
stub("A", True)
a("L_qklate:")
qkloop(True)
a("L_qkdone:")
stub("A")
a("v_mov_b32 v29, 0x%x\ns_nop %d" % (f2u(20.0), 7 if opt["walk"] else 9))
st(6)
a("v_max3_f32 v28, v96, v97, v98")
for r in range(99, 111, 2): a("v_max3_f32 v28, v28, v%d, v%d" % (r, r+1))
a("v_max_f32 v28, v28, v111\nv_mov_b32 v30, v28\nv_permlane32_swap_b32 v28, v30\nv_max_f32 v28, v28, v30")
a("ds_write_b32 v4, v28\ns_waitcnt lgkmcnt(0)\ns_barrier\nds_read_b128 v[32:35], v5")
st(7)
a("s_waitcnt lgkmcnt(0)\nv_max3_f32 v28, v32, v33, v34\nv_max_f32 v28, v28, v35\nv_fma_f32 v28, v28, s59, v29")
for u in range(2):
    for r in range(96+8*u, 104+8*u): a("v_fma_f32 v%d, v%d, s59, -v28\nv_exp_f32 v%d, v%d" % (r, r, r, r))
    for k in range(4): a("v_cvt_pk_bf16_f32 v%d, v%d, v%d" % (32+4*u+k, 96+8*u+2*k, 97+8*u+2*k))
    a("ds_write_b128 v6, %s offset:%d" % (vr(32+4*u), 1024*u))
a("s_cmp_lt_u32 s3, 2\ns_waitcnt lgkmcnt(0)\ns_barrier")
if opt["stamps"]: st(8); a("s_cmp_lt_u32 s3, 2")
a("s_cbranch_scc0 L_qkidle\ns_lshl_b32 s56, s3, 8\nv_add_u32 v7, s56, v7")
for kb in range(4): a("ds_read_b128 %s, v7 offset:%d" % (vr(32+4*kb), kb*2048))
for k in range(4): a("v_mov_b32 v%d, 0x3f803f80" % (48+k))
a("v_mov_b32 v30, s46\nv_mov_b32 v31, s46\ns_lshl_b32 s56, s3, 4\ns_lshl_b32 s56, 0xffff, s56\ns_waitcnt lgkmcnt(0)")
for kb in range(4): mfma(52, 48, 32+4*kb, "0" if kb == 0 else None)
if opt["mlat"]: a("s_barrier")
a("v_mov_b32 v29, v52\ns_mov_b32 exec_lo, s56\ns_mov_b32 exec_hi, 0\nbuffer_store_dwordx4 v[28:31], v3, %s, s61 offen sc1" % WS)
execall()
st(9)
if opt["mlat"]: a("s_branch L_qkend\nL_qkidle:\ns_barrier\nL_qkend:")
else: a("L_qkidle:")
a("s_cmp_eq_u32 s3, 2\ns_barrier\ns_cbranch_scc0 L_e")
a("s_lshl_b32 s50, s42, 11\ns_add_u32 s50, s50, %d\nv_lshlrev_b32 v1, 2, v2" % GU)
L = loop_head("gu")
for k in range(8): a("buffer_load_dword v%d, v1, %s, s50 offen offset:%d sc1" % (40+k, WS, 256*k))
a("s_waitcnt vmcnt(0)")
for stp in (4, 2):
    for e in range(stp): a("v_add_f32 v%d, v%d, v%d" % (40+e, 40+e, 40+stp+e))
rbf(40); rbf(41)
a("v_mul_f32 v40, v40, v41\nv_cmp_u_f32 vcc, v40, v40")
retry(L)
cnt(1)
a("v_cvt_pk_bf16_f32 v40, v40, v40\nds_write_b32 v1, v40 offset:%d" % L_HV)
a("L_e:")
masks(16, 1); mask4(24, 16)
a("""v_and_b32 v62, 3, v2
v_lshlrev_b32 v62, 4, v62
v_lshl_add_u32 v62, v11, 6, v62
s_lshl_b32 s85, s42, 11
s_lshl_b32 s51, s3, 8
s_add_u32 s85, s85, s51
s_add_u32 s85, s85, %d
v_lshlrev_b32 v53, 3, v2
s_lshl_b32 s53, s3, 5
v_lshl_add_u32 v55, v11, 3, s53
s_lshl_b32 s53, s3, 9
v_lshlrev_b32 v63, 5, v12
v_lshl_add_u32 v63, v11, 4, v63
v_add_u32 v63, s53, v63
s_lshl_b32 s50, s90, 5
s_add_u32 s50, s50, s42
s_lshl_b32 s50, s50, 9
s_add_u32 s50, s50, %d
s_waitcnt lgkmcnt(0)
s_barrier
ds_read_b64 v[36:37], v55 offset:%d
s_waitcnt vmcnt(0) lgkmcnt(0)""" % (H4 + H4X*opt["loc4"], H5, L_HV))
selA(64, 36, 24); selA(68, 37, 24)
mfma(92, 64, 144, "0"); mfma(92, 68, 148)
st(1)
L = loop_head("h4")
a("buffer_load_dwordx4 v[36:39], v62, %s, s85 offen sc1\ns_waitcnt vmcnt(0)" % WS)
a("v_cmp_u_f32 vcc, v36, v37\nv_cmp_u_f32 s[88:89], v38, v39\ns_or_b64 vcc, vcc, s[88:89]")
retry(L, (85, H4X), after=48)
cnt(3); st(2)
for ctl in ("quad_perm:[1,0,3,2]", "quad_perm:[2,3,0,1]"):
    for v in range(36, 40): dpp("v_add_f32", v, v, v, ctl)
for n in range(4): a("v_cvt_pk_bf16_f32 v%d, v%d, v%d" % (36+n, 36+n, 36+n))
for n in range(4):
    selA(64+4*n, 36+n, 24)
    if n: mfma(92, 64+4*(n-1), 128+4*(n-1))
mfma(92, 76, 140)
a("s_mov_b32 exec_hi, 0\nds_write_b128 v63, v[92:95] offset:%d" % L_EP); execall()
a("s_cmp_eq_u32 s3, 1\ns_waitcnt lgkmcnt(0)\ns_barrier\ns_cbranch_scc0 L_nopub5")
sum8(L_EP)
a("buffer_store_dwordx2 v[32:33], v53, %s, s50 offen sc1" % WS)
st(11)
a("s_branch L_fin")
a("L_nopub5:\ns_cmp_eq_u32 s3, 2\ns_cbranch_scc0 L_fin\ns_lshr_b32 s53, s40, 1\ns_cmp_eq_u32 s53, s90\ns_cbranch_scc0 L_fin\ns_and_b32 s53, s42, 3\ns_cmp_lt_u32 s53, 2\ns_cbranch_scc0 L_fin")
a("s_and_b32 s51, s40, 1\ns_lshl1_add_u32 s51, s51, s53\ns_lshl_b32 s51, s51, 7\ns_lshl_b32 s50, s90, 14\ns_add_u32 s50, s50, s51\ns_add_u32 s50, s50, %d" % H5)
a("s_lshl1_add_u32 s52, s40, s53\ns_lshl_b32 s52, s52, 6\nv_lshlrev_b32 v5, 3, v9\nv_lshlrev_b32 v4, 11, v8\nv_lshl_add_u32 v4, v9, 4, v4")
a("buffer_load_dwordx2 v[30:31], v5, %s, s52 offen" % srd("x"))
L = loop_head("h5")
for n in range(4): a("buffer_load_dwordx4 %s, v4, %s, s50 offen offset:%d sc1" % (vr(32+4*n), WS, n*512))
a("s_waitcnt vmcnt(0)")
for stp in (8, 4):
    for e in range(stp): a("v_add_f32 v%d, v%d, v%d" % (32+e, 32+e, 32+stp+e))
a("v_cmp_u_f32 vcc, v32, v33\nv_cmp_u_f32 s[88:89], v34, v35\ns_or_b64 vcc, vcc, s[88:89]")
retry(L)
a("v_permlane32_swap_b32 v32, v34\nv_permlane32_swap_b32 v33, v35\nv_add_f32 v32, v32, v34\nv_add_f32 v33, v33, v35\nv_permlane16_swap_b32 v32, v33\nv_add_f32 v32, v32, v33")
dpp("v_add_f32", 32, 32, 32, "row_ror:8")
a("v_cmp_gt_u32 vcc, 32, v2\nv_cndmask_b32 v30, v31, v30, vcc\nv_and_b32 v6, 16, v2\nv_lshrrev_b32 v30, v6, v30\nv_lshlrev_b32 v30, 16, v30\nv_add_f32 v32, v32, v30\nv_cvt_pk_bf16_f32 v32, v32, v32\nv_lshl_add_u32 v5, v11, 1, v5")
setexec(0x00ff00ff, 0x00ff00ff)
a("buffer_store_short v32, v5, %s, s52 offen" % srd("out"))
cnt(2); st(11)
a("s_cmp_eq_u32 s42, 0\ns_cbranch_scc0 L_fin\ns_mov_b64 exec, 1\nv_mov_b32 v4, s46\nbuffer_store_dword v4, v3, %s, 0 offen" % WS)
a("s_branch L_fin")


a("L_fin:")
if opt["stamps"]:
    execall()
    write_stamps(a, 16, 4, 2, 3, 8)
a("L_end:\ns_endpgm")
if opt["walk"]: a("WKA%d:\ns_branch L_walkedA\nWKB%d:\ns_branch L_walkedB" % (len(stubs["A"]), len(stubs["B"])))
for c in cold: a(c)
a("L_codeend:\n.fill (16384 + 512 - (L_codeend - %s))/4, 4, 0xbf800000" % K)
txt = a.text()
if opt["cyc"]: txt = txt.replace("s_memrealtime", "s_memtime") + "; s_memrealtime\n"
if opt["noplain"]:
    import re
    txt = re.sub(r"(buffer_store_\w+ [^\n]*offen(?: offset:\d+)?)\n", r"\1 sc1\n", txt)
body = hazard.fix(txt, False)
open(sys.argv[1], "w").write(finish(["grid=(256,1,1) block=(512,1,1) lds=163840"], body, [descriptor(K, 256, 102, 256)]))
```

```python
import sys, math, struct
from asmlib import *
import hazard
def f2u(x): return struct.unpack("<I", struct.pack("<f", x))[0]
opt = dict(stamps=0, smask=0xfff, spin=1<<16, nt="nt", ntw="nt", win=4, nsig=16, ksig=6, tk=0, kmap=0, tu=1, pre=1, hold=0, mlpos=0,
           loc1=1, loc4=1, dly=0, noplain=0, h1k=16, cyc=0, qwin=3, k0=5, qpf=4, walk=0, fill=1, ta=0, tapos=0, mlat=0, epos=8, prog=0, dbgq=0, pvprio=1, qbar=0b1010, ptk=0, pnap=0, numa=-1, pnuma=-1, pmode=0, e2pos=0, gupos=0, gbar=1, pp4=1, pp5=2, tb=0)
for x in sys.argv[2:]:
    k, v = x.split("=")
    assert k in opt, k
    opt[k] = v if k.startswith("nt") else int(v, 0)
NT = opt["nt"]; NTW = opt["ntw"]; SPIN = opt["spin"]; WIN = opt["win"]

QA = 0x40000; QD = 0x50000; DF = 0x58000; ML = 0x60000; GU = 0x70000; SG = 0xA0000; H4 = 0x80000; H4X = 0x10000; H5 = 0xC0000; PART = 0x800000
Q1 = 0x600000; Q1X = 0x20000
L_Q = 131072; L_MX = L_Q; L_PX = L_Q + 8192; L_XN = L_Q
L_FP = 0; L_R1 = 8192; L_DP = 12288; L_EP = 16384; L_WT = 20480; L_U = 32768; L_HV = 49152
S = dict(ws=4, x=8, ckv=12, wq=16, wuk=20, wuv=24, wo=28, wg=32, wu=36, wd=92, out=96)
def srd(b): return "s[%d:%d]" % (S[b], S[b]+3)
WS = srd("ws")
a = Asm(); K = NAME + "_kernel"
cold = []

def st(k):
    if opt["stamps"] and (opt["smask"] >> k) & 1: a("s_memrealtime s[62:63]\ns_waitcnt lgkmcnt(0)\ns_mov_b32 s%d, s62" % (64+k))
def cnt(k):
    if opt["stamps"]: a("s_mov_b32 s%d, s48" % (76+k))
def stz():
    if opt["stamps"]:
        for k in range(2, 16): a("s_mov_b32 s%d, 0" % (64+k))
stubs = {"A": [], "B": []}
def stub(kind, dead=False):
    if opt["walk"]:
        n = len(stubs[kind]); stubs[kind].append(n)
        if dead: a("WK%s%d:\ns_branch WK%s%d" % (kind, n, kind, n+1))
        else: a("WK%s%d:\ns_cmp_eq_u32 s100, 1\ns_cbranch_scc1 WK%s%d" % (kind, n, kind, n+1))
def walk(kind, wave):
    if opt["walk"]: a("s_cmp_eq_u32 s3, %d\ns_cbranch_scc0 L_nowalk%s\ns_mov_b32 s100, 1\ns_branch WK%s0\nL_walked%s:\ns_mov_b32 s100, 0\nL_nowalk%s:" % (wave, kind, kind, kind, kind))
def ptr(b): a("s_load_dwordx2 s[%d:%d], s[0:1], %d" % (S[b], S[b]+1, KOFF[b]))
def fmt(b): a("s_mov_b32 s%d, %d\ns_mov_b32 s%d, 0x20000" % (S[b]+2, SIZES[b], S[b]+3))
def vr(v, n=4): return "v[%d:%d]" % (v, v+n-1)
def mfma(d, A, B, c=None):
    a("v_mfma_f32_16x16x32_bf16 %s, %s, %s, %s" % (vr(d), vr(A), vr(B), vr(d) if c is None else c))
def selA(dst, src, vm):
    for r in range(4): a("v_and_b32 v%d, v%d, v%d" % (dst+r, src, vm+r))
def dpp(op, d, s0, s1, ctl, bank=0xf):
    a("%s_dpp v%d, v%d, v%d %s row_mask:0xf bank_mask:0x%x" % (op, d, s0, s1, ctl, bank))
def xrow(op, v, t):
    for sw in ("v_permlane16_swap_b32", "v_permlane32_swap_b32"):
        a("v_mov_b32 v%d, v%d\n%s v%d, v%d\n%s v%d, v%d, v%d" % (t, v, sw, v, t, op, v, v, t))
def allred(op, v, t):
    for ror in (8,4,2,1): dpp(op, v, v, v, "row_ror:%d" % ror)
    xrow(op, v, t)
def red8(op, regs):
    for ctl in ("quad_perm:[1,0,3,2]", "quad_perm:[2,3,0,1]", "row_half_mirror"):
        for v in regs: dpp(op, v, v, v, ctl)
def rbf(v): a("v_cvt_pk_bf16_f32 v%d, v%d, v%d\nv_and_b32 v%d, 0xffff0000, v%d" % (v, v, v, v, v))
def setexec(lo, hi): a("s_mov_b32 exec_lo, 0x%x\ns_mov_b32 exec_hi, 0x%x" % (lo, hi))
def execall(): a("s_mov_b64 exec, -1")
def loop_head(name):
    L = a.label(name); a("s_mov_b32 s48, 0\n%s:" % L); return L
def retry(L, flip=None, lim=None, after=12, once=None):
    R = a.label("rt"); D = a.label("ok")
    a("s_cbranch_vccnz %s\n%s:" % (R, D))
    fl = ""
    if flip: fl = "s_cmp_ge_u32 s48, %d\ns_cselect_b32 s87, 0x%x, 0\ns_xor_b32 s%d, s%d, s87\n" % (after, flip[1], flip[0], flip[0])
    if once: fl += "s_and_b32 s87, s48, 31\ns_cbranch_scc1 %s_o\n%s\n%s_o:\n" % (R, once, R)
    cold.append("%s:\ns_add_u32 s48, s48, 1\n%ss_cmp_lt_u32 s48, %d\ns_cbranch_scc1 %s\ns_branch %s" % (R, fl, lim or SPIN, L, D))
def tagmasks(vm, t):
    a("v_mul_u32_u24 v%d, 33, v9\nv_add_u32 v%d, s46, v%d" % (t, t, t))
    for k in range(4):
        a("v_bfe_u32 v%d, v%d, %d, 1\nv_lshlrev_b32 v%d, 14, v%d" % (vm+k, t, 2*k, vm+k, vm+k))
        a("v_bfe_u32 v%d, v%d, %d, 1\nv_lshl_or_b32 v%d, v%d, 30, v%d" % (t+1, t, 2*k+1, vm+k, t+1, vm+k))
def tagmasks2(vm, t):
    a("v_lshrrev_b32 v%d, 1, v12\nv_mul_u32_u24 v%d, 33, v%d\nv_add_u32 v%d, s46, v%d\nv_and_b32 v%d, 1, v2\nv_lshlrev_b32 v%d, 2, v%d\nv_lshrrev_b32 v%d, v%d, v%d" % (t, t, t, t, t, t+1, t+1, t+1, t, t+1, t))
    for k in range(2):
        a("v_bfe_u32 v%d, v%d, %d, 1\nv_lshlrev_b32 v%d, 14, v%d" % (vm+k, t, 2*k, vm+k, vm+k))
        a("v_bfe_u32 v%d, v%d, %d, 1\nv_lshl_or_b32 v%d, v%d, 30, v%d" % (t+1, t, 2*k+1, vm+k, t+1, vm+k))
def masks(vm, t):
    a("v_lshrrev_b32 v8, 3, v2\nv_and_b32 v9, 7, v2")
    a("v_and_b32 v%d, 1, v2\nv_cmp_eq_u32 vcc, 1, v%d\nv_mov_b32 v%d, 0xffff\nv_mov_b32 v%d, 0xffff0000\nv_cndmask_b32 v%d, v%d, v%d, vcc\nv_bfe_u32 v%d, v2, 1, 2" % (t, t, t, vm, t, t, vm, vm+3))
    for r in range(4): a("v_cmp_eq_u32 vcc, %d, v%d\nv_cndmask_b32 v%d, 0, v%d, vcc" % (r, vm+3, vm+r, t))

def units():
    a("s_lshr_b32 s90, s43, 1\ns_cmp_lt_u32 s40, 3\ns_cselect_b32 s56, 6, 5\ns_cselect_b32 s57, 0, 12\ns_mul_i32 s51, s42, s56\ns_add_u32 s57, s57, s51")
def mask4(dst, src):
    a("v_cmp_gt_u32 vcc, 8, v12")
    for r in range(4): a("v_cndmask_b32 v%d, 0, v%d, vcc" % (dst+r, src+r))
def sum8(base):
    for p in range(8): a("ds_read_b64 v[%d:%d], v53 offset:%d" % (32+2*p, 33+2*p, base + p*512))
    a("s_waitcnt lgkmcnt(0)")
    for stp in (8, 4, 2):
        for e in range(stp): a("v_add_f32 v%d, v%d, v%d" % (32+e, 32+e, 32+stp+e))
PW = "s_lshl_b32 s53, s3, 19"; PST = "0x8000"; PV7 = "v7, 17, v11"
if opt["pnuma"] < 0:
    PCONS = "s_lshl_b32 s50, s90, 13\ns_lshr_b32 s53, s42, 4\ns_lshl_b32 s53, s53, 12\ns_add_u32 s50, s50, s53"
    PPROD = "s_lshl_b32 s84, s44, 15\ns_lshl_b32 s56, s55, 13\ns_add_u32 s84, s84, s56\ns_add_u32 s84, s84, %d\ns_add_u32 s85, s84, 0x1000" % PART
elif opt["pmode"] == 0:
    PCONS = "s_lshr_b32 s50, s90, 1\ns_lshl_b32 s50, s50, 14\ns_and_b32 s53, s90, 1\ns_lshl_b32 s53, s53, 12\ns_add_u32 s50, s50, s53\ns_lshr_b32 s53, s3, 2\ns_lshr_b32 s53, %d, s53\ns_lshr_b32 s51, s42, 4\ns_xor_b32 s53, s53, s51\ns_and_b32 s53, s53, 1\ns_lshl_b32 s53, s53, 13\ns_add_u32 s50, s50, s53" % opt["pnuma"]
    PPROD = "s_lshl_b32 s84, s44, 15\ns_lshr_b32 s56, s55, 1\ns_lshl_b32 s56, s56, 14\ns_add_u32 s84, s84, s56\ns_and_b32 s56, s55, 1\ns_lshl_b32 s56, s56, 12\ns_add_u32 s84, s84, s56\ns_lshr_b32 s56, s44, 6\ns_lshr_b32 s56, %d, s56\ns_and_b32 s56, s56, 1\ns_lshl_b32 s56, s56, 13\ns_add_u32 s84, s84, s56\ns_add_u32 s84, s84, %d\ns_xor_b32 s85, s84, 0x2000" % (opt["pnuma"], PART)
else:
    PCONS = "s_lshl_b32 s50, s90, 14\ns_lshr_b32 s53, s42, 4\ns_lshl_b32 s53, s53, 12\ns_add_u32 s50, s50, s53\ns_bfe_u32 s53, s3, 0x10001\ns_lshr_b32 s53, %d, s53\ns_lshr_b32 s51, s3, 2\ns_xor_b32 s53, s53, s51\ns_and_b32 s53, s53, 1\ns_lshl_b32 s53, s53, 13\ns_add_u32 s50, s50, s53" % opt["pnuma"]
    PW = "s_lshl_b32 s53, s87, 20"; PST = "0x10000"; PV7 = "v7, 18, v11"
    PPROD = "s_and_b32 s84, s44, 63\ns_lshl_b32 s84, s84, 16\ns_lshl_b32 s56, s55, 14\ns_add_u32 s84, s84, s56\ns_bfe_u32 s56, s44, 0x10005\ns_lshr_b32 s56, %d, s56\ns_lshr_b32 s51, s44, 6\ns_xor_b32 s56, s56, s51\ns_and_b32 s56, s56, 1\ns_lshl_b32 s56, s56, 13\ns_add_u32 s84, s84, s56\ns_add_u32 s84, s84, %d\ns_add_u32 s85, s84, 0x1000" % (opt["pnuma"], PART)
def imgaddr(vsw, vtr):
    a("v_lshlrev_b32 v%d, 1, v11\nv_xor_b32 v%d, v%d, v12\nv_lshlrev_b32 v%d, 4, v%d" % (vsw, vsw, vsw, vsw, vsw))
    if vtr: a("v_lshrrev_b32 v5, 2, v2\nv_and_b32 v6, 7, v5\nv_xor_b32 v6, s3, v6\nv_lshlrev_b32 v6, 5, v6\nv_lshl_add_u32 v6, v5, 8, v6\nv_and_b32 v5, 3, v2\nv_lshl_add_u32 v%d, v5, 3, v6" % vtr)
def imgrd(dst, vtr, base, nks):
    for ks in range(nks):
        for T in range(2): a("ds_read_b64_tr_b16 v[%d:%d], v%d offset:%d" % (dst+4*ks+2*T, dst+4*ks+2*T+1, vtr, base + ks*8192 + T*4096))
def tailsetup():
    for b in ("wuv","wg","wu"): ptr(b)
    for b in ("wuv","wg","wu"): fmt(b)
    tagmasks(20, 4)
    mask4(24, 16)
    units(); imgaddr(50, 52)
    a("""s_and_b32 s87, s3, 3
v_lshl_add_u32 v50, v11, 17, v50
v_xor_b32 v51, 0x80, v50
v_mul_u32_u24 v10, 5504, v8
v_lshl_add_u32 v10, v9, 4, v10
v_bfrev_b32 v5, 1
v_cmp_gt_u32 vcc, s56, v9
v_cndmask_b32 v10, v5, v10, vcc
s_lshl_b32 s50, s90, 7
s_lshl_b32 s51, s45, 3
s_add_u32 s50, s50, s51
s_and_b32 s51, s3, 1
s_lshl_b32 s51, s51, 6
s_add_u32 s50, s50, s51
s_and_b32 s51, s3, 2
s_lshl_b32 s51, s51, 1
s_add_u32 s50, s50, s51
s_lshl_b32 s50, s50, 13
s_lshl_b32 s51, s42, 8
s_add_u32 s58, s50, s51
s_lshl3_add_u32 s50, s90, s3
s_mul_i32 s50, s50, %d
s_lshl_b32 s51, s57, 4
s_add_u32 s61, s50, s51
@PCONS@
s_and_b32 s53, s42, 3
s_lshl_b32 s53, s53, 10
s_add_u32 s50, s50, s53
s_bfe_u32 s53, s42, 0x20002
s_lshl_b32 s53, s53, 8
s_add_u32 s50, s50, s53
s_lshl_b32 s53, s3, 19
s_add_u32 s50, s50, s53
s_add_u32 s80, s50, %d
s_add_u32 s81, s80, 0x8000
s_add_u32 s82, s81, 0x8000
s_add_u32 s83, s82, 0x8000
v_lshlrev_b32 v7, 17, v11
v_lshl_add_u32 v7, v12, 4, v7
s_lshl_b32 s50, s42, 11
s_lshl_b32 s51, s90, 9
s_add_u32 s84, s50, s51
s_add_u32 s84, s84, %d
s_lshl_b32 s85, s42, 10
s_lshl_b32 s51, s90, 4
s_add_u32 s85, s85, s51
s_and_b32 s51, s3, 1
s_lshl_b32 s51, s51, 9
s_add_u32 s85, s85, s51
s_lshr_b32 s51, s3, 1
s_lshl_b32 s51, s51, 6
s_add_u32 s85, s85, s51
s_add_u32 s85, s85, %d
s_xor_b32 s86, s85, 0x%x
v_lshlrev_b32 v62, 8, v8
v_lshl_add_u32 v62, v9, 1, v62
s_lshl_b32 s55, s42, 4
s_lshl_b32 s51, s3, 13
s_add_u32 s55, s55, s51
s_add_u32 s55, s55, %d
v_lshl_add_u32 v54, v11, 2, v12
s_lshl_b32 s53, s3, 7
v_lshl_add_u32 v55, v54, 3, s53
v_lshlrev_b32 v54, 9, v54
v_lshlrev_b32 v53, 3, v2
v_and_b32 v59, 1, v11
v_lshlrev_b32 v59, 4, v59
v_lshl_add_u32 v59, v9, 5, v59
v_lshrrev_b32 v6, 5, v2
v_lshl_add_u32 v59, v6, 8, v59
s_lshl_b32 s53, s3, 9
v_add_u32 v57, s53, v59
s_mul_i32 s53, s3, 288
v_lshlrev_b32 v63, 4, v12
v_lshl_add_u32 v63, v11, 3, v63
v_add_u32 v63, s53, v63
v_mul_u32_u24 v4, 288, v9
v_lshl_add_u32 v4, v11, 4, v4
s_lshl_b32 s59, s3, 12
s_add_u32 s59, s59, 32768
s_waitcnt lgkmcnt(0)""".replace("@PCONS@", PCONS).replace("s_lshl_b32 s53, s3, 19", PW).replace("0x8000", PST).replace("v7, 17, v11", PV7) % (16*2752, PART, GU, H4, H4X, ML))

kernel_begin(a, K)
a("s_cmpk_ge_u32 s2, 256\ns_cbranch_scc1 L_end")
if opt["stamps"]: a("s_memrealtime s[64:65]")
for b in ("x","wq","ws","wuk","ckv"): ptr(b)
a("""v_lshrrev_b32 v1, 6, v0
v_and_b32 v2, 63, v0
v_readfirstlane_b32 s3, v1
s_lshr_b32 s41, s2, 3
s_mov_b32 s100, 0
s_cmp_lg_u32 s3, 3
s_cbranch_scc1 L_e1
s_getpc_b64 s[50:51]
s_lshl_b32 s52, s41, 9
v_lshl_add_u32 v1, v2, 7, s52
s_mov_b64 exec, 15
global_load_dword v60, v1, s[50:51]
s_mov_b64 exec, -1
L_e1:
s_and_b32 s40, s2, 7
s_lshr_b32 s42, s41, 3
s_lshl_b32 s43, s40, 2
s_add_u32 s42, s42, s43
s_and_b32 s43, s41, 6
s_lshl_b32 s51, s42, 8
v_lshlrev_b32 v3, 4, v2
v_lshrrev_b32 v11, 4, v2
v_and_b32 v12, 15, v2
v_lshlrev_b32 v10, 17, v11
v_lshl_add_u32 v10, v12, 4, v10
s_and_b32 s91, s41, 1
s_cmp_eq_u32 s3, 0
s_cbranch_scc0 L_notw0""")
fmt("x"); fmt("wq")
a("s_xor_b32 s45, s91, 1\ns_add_u32 s45, s45, s43\ns_lshl_b32 s50, s45, 19\ns_add_u32 s50, s50, s51\ns_lshl_b32 s52, s43, 7\nv_lshlrev_b32 v1, 1, v2\ns_waitcnt lgkmcnt(0)")
a("buffer_load_dwordx4 v[4:7], v3, %s, 0 offen" % srd("x"))
a("buffer_load_ushort v13, v1, %s, s52 offen\nbuffer_load_ushort v14, v1, %s, s52 offen offset:128" % (srd("x"), srd("x")))
for t in range(16):
    a("buffer_load_dwordx4 %s, v10, %s, s50 offen %s" % (vr(128+4*t), srd("wq"), NTW))
    if t < 15: a("s_addk_i32 s50, 8192")
fmt("ws")
a("s_lshl_b32 s50, s42, 3\ns_add_u32 s50, s50, s45\ns_lshl_b32 s50, s50, 9\ns_add_u32 s50, s50, %d\ns_mov_b32 exec_hi, 0\nv_mov_b32 v28, -1\nv_mov_b32 v29, 0\nv_mov_b32 v30, -1\nv_mov_b32 v31, 0" % (Q1 + Q1X))
a("buffer_store_dwordx4 v[28:31], v3, %s, s50 offen" % WS); execall()
a("s_barrier")
stz(); st(1)
a("s_load_dword s46, s[4:5], 0")
masks(16, 1)
a("v_cmp_gt_u32 vcc, 8, v12")
for r in range(4): a("v_cndmask_b32 v%d, 0, v%d, vcc" % (24+r, 16+r))
a("s_waitcnt vmcnt(17)")
vf = 32
for k in range(4): a("v_lshlrev_b32 v%d, 16, v%d\nv_and_b32 v%d, 0xffff0000, v%d" % (vf+2*k, 4+k, vf+2*k+1, 4+k))
a("v_add_f32 v40, v32, v33\nv_add_f32 v41, v34, v35\nv_add_f32 v42, v36, v37\nv_add_f32 v43, v38, v39\nv_add_f32 v40, v40, v41\nv_add_f32 v42, v42, v43\nv_add_f32 v40, v40, v42")
allred("v_add_f32", 40, 41)
a("v_mul_f32 v40, 0x%x, v40" % f2u(1/512))
for k in range(8): a("v_sub_f32 v%d, v%d, v40" % (vf+k, vf+k))
a("v_mul_f32 v42, v32, v32")
for k in range(1, 8): a("v_fmac_f32 v42, v%d, v%d" % (vf+k, vf+k))
allred("v_add_f32", 42, 41)
a("v_mul_f32 v42, 0x%x, v42" % f2u(1/512))
rbf(42); rbf(40)
a("v_add_f32 v42, 0x%x, v42" % f2u(1e-5)); rbf(42)
a("v_sqrt_f32 v42, v42\nv_lshlrev_b32 v13, 16, v13\nv_sub_f32 v13, v13, v40\nv_lshlrev_b32 v14, 16, v14\nv_sub_f32 v14, v14, v40"); rbf(42)
a("v_rcp_f32 v43, v42"); rbf(13); rbf(14)
for v in (13, 14): a("v_mul_f32 v41, v%d, v43\nv_fma_f32 v%d, -v41, v42, v%d\nv_fma_f32 v%d, v%d, v43, v41\nv_cvt_pk_bf16_f32 v%d, v%d, v%d" % ((v,)*8))
a("v_lshlrev_b32 v1, 2, v2\nv_add_u32 v1, %d, v1\nds_write2st64_b32 v1, v13, v14 offset1:1" % L_XN)
a("s_and_b32 s55, s45, 1\ns_lshl_b32 s55, s55, 8\ns_add_u32 s55, s55, %d\nv_lshl_add_u32 v1, v11, 6, s55" % L_XN)
for q in range(4): a("ds_read_b128 %s, v1 offset:%d" % (vr(32+4*q), 16*q))
a("v_lshlrev_b32 v1, 5, v12\nv_lshl_add_u32 v1, v11, 4, v1\ns_xor_b32 s52, s50, 0x%x" % Q1X)
a("s_waitcnt lgkmcnt(0)\ns_add_u32 s46, s46, 1\ns_and_b32 s47, s46, 0xff\nv_mov_b32 v13, s47\ns_movk_i32 s51, 0xff")
st(2)
for t in range(16):
    selA(64+4*(t&1), 32+t, 24)
    a("s_waitcnt vmcnt(%d)" % (16-t))
    mfma(28, 64+4*(t&1), 128+4*t, "0" if t == 0 else None)
for r in range(4): a("v_bfi_b32 v%d, s51, v13, v%d" % (28+r, 28+r))
setexec(0xffffffff, 0)
a("buffer_store_dwordx4 v[28:31], v1, %s, s50 offen" % WS)
a("buffer_store_dwordx4 v[28:31], v1, %s, s52 offen sc1" % WS)
execall()
a("s_barrier")
st(3)
a("s_cmp_eq_u32 s91, 0\ns_cbranch_scc1 L_attn0\ns_mov_b32 s44, 0\ns_mov_b32 s45, 0\ns_lshl_b32 s49, s42, 3\ns_add_u32 s49, s49, s43\ns_branch L_wtail")
a("L_notw0:\ns_cmp_eq_u32 s91, 0\ns_cbranch_scc1 L_attn")
a("""s_lshr_b32 s45, s3, 2
s_add_u32 s43, s43, s45
s_lshl1_add_u32 s44, s45, s3
s_and_b32 s44, s44, 3
s_lshl_b32 s50, s43, 19
s_add_u32 s50, s50, s51
s_lshl_b32 s49, s42, 3
s_add_u32 s49, s49, s43""")
fmt("ws"); fmt("wuk"); stz()
a("s_cmp_eq_u32 s3, 1\ns_waitcnt lgkmcnt(0)\ns_barrier\ns_load_dword s46, s[4:5], 0\ns_cbranch_scc0 L_noearly")
def wukloads(vo=10, so=50):
    for t in range(16):
        a("buffer_load_dwordx4 %s, v%d, %s, s%d offen" % (vr(128+4*t), vo, srd("wuk"), so))
        if t < 15: a("s_addk_i32 s%d, 8192" % so)
wukloads()
a("L_noearly:\nv_and_b32 v24, 31, v2\nv_lshrrev_b32 v25, 5, v2\nv_lshlrev_b32 v26, 6, v12\nv_lshl_add_u32 v26, v25, 16, v26\ns_cmp_eq_u32 s3, 2\ns_cbranch_scc0 L_noclr")
for r in range(4): a("v_mov_b32 v%d, -1" % (20+r))
a("""s_lshl_b32 s53, s42, 11
s_lshl_b32 s54, s43, 4
s_add_u32 s54, s54, s53
s_lshr_b32 s54, s54, 1
s_add_u32 s54, s54, %d
buffer_store_dwordx4 v[20:23], v26, %s, s54 offen sc1
s_lshl_b32 s55, s43, 8
s_add_u32 s53, s53, s55
s_add_u32 s53, s53, %d
s_lshl_b32 s55, s43, 4
s_add_u32 s55, s55, s42
s_lshl_b32 s55, s55, 9
s_add_u32 s55, s55, %d
s_sub_u32 s55, s55, s53
v_mul_lo_u32 v25, v25, s55
v_lshl_add_u32 v25, v24, 4, v25
buffer_store_dwordx4 v[20:23], v25, %s, s53 offen sc1""" % (H4, WS, GU, H5, WS))
a("L_noclr:")
masks(16, 1)
a("s_waitcnt lgkmcnt(0)\ns_add_u32 s46, s46, 1\ns_and_b32 s47, s46, 0xff")
a("v_lshlrev_b32 v1, 10, v11\nv_lshl_add_u32 v1, v12, 5, v1\ns_lshl_b32 s52, s42, 12\ns_add_u32 s52, s52, %d" % (Q1 + Q1X*opt["loc1"]))
a("s_cmp_eq_u32 s44, 1\ns_cbranch_scc1 L_stageb")
walk("B", 4)
a("s_barrier")
a("s_cmp_eq_u32 s3, 2\ns_cbranch_scc0 L_wtail\ns_waitcnt vmcnt(0)\ns_mov_b32 exec_lo, 0\nbuffer_store_dwordx4 v[20:23], v26, %s, s54 offen\ns_mov_b64 exec, -1\ns_branch L_wtail" % WS)
a("L_stageb:\nv_mov_b32 v15, v10\ns_mov_b32 s91, s50")
tailsetup()
tagmasks2(48, 5)
a("s_cmp_eq_u32 s3, 1\ns_barrier\ns_cbranch_scc1 L_wukdone")
wukloads(15, 91)
a("L_wukdone:\ns_waitcnt vmcnt(%d)" % opt["h1k"])
st(1)
L = loop_head("h1")
for n in range(4): a("buffer_load_dwordx4 %s, v1, %s, s52 offen offset:%d sc1" % (vr(32+4*n), WS, (n>>1)*512 + (n&1)*16))
stub("B")
a("s_waitcnt vmcnt(0)")
for r in range(16): a("v_xor_b32 v%d, s47, v%d" % (32+r, 32+r))
a("v_or_b32 v5, v32, v33")
for r in range(2, 16, 2): a("v_or3_b32 v5, v5, v%d, v%d" % (32+r, 33+r))
a("v_and_b32 v5, 0xff, v5\nv_cmp_ne_u32 vcc, 0, v5")
retry(L, (52, Q1X))
st(2); cnt(0)
for e in range(8): a("v_add_f32 v%d, v%d, v%d" % (32+e, 32+e, 40+e))
for e in range(4): a("v_permlane32_swap_b32 v%d, v%d" % (32+e, 36+e))
for e in range(4): a("v_add_f32 v%d, v%d, v%d" % (32+e, 32+e, 36+e))
for e in range(2): a("v_permlane16_swap_b32 v%d, v%d" % (32+e, 34+e))
for e in range(2): a("v_add_f32 v%d, v%d, v%d" % (32+e, 32+e, 34+e))
a("v_cvt_pk_bf16_f32 v40, v32, v33\nv_cvt_pk_bf16_f32 v41, v32, v33\nv_permlane16_swap_b32 v40, v41")
a("v_mov_b32 v42, v40\nv_mov_b32 v43, v41\nv_permlane32_swap_b32 v40, v42\nv_permlane32_swap_b32 v41, v43")
for t in range(16): a("v_dot2_f32_bf16 v%d, v%d, v40, 0" % (64+t, 128+4*t))
for k in range(1, 4):
    for t in range(16): a("v_dot2c_f32_bf16 v%d, v%d, v%d" % (64+t, 128+4*t+k, 40+k))
for t in range(8): dpp("v_add_f32", 64+t, 64+t, 64+t, "row_ror:8", 0x3)
for t in range(8): dpp("v_add_f32", 64+t, 72+t, 72+t, "row_ror:8", 0xc)
for t in range(4): dpp("v_add_f32", 64+t, 64+t, 64+t, "row_shl:4", 0x5)
for t in range(4): dpp("v_add_f32", 64+t, 68+t, 68+t, "row_shr:4", 0xa)
for ctl in ("quad_perm:[1,0,3,2]", "quad_perm:[2,3,0,1]"):
    for t in range(4): dpp("v_add_f32", 64+t, 64+t, 64+t, ctl)
SC = (128 ** -0.5) * math.log2(math.e)
for t in range(4): a("v_mul_f32 v%d, 0x%x, v%d" % (64+t, f2u(SC * 2.0**-20), 64+t))
a("v_cvt_pk_bf16_f32 v68, v64, v65\nv_cvt_pk_bf16_f32 v69, v66, v67")
a("ds_bpermute_b32 v68, v3, v68\nds_bpermute_b32 v69, v3, v69")
a("v_lshlrev_b32 v1, 3, v2\ns_lshl_b32 s50, s49, 7\ns_add_u32 s50, s50, %d\ns_mov_b64 exec, 0xffff\ns_barrier\ns_waitcnt lgkmcnt(0)" % QA)
a("v_xor_b32 v68, v68, v48\nv_xor_b32 v69, v69, v49\nbuffer_store_dwordx2 v[68:69], v1, %s, s50 offen sc1" % WS)
execall()
st(3)
a("s_branch L_wtail1")
stub("B", True)
a("L_wtail:")
tailsetup()
a("s_barrier\nL_wtail1:")
OWN = []
for n in range(4): OWN.append("s_mov_b32 m0, s59\ns_addk_i32 s59, 1024\nbuffer_load_dwordx4 v%d, %s, s58 offen %s lds\ns_addk_i32 s58, 8192" % (50 + (n&1), srd("wuv"), NTW))
if opt["ptk"]: a("s_barrier")
for l in OWN[:opt["ptk"]]:
    a(l); a("s_waitcnt vmcnt(0)")
    if opt["pnap"]: a("s_sleep %d" % opt["pnap"])
if opt["nsig"]:
    a("s_cmp_eq_u32 s3, 3\ns_cbranch_scc0 L_wtail2\ns_lshl_b32 s50, s40, 7\ns_add_u32 s50, s50, %d\nv_lshlrev_b32 v5, 2, v12\ns_movk_i32 s48, 24" % SG)
    a("L_sg:\nbuffer_load_dword v6, v5, %s, s50 offen sc1\ns_sub_u32 s48, s48, 1\ns_cbranch_scc1 L_wtail2\ns_waitcnt vmcnt(0)\nv_cmp_eq_u32 vcc, s46, v6\ns_bcnt1_i32_b64 s51, vcc\ns_cmp_lt_u32 s51, %d\ns_cbranch_scc1 L_sg" % (WS, 4*opt["ksig"]))
a("L_wtail2:")
stub("B")
a("s_barrier")
for k in range(opt["dly"]): a("s_sleep 8")
st(4)
TK = opt["tk"]
for n in range(2):
    for mi, b in enumerate(("wg", "wu")):
        a("buffer_load_dwordx4 %s, v10, %s, s61 offen offset:%d" % (vr(128+8*n+4*mi), srd(b), n*2752))
        if 2*n + mi < TK: a("s_waitcnt vmcnt(0)")
OWN1 = OWN[opt["ptk"]:]
a("s_lshl_b32 s50, s3, 6\ns_add_u32 s50, s50, %d\nv_lshl_add_u32 v1, v8, 3, s50\nds_read_b64 v[32:33], v1\ns_barrier" % L_XN)
for k, l in enumerate(OWN1):
    a(l)
    if 4 + k < TK: a("s_waitcnt vmcnt(0)")
a("s_waitcnt lgkmcnt(0)")
selA(64, 32, 16); selA(68, 33, 16)
a("s_waitcnt vmcnt(%d)" % len(OWN1))
for n in range(2):
    for mi in range(2): mfma(72+4*mi, 64+4*n, 128+8*n+4*mi, "0" if n == 0 else None)
a("s_cmp_eq_u32 s44, 1\ns_cbranch_scc0 L_noqd\ns_lshl_b32 s50, s49, 2\ns_add_u32 s50, s50, %d\nv_mov_b32 v70, s46\ns_mov_b64 exec, 1\nbuffer_store_dword v70, v3, %s, s50 offen sc1\ns_mov_b64 exec, -1\nL_noqd:\ns_nop 7" % (QD, WS))
def comb(x, y):
    for r in range(4): a("v_permlane32_swap_b32 v%d, v%d" % (x+r, y+r))
    for r in range(4): dpp("v_add_f32", x+r, y+r, x+r, "row_ror:8")
comb(72, 76)
setexec(0x00ff00ff, 0x00ff00ff)
a("ds_write_b128 v57, v[72:75] offset:%d" % L_FP); execall()
a("s_cmp_eq_u32 s3, 5\ns_waitcnt lgkmcnt(0)\ns_barrier\ns_cbranch_scc0 L_nogup")
sum8(L_FP)
a("buffer_store_dwordx2 v[32:33], v53, %s, s84 offen sc1\nL_nogup:" % WS)
if opt["tb"]:
    ptr("wo"); ptr("wd"); fmt("wo")
    a("""s_cmp_lt_u32 s3, 3
s_cbranch_scc0 L_notb
s_lshl_b32 s50, s42, 7
s_lshl_b32 s51, s3, 5
s_add_u32 s50, s50, s51
s_add_u32 s50, s50, 64
s_add_u32 s51, s57, 4
s_lshl_b32 s51, s51, 3
s_sub_u32 s52, s56, 4
s_lshl_b32 s52, s52, 4
s_cmp_lt_u32 s3, 2
s_cselect_b32 s50, s50, s51
s_cselect_b32 s52, 64, s52
s_waitcnt lgkmcnt(0)
s_cselect_b64 s[28:29], s[28:29], s[92:93]
s_cselect_b32 s30, s30, %d
s_lshl_b32 s50, s50, 10
s_lshl_b32 s51, s90, 8
s_add_u32 s50, s50, s51
v_lshrrev_b32 v5, 1, v2
v_lshlrev_b32 v5, 10, v5
v_and_b32 v6, 1, v2
v_lshl_add_u32 v5, v6, 7, v5
v_cmp_gt_u32 vcc, s52, v2
s_mov_b64 exec, vcc
buffer_load_dword v61, v5, %s, s50 offen
s_mov_b64 exec, -1
L_notb:
s_waitcnt lgkmcnt(0)""" % (SIZES["wd"], srd("wo")))
st(5)
BULK = "\n".join("buffer_load_dwordx4 %s, v7, %s, s%d offen sc1" % (vr(96+4*n), WS, 80+n) for n in range(4))
a("s_mov_b32 s52, 0x000f000f\ns_mov_b32 s53, s52\ns_mov_b32 s60, 0x00010001\ns_mov_b32 s61, s60\ns_mov_b32 s59, 0xffff\ns_mov_b32 s48, 0\ns_waitcnt vmcnt(%d)" % opt["mlpos"])
st(6)
a("L_ml:\ns_mov_b64 exec, s[52:53]\nbuffer_load_dwordx4 v[28:31], v54, %s, s55 offen sc1\ns_add_u32 s48, s48, 1\ns_cmp_ge_u32 s48, %d\ns_cselect_b64 s[50:51], s[52:53], 0\ns_waitcnt vmcnt(0)" % (WS, SPIN))
a("v_cmp_eq_u32 vcc, s46, v30\nv_cmp_eq_u32 s[88:89], s46, v31\ns_and_b64 vcc, vcc, s[88:89]\ns_or_b64 vcc, vcc, s[50:51]\ns_cbranch_vccz L_ml")
a("s_andn2_b64 s[52:53], s[52:53], vcc\ns_cbranch_scc1 L_ml")
cnt(1)
setexec(0x000f000f, 0x000f000f)
a("ds_write_b64 v55, v[28:29] offset:%d\ns_mov_b64 exec, -1\ns_waitcnt lgkmcnt(0)\ns_barrier" % L_WT)
a(BULK)
a("ds_read_b128 v[32:35], v3 offset:%d" % L_WT)
imgrd(192, 52, L_U, 4)
a("s_mov_b32 s54, 0x40004000\ns_mov_b32 s48, 0\ns_mov_b64 s[88:89], -1\ns_waitcnt lgkmcnt(8)")
st(7)
a("v_max_f32 v5, v32, v34")
allred("v_max_f32", 5, 6)
a("v_sub_f32 v29, v28, v5\nv_sub_f32 v32, v32, v5\nv_sub_f32 v34, v34, v5\nv_exp_f32 v29, v29\nv_exp_f32 v32, v32\nv_exp_f32 v34, v34\nv_mul_f32 v28, v32, v33\nv_fmac_f32 v28, v34, v35")
allred("v_add_f32", 28, 6)
a("v_rcp_f32 v28, v28\nv_mul_f32 v29, v29, v28\nv_cvt_pk_bf16_f32 v29, v29, v29")
for n in range(4):
    for r in range(4): dpp("v_and_b32", 64+4*n+r, 29, 24+r, "row_newbcast:%d" % n)
a("L_pt:")
for n in range(4):
    a("s_waitcnt vmcnt(%d)" % (3-n))
    for k in range(4): a("v_xor_b32 v%d, v%d, v%d" % (96+4*n+k, 96+4*n+k, 20+k))
    a("v_or_b32 v5, v96, v97" if n == 0 else "v_or3_b32 v5, v5, v%d, v%d" % (96+4*n, 97+4*n))
    a("v_or3_b32 v5, v5, v%d, v%d" % (98+4*n, 99+4*n))
    mfma(80, 64+4*n, 96+4*n, "0" if n == 0 else None)
a("v_and_b32 v5, s54, v5\nv_cmp_ne_u32 vcc, 0, v5\ns_and_b64 vcc, vcc, s[88:89]\ns_cbranch_vccnz L_ptslow\nL_ptok:")
cold.append("L_ptslow:\ns_add_u32 s48, s48, 1\ns_cmp_ge_u32 s48, %d\ns_cbranch_scc1 L_ptok\n" % SPIN +
  "s_cmp_lt_u32 s48, 8\ns_cbranch_scc1 L_ptre\n" +
  "s_lshl_b32 s50, s90, 2\ns_lshl_b32 s51, s3, 9\ns_add_u32 s50, s50, s51\ns_add_u32 s50, s50, %d\n" % DF +
  "v_lshlrev_b32 v5, 5, v12\nbuffer_load_dword v5, v5, %s, s50 offen sc1\ns_waitcnt vmcnt(0)\nv_cmp_ne_u32 vcc, s46, v5\n" % WS +
  "s_cmp_eq_u64 vcc, 0\ns_cselect_b64 s[88:89], 0, -1\nL_ptre:\n" + BULK + "\ns_waitcnt vmcnt(0)\ns_branch L_pt")
cnt(2); st(8)
a("s_mov_b32 exec_hi, 0\nv_cvt_pk_bf16_f32 v80, v80, v81\nv_cvt_pk_bf16_f32 v81, v82, v83\nds_write_b64 v63, v[80:81] offset:%d" % L_R1); execall()
a("s_waitcnt lgkmcnt(0)\ns_barrier")
for ks in range(4): a("ds_read_b128 %s, v4 offset:%d" % (vr(32+4*ks), L_R1 + 64*ks))
for ks in range(4):
    a("s_waitcnt lgkmcnt(%d)" % (3-ks))
    mfma(84, 32+4*ks, 192+4*ks, "0" if ks == 0 else None)
a("v_add_f32 v84, v84, v85\nv_add_f32 v86, v86, v87\nv_add_f32 v85, v84, v86\nv_add_f32 v84, v84, v86\nv_permlane16_swap_b32 v84, v85\nv_add_f32 v84, v84, v85\ns_mov_b64 exec, 0xffff\nv_cvt_pk_bf16_f32 v84, v84, v84")
a("buffer_store_short v84, v62, %s, s86 offen" % WS)
st(9)
if opt["gbar"]: a("s_barrier")
a("buffer_store_short v84, v62, %s, s85 offen sc1" % WS)
a("s_branch L_fin")

a("L_attn:")
fmt("wuk"); fmt("ws"); stz()
a("""v_lshrrev_b32 v28, 1, v2
v_lshlrev_b32 v28, 13, v28
v_and_b32 v29, 1, v2
v_lshl_add_u32 v28, v29, 7, v28
s_lshl_b32 s53, s43, 1
s_add_u32 s53, s53, s3
s_add_u32 s53, s53, 1
s_lshl_b32 s53, s53, 18
s_add_u32 s53, s53, s51
s_cmp_lt_u32 s3, 3
s_waitcnt lgkmcnt(0)
s_barrier
s_load_dword s46, s[4:5], 0""")
if opt["tu"]: a("s_cbranch_scc0 L_notouch\nbuffer_load_dword v61, v28, %s, s53 offen\nL_notouch:" % srd("wuk"))
KSH, KSTEP = ((13, 0x100000), (17, 8192))[opt["kmap"]]
def asetup():
    fmt("ckv")
    a("s_lshl_b32 s44, s40, 4\ns_lshr_b32 s50, s41, 1\ns_add_u32 s44, s44, s50\ns_lshl_b32 s54, s3, 5\nv_xor_b32 v14, s54, v3")
    if opt["numa"] < 0: a("s_lshl_b32 s50, s44, %d\ns_lshl_b32 s52, s3, 10\ns_add_u32 s50, s50, s52" % KSH)
    else: a("s_and_b32 s50, s44, 63\ns_lshl_b32 s50, s50, 14\ns_lshr_b32 s52, s44, 6\ns_lshl_b32 s52, s52, 13\ns_add_u32 s50, s50, s52\ns_lshl_b32 s52, s3, 10\ns_add_u32 s50, s50, s52\ns_mov_b32 s101, %d" % (opt["numa"] << 13))
DMA = "s_mov_b32 m0, s52\ns_addk_i32 s52, 8192\nbuffer_load_dwordx4 v14, %s, s50 offen %s lds\ns_add_u32 s50, s50, %d\nv_xor_b32 v14, 16, v14" % (srd("ckv"), NT, KSTEP)
if opt["numa"] >= 0:
    DMA = "s_lshr_b32 s51, s50, 21\ns_lshr_b32 s51, s101, s51\ns_and_b32 s51, s51, 0x2000\ns_xor_b32 s51, s51, s50\n" + DMA.replace("s50 offen", "s51 offen")
asetup()
for n in range(opt["pre"]): a(DMA)
a("s_movk_i32 s60, %d\ns_waitcnt lgkmcnt(0)\ns_add_u32 s46, s46, 1\ns_branch L_aset\nL_attn0:" % (16 - opt["pre"]))
asetup()
for n in range(opt["k0"]): a(DMA)
a("s_movk_i32 s60, %d" % (16 - opt["k0"]))
a("s_lshl_b32 s61, s44, 9\ns_add_u32 s61, s61, %d" % ML)
a("v_mov_b32 v36, 0\nv_mov_b32 v37, 0\nv_mov_b32 v38, 0\nv_mov_b32 v39, -1\ns_mov_b32 exec_hi, 0\nbuffer_store_dwordx4 v[36:39], v3, %s, s61 offen sc1\ns_mov_b64 exec, -1" % WS)
a("L_aset:\ns_and_b32 s55, s3, 3\nv_and_b32 v9, 7, v2\nv_lshrrev_b32 v8, 3, v2\nv_lshrrev_b32 v10, 5, v2")
a("s_lshl_b32 s51, s40, 6\ns_add_u32 s51, s51, s41\ns_lshl_b32 s51, s51, 1\ns_add_u32 s87, s51, %d\ns_lshl_b32 s61, s44, 9\ns_add_u32 s61, s61, %d" % (SG, ML))
a("v_lshlrev_b32 v7, 9, v11\nv_lshl_add_u32 v7, v12, 4, v7\nv_add_u32 v7, %d, v7" % L_PX)
if opt["ta"]:
    ptr("wo"); fmt("wo")
    a("v_lshrrev_b32 v13, 1, v2\nv_lshlrev_b32 v13, 12, v13\nv_and_b32 v29, 1, v2\nv_lshl_add_u32 v13, v29, 7, v13\ns_cmp_lt_u32 s55, %d\ns_cselect_b32 s56, 0, 0x80000000\nv_add_u32 v13, s56, v13" % opt["ta"])
    a("s_lshl_b32 s86, s42, 17\ns_sub_u32 s56, 3, s55\ns_lshl_b32 s56, s56, 10\ns_add_u32 s86, s86, s56\ns_lshl_b32 s56, s43, 7\ns_add_u32 s86, s86, s56\ns_waitcnt lgkmcnt(0)")
for b in ("wo","wd","out"): ptr(b)
for b in ("wo","wd","out","x"): fmt(b)
units()
imgaddr(13, 0)
a("""v_lshl_add_u32 v13, v11, 10, v13
v_xor_b32 v15, 0x80, v13
s_lshr_b32 s51, s3, 1
s_lshl_b32 s81, s51, 5
s_and_b32 s53, s3, 1
s_lshl_b32 s58, s53, 2
s_add_u32 s81, s81, s58
s_lshl_b32 s58, s42, 7
s_add_u32 s81, s81, s58
s_lshl_b32 s81, s81, 10
s_lshl_b32 s58, s90, 8
s_add_u32 s81, s81, s58
s_and_b32 s82, s3, 4
s_lshl1_add_u32 s53, s53, s82
s_add_u32 s82, s57, s53
s_lshl_b32 s82, s82, 13
s_and_b32 s51, s51, 1
s_lshl_b32 s51, s51, 12
s_add_u32 s82, s82, s51
s_add_u32 s82, s82, s58
s_cmp_lt_u32 s53, s56
s_cselect_b32 s47, 0, 0x80000000
s_add_u32 s53, s53, 1
s_cmp_lt_u32 s53, s56
s_cselect_b32 s49, 0, 0x80000000
s_lshl_b32 s83, s3, 12
s_lshl_b32 s86, s3, 11
s_add_u32 s86, s86, 32768
s_waitcnt lgkmcnt(0)""")
ELD = ["s_mov_b32 m0, s83\ns_addk_i32 s83, 1024\nbuffer_load_dwordx4 v%d, %s, s81 offen %s lds\ns_addk_i32 s81, 8192" % ((13, 15)[n&1], srd("wo"), NTW) for n in range(4)] + \
      ["s_mov_b32 m0, s86\ns_addk_i32 s86, 1024\nv_or_b32 v%d, s%d, v%d\nbuffer_load_dwordx4 v%d, %s, s82 offen %s lds\ns_addk_i32 s82, 8192" % ((13, 15)[n], (47, 49)[n], (13, 15)[n], (13, 15)[n], srd("wd"), NTW) for n in range(2)]
a("s_cmp_lt_u32 s3, 4\ns_cbranch_scc0 L_pvset")
a("""v_and_b32 v28, 3, v2
v_bfe_u32 v29, v2, 2, 1
v_bfe_u32 v30, v2, 3, 1
v_lshl_add_u32 v31, v28, 1, v29
v_lshl_add_u32 v29, v31, 1, v30
v_lshl_add_u32 v31, v30, 3, v31
v_and_b32 v30, 16, v2
v_add_u32 v31, v31, v30
s_lshl_b32 s56, s55, 15
v_lshl_add_u32 v31, v31, 10, s56
v_xor_b32 v29, v29, v10""")
for k in range(8): a("v_xor_b32 v%d, %d, v29\nv_lshl_add_u32 v%d, v%d, 4, v31" % (16+k, 2*k, 16+k, 16+k))
a("v_xor_b32 v29, v2, v10")
for k in range(4): a("v_xor_b32 v%d, %d, v29\nv_lshlrev_b32 v%d, 4, v%d\nv_add_u32 v%d, %d, v%d" % (24+k, 2*k, 24+k, 24+k, 24+k, L_Q, 24+k))
a("v_and_b32 v5, 31, v2\nv_lshlrev_b32 v5, 4, v5\nv_add_u32 v5, %d, v5\ns_lshl_b32 s56, s55, 2\nv_add_u32 v4, s56, v5" % L_MX)
a("v_add_u32 v6, %d, v3\ns_lshl_b32 s56, s55, 11\nv_add_u32 v6, s56, v6\ns_mov_b32 s59, 0x%x\ns_branch L_setdone\nL_pvset:" % (L_PX, f2u(2.0**20)))
tagmasks(24, 28)
a("""v_bfe_u32 v28, v2, 2, 2
v_bfe_u32 v29, v2, 4, 1
v_lshl_add_u32 v29, v28, 1, v29
v_bfe_u32 v28, v2, 1, 1
v_lshl_add_u32 v30, v29, 1, v28
v_lshl_add_u32 v29, v10, 4, v29
v_and_b32 v31, 1, v2
v_lshlrev_b32 v31, 3, v31
v_lshl_add_u32 v31, v29, 10, v31
s_lshl_b32 s56, s55, 8
v_add_u32 v31, s56, v31""")
for t in range(8): a("v_xor_b32 v%d, %d, v30\nv_lshl_add_u32 v%d, v%d, 4, v31" % (16+t, 2*t, 16+t, 16+t))
a("""v_lshlrev_b32 v4, 10, v8
v_lshl_add_u32 v4, v9, 4, v4
s_lshl_b32 s80, s55, 13
s_add_u32 s80, s80, %d
v_xor_b32 v5, v8, v9
v_lshlrev_b32 v5, 4, v5
v_lshl_add_u32 v5, v9, 9, v5
s_lshl_b32 s56, s55, 7
s_add_u32 s56, s56, %d
v_add_u32 v5, s56, v5
%s
s_mov_b32 s54, 0x40004000
L_setdone:
s_cmp_eq_u32 s3, 7
s_cselect_b32 s57, %d, -1
s_cmp_eq_u32 s3, 0
s_cbranch_scc1 L_dma""" % (QA, L_Q, PPROD, 16 - opt["nsig"] if opt["nsig"] <= 16 else -1))
walk("A", 3)
if opt["hold"]: a("s_waitcnt vmcnt(%d)" % opt["pre"])
a("s_barrier")
SIG = "v_mov_b32 v1, s46\ns_mov_b64 exec, 1\nbuffer_store_dword v1, v3, %s, s87 offen\ns_mov_b64 exec, -1" % WS
def signal(): a("s_cmp_eq_u32 s3, 7\ns_cbranch_scc0 L_nosg\n" + SIG + "\nL_nosg:")
TOUCH = "buffer_load_dword v15, v13, %s, s86 offen" % srd("wo")
def mfma32(d, A, B, c=None):
    a("v_mfma_f32_32x32x16_bf16 %s, %s, %s, %s" % (vr(d, 16), vr(A), vr(B), vr(d, 16) if c is None else c))
a("L_dma:\ns_waitcnt vmcnt(%d)\n%s\ns_sub_u32 s60, s60, 1\ns_cmp_eq_u32 s60, s57\ns_cbranch_scc0 L_dmans\n%s\nL_dmans:\ns_cmp_lg_u32 s60, 0\ns_cbranch_scc1 L_dma" % (WIN-1, DMA, SIG))
a("s_cmp_lt_u32 s3, 4\ns_waitcnt vmcnt(%d)\ns_barrier\ns_cbranch_scc1 L_qkw" % min(4, opt["qwin"]))
def QLD(j): return "buffer_load_dwordx4 %s, v4, %s, s80 offen offset:%d sc1" % (vr(64+4*j), WS, 128*j)
def trrd(kb, T):
    for t in range(8):
        v = 128 + kb*32 + t*4 + T*2
        a("ds_read_b64_tr_b16 v[%d:%d], v%d offset:%d" % (v, v+1, 16+t, (kb&1)*32768 + T*8192))
def trx(x):
    for t in range(8): a("v_xor_b32 v%d, 0x%x, v%d" % (16+t, x, 16+t))
TP = 0
a(QLD(0)); a(QLD(1)); trrd(0, 0); a(QLD(2)); a(QLD(3)); trrd(1, 0); a(QLD(4)); a(QLD(5)); trx(16); a(QLD(6)); a(QLD(7))
a("s_setprio %d" % opt["pvprio"])
st(3)
trrd(0, 1); trrd(1, 1); trx(0x10000); trrd(2, 1); trx(16); trrd(2, 0)
stub("A")
a("s_mov_b32 s48, 0\ns_mov_b64 s[88:89], -1")
for k in range(4):
    a("s_waitcnt vmcnt(%d)\nL_qchk%d:" % (6 - 2*k + TP, k))
    if opt["dbgq"]: a("s_memtime s[%d:%d]" % (16+2*k, 17+2*k))
    for j in (2*k, 2*k+1):
        for e in range(4): a("v_xor_b32 v%d, v%d, v%d" % (64+4*j+e, 64+4*j+e, 24+e))
        a("ds_write_b128 v5, %s offset:%d" % (vr(64+4*j), 4096*j))
    b = 64 + 8*k
    a("v_or_b32 v29, v%d, v%d\nv_or3_b32 v29, v29, v%d, v%d\nv_or3_b32 v29, v29, v%d, v%d\nv_or3_b32 v29, v29, v%d, v%d" % tuple(range(b, b+8)))
    a("v_and_b32 v29, s54, v29\nv_cmp_ne_u32 vcc, 0, v29\ns_and_b64 vcc, vcc, s[88:89]\ns_cbranch_vccnz L_qslow%d\nL_qok%d:" % (k, k))
    if k < 3 and (opt["qbar"] >> k) & 1:
        a("s_waitcnt lgkmcnt(0)\ns_barrier")
        if opt["qbar"] & ((1 << k) - 1) == 0:
            st(4)
            if opt["nsig"] == 17: signal()
    cold.append("L_qslow%d:\ns_movk_i32 s60, %d\ns_branch L_qslow\nL_qre%d:\n" % (k, k, k) + "\n".join(QLD(j) for j in range(2*k, 8)) + "\ns_waitcnt vmcnt(0)\ns_branch L_qchk%d" % k)
cold.append("L_qslow:\ns_add_u32 s48, s48, 1\ns_cmp_lt_u32 s48, 8\ns_cbranch_scc1 L_qre\n" +
  "s_mov_b32 s51, %d\nbuffer_load_dwordx4 v[96:99], v3, %s, s51 offen sc1\ns_waitcnt vmcnt(0)\n" % (QD, WS) +
  "v_xor_b32 v96, s46, v96\nv_xor_b32 v97, s46, v97\nv_xor_b32 v98, s46, v98\nv_xor_b32 v99, s46, v99\nv_or_b32 v96, v96, v97\nv_or3_b32 v96, v96, v98, v99\nv_cmp_ne_u32 vcc, 0, v96\n" +
  "s_cmp_eq_u64 vcc, 0\ns_cselect_b64 s[88:89], 0, -1\ns_cmp_ge_u32 s48, %d\ns_cselect_b64 s[88:89], 0, s[88:89]\nL_qre:\ns_waitcnt vmcnt(0) lgkmcnt(0)\n" % SPIN +
  "s_cmp_eq_u32 s60, 0\ns_cbranch_scc1 L_qre0\ns_cmp_eq_u32 s60, 1\ns_cbranch_scc1 L_qre1\ns_cmp_eq_u32 s60, 2\ns_cbranch_scc1 L_qre2\ns_branch L_qre3")
a("s_waitcnt lgkmcnt(0)\ns_barrier\ns_setprio 0")
if opt["qbar"] == 8:
    st(4)
    if opt["nsig"] == 17: signal()
cnt(0); st(5)
if opt["e2pos"] == 1:
    for l in ELD: a(l)
trrd(3, 0); trx(16); trrd(3, 1)
a("s_barrier")
if opt["nsig"] == 18: signal()
if opt["e2pos"] == 2:
    for l in ELD: a(l)
st(7)
a("s_waitcnt lgkmcnt(0)\ns_barrier")
for b in range(2):
    for kb in range(4): a("ds_read_b128 %s, v7 offset:%d" % (vr(32+16*b+4*kb), kb*2048 + b*256))
st(8)
def epi(b, r):
    o = (32, 64)[b] + 4*r; acc = 64 + 32*b
    return (["v_cvt_pk_bf16_f32 v%d, v%d, v%d" % (o+k, acc+8*k+r, acc+8*k+4+r) for k in range(4)] + ["v_xor_b32 v%d, v%d, v%d" % (o+k, o+k, 24+k) for k in range(4)] +
            ["buffer_store_dwordx4 %s, v3, %s, s%d offen offset:%d sc1" % (vr(o), WS, 84+b, r*1024)])
fill = sum((epi(0, r) for r in range(4)), [])
for b in range(2):
    for kb in range(4):
        if b == 0: a("s_waitcnt lgkmcnt(%d)" % (7 - kb if kb < 3 else 0))
        for t in range(8):
            mfma(64+32*b+4*t, 32+16*b+4*kb, 128+32*kb+4*t, "0" if kb == 0 else None)
            if (b, kb, t) == (0, 1, 4): stub("A")
            if opt["mlat"] and 32*b + 8*kb + t == opt["mlat"]: a("s_barrier")
            if b == 1 and 8*kb + t >= 5:
                for _ in range(2 if (t & 1 or not opt["fill"]) else 1):
                    if fill: a(fill.pop(0))
assert not fill
st(9)
for r in range(4):
    for l in epi(1, r): a(l)
st(10)
if opt["dbgq"]: a("s_mov_b32 s66, s16\ns_mov_b32 s67, s18\ns_mov_b32 s70, s20\ns_mov_b32 s71, s22\ns_mov_b32 s72, s32\ns_mov_b32 s73, s34\ns_mov_b32 s74, s36")
if opt["mlat"] >= 99: a("s_waitcnt vmcnt(%d)\ns_barrier" % (107 - opt["mlat"]))
if opt["e2pos"] == 0 or opt["gupos"] == 0: a("s_barrier")
if opt["e2pos"] == 0:
    for l in ELD: a(l)
a("s_branch L_e")
def ard(s): a("ds_read_b128 %s, v%d offset:%d" % (vr(128+4*s), 16 + (s&7), (s>>3)*256))
def brd(s): a("ds_read_b128 %s, v%d offset:%d" % (vr(64+4*(s&7)), 24 + (s&3), s*1024))
def qkloop(late):
    q = []
    def lw(*xs):
        nonlocal q
        idx = [q.index(x) for x in xs if x in q]
        if idx:
            i = max(idx); a("s_waitcnt lgkmcnt(%d)" % (len(q) - 1 - i)); q = q[i+1:]
    a("s_waitcnt vmcnt(0) lgkmcnt(0)\ns_barrier")
    st(4)
    nb = 0; na = 0
    for s in range(opt["qpf"]):
        brd(s); q.append(("b", s)); nb += 1
        if late: ard(s); q.append(("a", s)); na += 1
    for s in range(32):
        lw(("b", s), ("a", s))
        mfma32(96, 128+4*s, 64+4*(s&7), "0" if s == 0 else None)
        if s % 8 == 8 - opt["qpf"] and s < 24 and (opt["qbar"] >> (s >> 3)) & 1: a("s_barrier")
        if nb < 32: brd(nb); q.append(("b", nb)); nb += 1
        if late and na < 32: ard(na); q.append(("a", na)); na += 1
        if 0 <= s - opt["epos"] < 6: a(ELD[s - opt["epos"]])
stub("A", True)
a("L_qkw:\ns_cmp_eq_u32 s3, 3\ns_cbranch_scc1 L_qklate")
for s in range(32): ard(s)
qkloop(False)
a("s_branch L_qkdone")
stub("A", True)
a("L_qklate:")
qkloop(True)
a("L_qkdone:")
stub("A")
a("v_mov_b32 v29, 0x%x\ns_nop %d" % (f2u(20.0), 7 if opt["walk"] else 9))
st(6)
a("v_max3_f32 v28, v96, v97, v98")
for r in range(99, 111, 2): a("v_max3_f32 v28, v28, v%d, v%d" % (r, r+1))
a("v_max_f32 v28, v28, v111\nv_mov_b32 v30, v28\nv_permlane32_swap_b32 v28, v30\nv_max_f32 v28, v28, v30")
a("ds_write_b32 v4, v28\ns_waitcnt lgkmcnt(0)\ns_barrier\nds_read_b128 v[32:35], v5")
st(7)
a("s_waitcnt lgkmcnt(0)\nv_max3_f32 v28, v32, v33, v34\nv_max_f32 v28, v28, v35\nv_fma_f32 v28, v28, s59, v29")
for u in range(2):
    for r in range(96+8*u, 104+8*u): a("v_fma_f32 v%d, v%d, s59, -v28\nv_exp_f32 v%d, v%d" % (r, r, r, r))
    for k in range(4): a("v_cvt_pk_bf16_f32 v%d, v%d, v%d" % (32+4*u+k, 96+8*u+2*k, 97+8*u+2*k))
    a("ds_write_b128 v6, %s offset:%d" % (vr(32+4*u), 1024*u))
a("s_cmp_lt_u32 s3, 2\ns_waitcnt lgkmcnt(0)\ns_barrier")
if opt["stamps"]: st(8); a("s_cmp_lt_u32 s3, 2")
a("s_cbranch_scc0 L_qkidle\ns_lshl_b32 s56, s3, 8\nv_add_u32 v7, s56, v7")
for kb in range(4): a("ds_read_b128 %s, v7 offset:%d" % (vr(32+4*kb), kb*2048))
for k in range(4): a("v_mov_b32 v%d, 0x3f803f80" % (48+k))
a("v_mov_b32 v30, s46\nv_mov_b32 v31, s46\ns_lshl_b32 s56, s3, 4\ns_lshl_b32 s56, 0xffff, s56\ns_waitcnt lgkmcnt(0)")
for kb in range(4): mfma(52, 48, 32+4*kb, "0" if kb == 0 else None)
if opt["mlat"]: a("s_barrier")
a("v_mov_b32 v29, v52\ns_mov_b32 exec_lo, s56\ns_mov_b32 exec_hi, 0\nbuffer_store_dwordx4 v[28:31], v3, %s, s61 offen sc1" % WS)
execall()
st(9)
if opt["mlat"]: a("s_branch L_qkend\nL_qkidle:\ns_barrier\nL_qkend:")
else: a("L_qkidle:")
if opt["gupos"] == 0: a("s_barrier")
a("s_cmp_eq_u32 s3, 2\ns_cbranch_scc0 L_gud")
a("s_lshl_b32 s50, s42, 11\ns_add_u32 s50, s50, %d\nv_lshlrev_b32 v1, 2, v2" % GU)
L = loop_head("gu")
for k in range(8): a("buffer_load_dword v%d, v1, %s, s50 offen offset:%d sc1" % (40+k, WS, 256*k))
a("s_waitcnt vmcnt(0)")
for stp in (4, 2):
    for e in range(stp): a("v_add_f32 v%d, v%d, v%d" % (40+e, 40+e, 40+stp+e))
rbf(40); rbf(41)
a("v_mul_f32 v40, v40, v41\nv_cmp_u_f32 vcc, v40, v40")
retry(L)
cnt(1)
a("v_cvt_pk_bf16_f32 v40, v40, v40\nv_lshlrev_b32 v1, 1, v2\nds_write_b16 v1, v40 offset:%d" % L_HV)
a("L_gud:\ns_waitcnt vmcnt(0)")
if opt["gupos"] and opt["e2pos"] == 0: a("s_barrier")
a("L_e:")
imgaddr(1, 52)
a("""s_lshl_b32 s85, s42, 10
s_add_u32 s85, s85, %d
v_lshlrev_b32 v53, 2, v2
v_lshlrev_b32 v55, 4, v11
s_lshl_b32 s50, s90, 5
s_add_u32 s50, s50, s42
s_lshl_b32 s50, s50, 9
s_lshl_b32 s51, s3, 6
s_add_u32 s50, s50, s51
s_add_u32 s50, s50, %d
s_lshr_b32 s53, s40, 1
s_xor_b32 s54, s53, s90
s_and_b32 s53, s42, 2
s_or_b32 s54, s54, s53
s_xor_b32 s53, s3, 2
s_or_b32 s54, s54, s53
s_and_b32 s53, s42, 1
s_lshl1_add_u32 s52, s40, s53
s_and_b32 s51, s52, 3
s_lshl_b32 s51, s51, 7
s_lshl_b32 s52, s52, 6
s_lshl_b32 s57, s90, 14
s_add_u32 s57, s57, s51
s_add_u32 s57, s57, %d
v_lshlrev_b32 v57, 3, v9
v_lshl_add_u32 v57, v11, 1, v57
v_lshlrev_b32 v56, 11, v8
v_lshl_add_u32 v56, v9, 4, v56
s_waitcnt vmcnt(%d) lgkmcnt(0)
s_barrier
buffer_load_ushort v58, v57, %s, s52 offen
ds_read_b128 v[36:39], v55 offset:%d
ds_read_b128 v[40:43], v55 offset:%d""" % (H4 + H4X*opt["loc4"], H5, H5, 8 if opt["e2pos"] else 0, srd("x"), L_HV, L_HV + 64))
imgrd(144, 52, 32768, 2); imgrd(128, 52, 0, 4)
a("v_cmp_eq_u32 vcc, 0, v12\ns_waitcnt lgkmcnt(0)")
for v in range(36, 44): a("v_cndmask_b32 v%d, 0, v%d, vcc" % (v, v))
mfma(92, 36, 144, "0"); mfma(92, 40, 148)
a("s_lshl_b32 s58, s44, 5\ns_lshl_b32 s51, s3, 2\ns_xor_b32 s51, s51, 16\ns_add_u32 s58, s58, s51\ns_add_u32 s58, s58, %d\nv_mov_b32 v4, s46\ns_waitcnt vmcnt(0)\nv_lshlrev_b32 v58, 16, v58" % DF)
DFST = "s_mov_b64 exec, 1\nbuffer_store_dword v4, v3, %s, s58 offen sc1\ns_mov_b64 exec, -1" % WS
st(1)
H4L = "buffer_load_dwordx4 v[%d:%d], v3, " + WS + ", s85 offen sc1"
if opt["pp4"]:
    a("s_movk_i32 s48, 40\n" + H4L % (36, 39) + "\nL_p4:\n" + H4L % (40, 43) + "\ns_waitcnt vmcnt(1)\nv_cmp_eq_u32 vcc, -1, v39\ns_cbranch_vccz L_p4a\n" + H4L % (36, 39))
    a("s_sub_u32 s48, s48, 1\ns_cbranch_scc1 L_p4x\ns_waitcnt vmcnt(1)\nv_cmp_eq_u32 vcc, -1, v43\ns_cbranch_vccnz L_p4")
    for g in range(4): mfma(64+4*g, 40, 128+4*g, vr(92) if g == 0 else "0")
    a("s_branch L_p4j\nL_p4x:")
L = loop_head("h4")
a(H4L % (36, 39) + "\ns_waitcnt vmcnt(0)\nL_p4a:")
mfma(64, 36, 128, vr(92))
a("v_cmp_eq_u32 vcc, -1, v39")
mfma(68, 36, 132, "0")
retry(L, (85, H4X), after=(0 if opt["pp4"] else 48), once=DFST)
mfma(72, 36, 136, "0"); mfma(76, 36, 140, "0")
a("L_p4j:")
if opt["pp4"]: a("s_nop 3")
for g in range(4):
    for k in range(2): a("v_add_f32_dpp v%d, v%d, v%d quad_perm:[0,1,2,3] row_mask:0x%x bank_mask:0xf" % (80+k, 64+4*g+2*k, 65+4*g+2*k, 1 << g))
a("v_add_f32 v82, v80, v81\nv_add_f32 v80, v80, v81\nv_permlane16_swap_b32 v80, v82\nv_add_f32 v81, v80, v82\nv_add_f32 v80, v80, v82\nv_permlane32_swap_b32 v80, v81\nv_add_f32 v80, v80, v81\nv_cmp_u_f32 vcc, v80, v80")
retry(L, (85, H4X), after=(0 if opt["pp4"] else 48), once=DFST)
a("s_mov_b64 exec, 0xffff\nbuffer_store_dword v80, v53, %s, s50 offen sc1" % WS)
cnt(3); st(2)
a("s_cmp_lt_u32 s3, 4\ns_cbranch_scc1 L_nodf\n" + DFST + "\nL_nodf:")
execall()
a("s_cmp_eq_u32 s54, 0\ns_cbranch_scc0 L_fin")
def h5l(b):
    for n in range(4): a("buffer_load_dwordx4 %s, v56, %s, s57 offen offset:%d sc1" % (vr(b+4*n), WS, n*512))
def h5q(b, L, inv): a("v_max3_u32 v5, v%d, v%d, v%d\nv_max_u32 v5, v5, v%d\nv_cmp_eq_u32 vcc, -1, v5\ns_cbranch_vcc%s %s" % (b, b+4, b+8, b+12, "nz" if inv else "z", L))
if opt["pp5"]:
    a("s_movk_i32 s48, 64"); h5l(32)
    a("L_p5:\ns_sleep %d" % opt["pp5"]); h5l(64); a("s_waitcnt vmcnt(4)"); h5q(32, "L_p5a", False)
    a("s_sleep %d" % opt["pp5"]); h5l(96)
    a("s_waitcnt vmcnt(4)"); h5q(64, "L_p5b", False)
    a("s_sleep %d" % opt["pp5"]); h5l(32)
    a("s_sub_u32 s48, s48, 1\ns_cbranch_scc1 L_p5x\ns_waitcnt vmcnt(4)"); h5q(96, "L_p5", True)
    for e in range(0, 8, 2): a("v_pk_add_f32 v[%d:%d], v[%d:%d], v[%d:%d]" % (112+e, 113+e, 96+e, 97+e, 104+e, 105+e))
    a("s_branch L_p5j\nL_p5b:")
    for e in range(0, 8, 2): a("v_pk_add_f32 v[%d:%d], v[%d:%d], v[%d:%d]" % (112+e, 113+e, 64+e, 65+e, 72+e, 73+e))
    a("s_branch L_p5j\nL_p5x:")
L = loop_head("h5")
h5l(32)
a("s_waitcnt vmcnt(0)\nL_p5a:")
for e in range(0, 8, 2): a("v_pk_add_f32 v[%d:%d], v[%d:%d], v[%d:%d]" % (112+e, 113+e, 32+e, 33+e, 40+e, 41+e))
a("L_p5j:\nv_pk_add_f32 v[112:113], v[112:113], v[116:117]\nv_pk_add_f32 v[114:115], v[114:115], v[118:119]\ns_mov_b32 s88, 0x00ff00ff\ns_mov_b32 s89, s88")
a("v_permlane32_swap_b32 v112, v114\nv_permlane32_swap_b32 v113, v115\nv_add_f32 v112, v112, v114\nv_add_f32 v113, v113, v115\nv_cmp_u_f32 vcc, v112, v113\nv_permlane16_swap_b32 v112, v113")
retry(L)
a("v_add_f32 v112, v112, v113")
dpp("v_add_f32", 112, 112, 112, "row_ror:8")
a("s_mov_b64 exec, s[88:89]\nv_add_f32 v112, v112, v58\nv_cvt_pk_bf16_f32 v112, v112, v112\nbuffer_store_short v112, v57, %s, s52 offen" % srd("out"))
cnt(2); st(11)
a("s_cmp_eq_u32 s42, 0\ns_cbranch_scc0 L_fin\ns_mov_b64 exec, 1\nv_mov_b32 v4, s46\nbuffer_store_dword v4, v3, %s, 0 offen" % WS)
a("L_fin:")
if opt["stamps"]:
    execall()
    write_stamps(a, 16, 4, 2, 3, 8)
a("L_end:\ns_endpgm")
if opt["walk"]: a("WKA%d:\ns_branch L_walkedA\nWKB%d:\ns_branch L_walkedB" % (len(stubs["A"]), len(stubs["B"])))
for c in cold: a(c)
a("L_codeend:\n.fill (16384 + 512 - (L_codeend - %s))/4, 4, 0xbf800000" % K)
txt = a.text()
if opt["cyc"]: txt = txt.replace("s_memrealtime", "s_memtime") + "; s_memrealtime\n"
if opt["noplain"]:
    import re
    txt = re.sub(r"(buffer_store_\w+ [^\n]*offen(?: offset:\d+)?)\n", r"\1 sc1\n", txt)
body = hazard.fix(txt, False)
open(sys.argv[1], "w").write(finish(["grid=(256,1,1) block=(512,1,1) lds=163840"], body, [descriptor(K, 256, 102, 256)]))
```

```python
import sys, math, struct
from asmlib import *
import hazard
def f2u(x): return struct.unpack("<I", struct.pack("<f", x))[0]
opt = dict(stamps=0, smask=0xfff, spin=1<<16, nt="nt", ntw="nt", win=4, nsig=16, ksig=6, tk=0, kmap=0, tu=1, pre=1, hold=0, mlpos=0,
           loc1=1, loc4=1, dly=0, noplain=0, h1k=16, cyc=0, qwin=3, k0=5, qpf=4, walk=0, fill=1, ta=0, tapos=0, mlat=0, epos=8, prog=0, dbgq=0, pvprio=1, qbar=0b1011, ptk=0, pnap=0, numa=-1, pnuma=-1, pmode=0, e2pos=0, gupos=0, gbar=1, pp4=1, pp5=2, tb=0, dbgs=0, rm=0, ro=0, tm=0, um=0, ntmap="", mlo=-1, mmul=0, mperm=0, dbgr=0, nb=0, ns1=0, ks1=8, fake=0, eswap=1, nodf=0, dbgn=0, padt=3, ntg="", ntu="")
for x in sys.argv[2:]:
    k, v = x.split("=")
    assert k in opt, k
    opt[k] = v if k.startswith("nt") else int(v, 0)
NT = opt["nt"]; NTW = opt["ntw"]; SPIN = opt["spin"]; WIN = opt["win"]

QA = 0x40000; QD = 0x50000; DF = 0x58000; ML = 0x60000; GU = 0x70000; SG = 0xA0000; H4 = 0x80000; H4X = 0x10000; H5 = 0xC0000; PART = 0x800000
Q1 = 0x600000; Q1X = 0x20000
L_Q = 131072; L_MX = L_Q; L_PX = L_Q + 8192; L_XN = L_Q
L_FP = 0; L_R1 = 8192; L_DP = 12288; L_EP = 16384; L_WT = 20480; L_U = 32768; L_HV = 49152
S = dict(ws=4, x=8, ckv=12, wq=16, wuk=20, wuv=24, wo=28, wg=32, wu=36, wd=92, out=96)
def srd(b): return "s[%d:%d]" % (S[b], S[b]+3)
WS = srd("ws")
a = Asm(); K = NAME + "_kernel"
cold = []

def st(k):
    if opt["stamps"] and (opt["smask"] >> k) & 1: a("s_memrealtime s[62:63]\ns_waitcnt lgkmcnt(0)\ns_mov_b32 s%d, s62" % (64+k))
def cnt(k):
    if opt["stamps"]: a("s_mov_b32 s%d, s48" % (76+k))
def stz():
    if opt["stamps"]:
        for k in range(2, 16): a("s_mov_b32 s%d, 0" % (64+k))
stubs = {"A": [], "B": []}
def stub(kind, dead=False):
    if opt["walk"]:
        n = len(stubs[kind]); stubs[kind].append(n)
        if dead: a("WK%s%d:\ns_branch WK%s%d" % (kind, n, kind, n+1))
        else: a("WK%s%d:\ns_cmp_eq_u32 s100, 1\ns_cbranch_scc1 WK%s%d" % (kind, n, kind, n+1))
def walk(kind, wave):
    if opt["walk"]: a("s_cmp_eq_u32 s3, %d\ns_cbranch_scc0 L_nowalk%s\ns_mov_b32 s100, 1\ns_branch WK%s0\nL_walked%s:\ns_mov_b32 s100, 0\nL_nowalk%s:" % (wave, kind, kind, kind, kind))
def ptr(b): a("s_load_dwordx2 s[%d:%d], s[0:1], %d" % (S[b], S[b]+1, KOFF[b]))
def fmt(b): a("s_mov_b32 s%d, %d\ns_mov_b32 s%d, 0x20000" % (S[b]+2, SIZES[b], S[b]+3))
def vr(v, n=4): return "v[%d:%d]" % (v, v+n-1)
def mfma(d, A, B, c=None):
    a("v_mfma_f32_16x16x32_bf16 %s, %s, %s, %s" % (vr(d), vr(A), vr(B), vr(d) if c is None else c))
def selA(dst, src, vm):
    for r in range(4): a("v_and_b32 v%d, v%d, v%d" % (dst+r, src, vm+r))
def dpp(op, d, s0, s1, ctl, bank=0xf):
    a("%s_dpp v%d, v%d, v%d %s row_mask:0xf bank_mask:0x%x" % (op, d, s0, s1, ctl, bank))
def xrow(op, v, t):
    for sw in ("v_permlane16_swap_b32", "v_permlane32_swap_b32"):
        a("v_mov_b32 v%d, v%d\n%s v%d, v%d\n%s v%d, v%d, v%d" % (t, v, sw, v, t, op, v, v, t))
def allred(op, v, t):
    for ror in (8,4,2,1): dpp(op, v, v, v, "row_ror:%d" % ror)
    xrow(op, v, t)
def red8(op, regs):
    for ctl in ("quad_perm:[1,0,3,2]", "quad_perm:[2,3,0,1]", "row_half_mirror"):
        for v in regs: dpp(op, v, v, v, ctl)
def rbf(v): a("v_cvt_pk_bf16_f32 v%d, v%d, v%d\nv_and_b32 v%d, 0xffff0000, v%d" % (v, v, v, v, v))
def setexec(lo, hi): a("s_mov_b32 exec_lo, 0x%x\ns_mov_b32 exec_hi, 0x%x" % (lo, hi))
def execall(): a("s_mov_b64 exec, -1")
def loop_head(name):
    L = a.label(name); a("s_mov_b32 s48, 0\n%s:" % L); return L
def retry(L, flip=None, lim=None, after=12, once=None):
    R = a.label("rt"); D = a.label("ok")
    a("s_cbranch_vccnz %s\n%s:" % (R, D))
    fl = ""
    if flip: fl = "s_cmp_ge_u32 s48, %d\ns_cselect_b32 s87, 0x%x, 0\ns_xor_b32 s%d, s%d, s87\n" % (after, flip[1], flip[0], flip[0])
    if once: fl += "s_and_b32 s87, s48, 31\ns_cbranch_scc1 %s_o\n%s\n%s_o:\n" % (R, once, R)
    cold.append("%s:\ns_add_u32 s48, s48, 1\n%ss_cmp_lt_u32 s48, %d\ns_cbranch_scc1 %s\ns_branch %s" % (R, fl, lim or SPIN, L, D))
def tagmasks(vm, t):
    a("v_mul_u32_u24 v%d, 33, v9\nv_add_u32 v%d, s46, v%d" % (t, t, t))
    for k in range(4):
        a("v_bfe_u32 v%d, v%d, %d, 1\nv_lshlrev_b32 v%d, 14, v%d" % (vm+k, t, 2*k, vm+k, vm+k))
        a("v_bfe_u32 v%d, v%d, %d, 1\nv_lshl_or_b32 v%d, v%d, 30, v%d" % (t+1, t, 2*k+1, vm+k, t+1, vm+k))
def tagmasks2(vm, t):
    a("v_lshrrev_b32 v%d, 1, v12\nv_mul_u32_u24 v%d, 33, v%d\nv_add_u32 v%d, s46, v%d\nv_and_b32 v%d, 1, v2\nv_lshlrev_b32 v%d, 2, v%d\nv_lshrrev_b32 v%d, v%d, v%d" % (t, t, t, t, t, t+1, t+1, t+1, t, t+1, t))
    for k in range(2):
        a("v_bfe_u32 v%d, v%d, %d, 1\nv_lshlrev_b32 v%d, 14, v%d" % (vm+k, t, 2*k, vm+k, vm+k))
        a("v_bfe_u32 v%d, v%d, %d, 1\nv_lshl_or_b32 v%d, v%d, 30, v%d" % (t+1, t, 2*k+1, vm+k, t+1, vm+k))
def masks(vm, t):
    a("v_lshrrev_b32 v8, 3, v2\nv_and_b32 v9, 7, v2")
    a("v_and_b32 v%d, 1, v2\nv_cmp_eq_u32 vcc, 1, v%d\nv_mov_b32 v%d, 0xffff\nv_mov_b32 v%d, 0xffff0000\nv_cndmask_b32 v%d, v%d, v%d, vcc\nv_bfe_u32 v%d, v2, 1, 2" % (t, t, t, vm, t, t, vm, vm+3))
    for r in range(4): a("v_cmp_eq_u32 vcc, %d, v%d\nv_cndmask_b32 v%d, 0, v%d, vcc" % (r, vm+3, vm+r, t))

def units():
    a("s_lshr_b32 s90, s43, 1\ns_cmp_lt_u32 s40, 3\ns_cselect_b32 s56, 6, 5\ns_cselect_b32 s57, 0, 12\ns_mul_i32 s51, s42, s56\ns_add_u32 s57, s57, s51")
def mask4(dst, src):
    a("v_cmp_gt_u32 vcc, 8, v12")
    for r in range(4): a("v_cndmask_b32 v%d, 0, v%d, vcc" % (dst+r, src+r))
def sum8(base):
    for p in range(8): a("ds_read_b64 v[%d:%d], v53 offset:%d" % (32+2*p, 33+2*p, base + p*512))
    a("s_waitcnt lgkmcnt(0)")
    for stp in (8, 4, 2):
        for e in range(stp): a("v_add_f32 v%d, v%d, v%d" % (32+e, 32+e, 32+stp+e))
PW = "s_lshl_b32 s53, s3, 19"; PST = "0x8000"; PV7 = "v7, 17, v11"
if opt["pnuma"] < 0:
    PCONS = "s_lshl_b32 s50, s90, 13\ns_lshr_b32 s53, s42, 4\ns_lshl_b32 s53, s53, 12\ns_add_u32 s50, s50, s53"
    PPROD = "s_lshl_b32 s84, s44, 15\ns_lshl_b32 s56, s55, 13\ns_add_u32 s84, s84, s56\ns_add_u32 s84, s84, %d\ns_add_u32 s85, s84, 0x1000" % PART
elif opt["pmode"] == 0:
    PCONS = "s_lshr_b32 s50, s90, 1\ns_lshl_b32 s50, s50, 14\ns_and_b32 s53, s90, 1\ns_lshl_b32 s53, s53, 12\ns_add_u32 s50, s50, s53\ns_lshr_b32 s53, s3, 2\ns_lshr_b32 s53, %d, s53\ns_lshr_b32 s51, s42, 4\ns_xor_b32 s53, s53, s51\ns_and_b32 s53, s53, 1\ns_lshl_b32 s53, s53, 13\ns_add_u32 s50, s50, s53" % opt["pnuma"]
    PPROD = "s_lshl_b32 s84, s44, 15\ns_lshr_b32 s56, s55, 1\ns_lshl_b32 s56, s56, 14\ns_add_u32 s84, s84, s56\ns_and_b32 s56, s55, 1\ns_lshl_b32 s56, s56, 12\ns_add_u32 s84, s84, s56\ns_lshr_b32 s56, s44, 6\ns_lshr_b32 s56, %d, s56\ns_and_b32 s56, s56, 1\ns_lshl_b32 s56, s56, 13\ns_add_u32 s84, s84, s56\ns_add_u32 s84, s84, %d\ns_xor_b32 s85, s84, 0x2000" % (opt["pnuma"], PART)
else:
    PCONS = "s_lshl_b32 s50, s90, 14\ns_lshr_b32 s53, s42, 4\ns_lshl_b32 s53, s53, 12\ns_add_u32 s50, s50, s53\ns_bfe_u32 s53, s3, 0x10001\ns_lshr_b32 s53, %d, s53\ns_lshr_b32 s51, s3, 2\ns_xor_b32 s53, s53, s51\ns_and_b32 s53, s53, 1\ns_lshl_b32 s53, s53, 13\ns_add_u32 s50, s50, s53" % opt["pnuma"]
    PW = "s_lshl_b32 s53, s87, 20"; PST = "0x10000"; PV7 = "v7, 18, v11"
    PPROD = "s_and_b32 s84, s44, 63\ns_lshl_b32 s84, s84, 16\ns_lshl_b32 s56, s55, 14\ns_add_u32 s84, s84, s56\ns_bfe_u32 s56, s44, 0x10005\ns_lshr_b32 s56, %d, s56\ns_lshr_b32 s51, s44, 6\ns_xor_b32 s56, s56, s51\ns_and_b32 s56, s56, 1\ns_lshl_b32 s56, s56, 13\ns_add_u32 s84, s84, s56\ns_add_u32 s84, s84, %d\ns_add_u32 s85, s84, 0x1000" % (opt["pnuma"], PART)
def imgaddr(vsw, vtr):
    a("v_lshlrev_b32 v%d, 1, v11\nv_xor_b32 v%d, v%d, v12\nv_lshlrev_b32 v%d, 4, v%d" % (vsw, vsw, vsw, vsw, vsw))
    if vtr: a("v_lshrrev_b32 v5, 2, v2\nv_and_b32 v6, 7, v5\nv_xor_b32 v6, s3, v6\nv_lshlrev_b32 v6, 5, v6\nv_lshl_add_u32 v6, v5, 8, v6\nv_and_b32 v5, 3, v2\nv_lshl_add_u32 v%d, v5, 3, v6" % vtr)
def imgrd(dst, vtr, base, nks):
    for ks in range(nks):
        for T in range(2): a("ds_read_b64_tr_b16 v[%d:%d], v%d offset:%d" % (dst+4*ks+2*T, dst+4*ks+2*T+1, vtr, base + ks*8192 + T*4096))
def tailsetup():
    for b in ("wuv","wg","wu"): ptr(b)
    for b in ("wuv","wg","wu"): fmt(b)
    tagmasks(20, 4)
    mask4(24, 16)
    units(); imgaddr(50, 52)
    a("""s_and_b32 s87, s3, 3
v_lshl_add_u32 v50, v11, 17, v50
v_xor_b32 v51, 0x80, v50
v_mul_u32_u24 v10, 5504, v8
v_lshl_add_u32 v10, v9, 4, v10
v_bfrev_b32 v5, 1
v_cmp_gt_u32 vcc, s56, v9
v_cndmask_b32 v10, v5, v10, vcc
s_lshl_b32 s50, s90, 7
s_lshl_b32 s51, s45, 3
s_add_u32 s50, s50, s51
s_and_b32 s51, s3, 1
s_lshl_b32 s51, s51, 6
s_add_u32 s50, s50, s51
s_and_b32 s51, s3, 2
s_lshl_b32 s51, s51, 1
s_add_u32 s50, s50, s51
s_lshl_b32 s50, s50, 13
s_lshl_b32 s51, s42, 8
s_add_u32 s58, s50, s51
s_lshl3_add_u32 s50, s90, s3
s_mul_i32 s50, s50, %d
s_lshl_b32 s51, s57, 4
s_add_u32 s61, s50, s51
@PCONS@
s_and_b32 s53, s42, 3
s_lshl_b32 s53, s53, 10
s_add_u32 s50, s50, s53
s_bfe_u32 s53, s42, 0x20002
s_lshl_b32 s53, s53, 8
s_add_u32 s50, s50, s53
s_lshl_b32 s53, s3, 19
s_add_u32 s50, s50, s53
s_add_u32 s80, s50, %d
s_add_u32 s81, s80, 0x8000
s_add_u32 s82, s81, 0x8000
s_add_u32 s83, s82, 0x8000
v_lshlrev_b32 v7, 17, v11
v_lshl_add_u32 v7, v12, 4, v7
s_lshl_b32 s50, s42, 11
s_lshl_b32 s51, s90, 9
s_add_u32 s84, s50, s51
s_add_u32 s84, s84, %d
s_lshl_b32 s85, s42, 10
s_lshl_b32 s51, s90, 4
s_add_u32 s85, s85, s51
s_and_b32 s51, s3, 1
s_lshl_b32 s51, s51, 9
s_add_u32 s85, s85, s51
s_lshr_b32 s51, s3, 1
s_lshl_b32 s51, s51, 6
s_add_u32 s85, s85, s51
s_add_u32 s85, s85, %d
s_xor_b32 s86, s85, 0x%x
v_lshlrev_b32 v62, 8, v8
v_lshl_add_u32 v62, v9, 1, v62
s_lshl_b32 s55, s42, 4
s_lshl_b32 s51, s3, 13
s_add_u32 s55, s55, s51
s_add_u32 s55, s55, %d
v_lshl_add_u32 v54, v11, 2, v12
s_lshl_b32 s53, s3, 7
v_lshl_add_u32 v55, v54, 3, s53
v_lshlrev_b32 v54, 9, v54
v_lshlrev_b32 v53, 3, v2
v_and_b32 v59, 1, v11
v_lshlrev_b32 v59, 4, v59
v_lshl_add_u32 v59, v9, 5, v59
v_lshrrev_b32 v6, 5, v2
v_lshl_add_u32 v59, v6, 8, v59
s_lshl_b32 s53, s3, 9
v_add_u32 v57, s53, v59
s_mul_i32 s53, s3, 288
v_lshlrev_b32 v63, 4, v12
v_lshl_add_u32 v63, v11, 3, v63
v_add_u32 v63, s53, v63
v_mul_u32_u24 v4, 288, v9
v_lshl_add_u32 v4, v11, 4, v4
s_lshl_b32 s59, s3, 12
s_add_u32 s59, s59, 32768
s_waitcnt lgkmcnt(0)""".replace("@PCONS@", PCONS).replace("s_lshl_b32 s53, s3, 19", PW).replace("0x8000", PST).replace("v7, 17, v11", PV7) % (16*2752, PART, GU, H4, H4X, ML))

RM = opt["rm"]
GSH = (17, 15)[RM]
def rowoff(t): return t if RM == 0 else 16*(t >> 2) + (t & 3)
ORDER = list(range(16))
if opt["ro"] == 1: ORDER = [8*be + 4*a_ + b for be in range(2) for b in range(4) for a_ in range(2)]
if opt["ro"] == 2: ORDER = [4*a_ + b for b in range(4) for a_ in range(4)]
def slice_loads(vo, so, buf, fl, hook=None):
    for k, t in enumerate(ORDER):
        a("buffer_load_dwordx4 %s, v%d, %s, s%d offen %s" % (vr(128+4*t), vo, srd(buf), so, fl))
        if k < 15:
            d = (rowoff(ORDER[k+1]) - rowoff(t)) * 8192
            a("s_addk_i32 s%d, %d" % (so, d) if -32768 <= d < 32768 else "s_add_i32 s%d, s%d, %d" % (so, so, d))
kernel_begin(a, K)
if opt["stamps"]: a("s_memrealtime s[64:65]")
ptr("x"); ptr("ws")
a("v_lshrrev_b32 v1, 6, v0\ns_cmpk_ge_u32 s2, 256\nv_readfirstlane_b32 s3, v1\ns_cbranch_scc1 L_end")
if opt["padt"]: a("s_cmp_eq_u32 s3, 2\ns_cbranch_scc1 L_pad")
a("""s_cmp_lg_u32 s3, 3
s_cbranch_scc1 L_e1
s_getpc_b64 s[50:51]
s_andn2_b32 s52, s2, 7
v_and_b32 v1, 6, v0
v_add_lshl_u32 v1, v1, s52, 6
global_load_dword v60, v1, s[50:51]
s_bitcmp1_b32 s2, 3
s_cbranch_scc1 L_padb
s_branch L_pada
L_e1:""")
for b in ("wq","wuk","ckv"): ptr(b)
a("""v_and_b32 v2, 63, v0
s_lshr_b32 s41, s2, 3
s_and_b32 s40, s2, 7
s_lshr_b32 s42, s41, 3
s_lshl_b32 s43, s40, 2
s_add_u32 s42, s42, s43
s_and_b32 s43, s41, 6
s_lshl_b32 s51, s42, 8
v_lshlrev_b32 v3, 4, v2
v_lshrrev_b32 v11, 4, v2
v_and_b32 v12, 15, v2
v_lshlrev_b32 v10, @GSH@, v11
v_lshl_add_u32 v10, v12, 4, v10
s_and_b32 s91, s41, 1
s_mov_b32 s11, 0x20000
s_xor_b32 s45, s91, 1
s_add_u32 s45, s45, s43
s_lshl_b32 s50, s45, 19
s_add_u32 s50, s50, s51
s_cmp_eq_u32 s3, 0
s_cbranch_scc1 L_w0
s_cmp_eq_u32 s91, 0
s_cbranch_scc0 L_notw0
@PROBE@s_branch L_attn
.p2align 8
L_pad:
s_branch L_e1
L_w0:""".replace("@GSH@", str(GSH)).replace("@PROBE@", "s_mul_i32 s56, s3, 0x22c0\ns_waitcnt lgkmcnt(0)\ns_memtime s[24:25]\ns_load_dword s26, s[12:13], s56\n" if opt["dbgn"] == 3 else ""))
assert not opt["walk"]
a("s_lshl_b32 s52, s43, 7\nv_lshlrev_b32 v1, 1, v2\ns_movk_i32 s10, 1024\ns_lshl_b32 s18, 1, 22\ns_mov_b32 s19, s11")
if opt["dbgs"]: a("s_memtime s[24:25]")
a("s_waitcnt lgkmcnt(0)")
if opt["dbgs"]: a("s_memtime s[26:27]")
a("buffer_load_dwordx4 v[4:7], v3, %s, 0 offen" % srd("x"))
a("buffer_load_ushort v13, v1, %s, s52 offen\nbuffer_load_ushort v14, v1, %s, s52 offen offset:128" % (srd("x"), srd("x")))
slice_loads(10, 50, "wq", NTW)
fmt("ws")
a("s_lshl_b32 s50, s42, 3\ns_add_u32 s50, s50, s45\ns_lshl_b32 s50, s50, 9\ns_add_u32 s50, s50, %d\ns_mov_b32 exec_hi, 0\nv_mov_b32 v28, -1\nv_mov_b32 v29, 0\nv_mov_b32 v30, -1\nv_mov_b32 v31, 0" % (Q1 + Q1X))
a("buffer_store_dwordx4 v[28:31], v3, %s, s50 offen" % WS); execall()
a("s_barrier")
stz(); st(1)
a("s_load_dword s46, s[4:5], 0")
masks(16, 1)
a("v_cmp_gt_u32 vcc, 8, v12")
for r in range(4): a("v_cndmask_b32 v%d, 0, v%d, vcc" % (24+r, 16+r))
a("s_waitcnt vmcnt(17)")
if opt["dbgs"]: a("s_memtime s[34:35]\ns_waitcnt lgkmcnt(0)\ns_mov_b32 s68, s64\ns_mov_b32 s71, s64\ns_mov_b32 s69, s24\ns_mov_b32 s70, s26\ns_mov_b32 s72, s28\ns_mov_b32 s73, s30\ns_mov_b32 s74, s32\ns_mov_b32 s75, s34")
vf = 32
for k in range(4): a("v_lshlrev_b32 v%d, 16, v%d\nv_and_b32 v%d, 0xffff0000, v%d" % (vf+2*k, 4+k, vf+2*k+1, 4+k))
a("v_add_f32 v40, v32, v33\nv_add_f32 v41, v34, v35\nv_add_f32 v42, v36, v37\nv_add_f32 v43, v38, v39\nv_add_f32 v40, v40, v41\nv_add_f32 v42, v42, v43\nv_add_f32 v40, v40, v42")
allred("v_add_f32", 40, 41)
a("v_mul_f32 v40, 0x%x, v40" % f2u(1/512))
for k in range(8): a("v_sub_f32 v%d, v%d, v40" % (vf+k, vf+k))
a("v_mul_f32 v42, v32, v32")
for k in range(1, 8): a("v_fmac_f32 v42, v%d, v%d" % (vf+k, vf+k))
allred("v_add_f32", 42, 41)
a("v_mul_f32 v42, 0x%x, v42" % f2u(1/512))
rbf(42); rbf(40)
a("v_add_f32 v42, 0x%x, v42" % f2u(1e-5)); rbf(42)
a("v_sqrt_f32 v42, v42\nv_lshlrev_b32 v13, 16, v13\nv_sub_f32 v13, v13, v40\nv_lshlrev_b32 v14, 16, v14\nv_sub_f32 v14, v14, v40"); rbf(42)
a("v_rcp_f32 v43, v42"); rbf(13); rbf(14)
for v in (13, 14): a("v_mul_f32 v41, v%d, v43\nv_fma_f32 v%d, -v41, v42, v%d\nv_fma_f32 v%d, v%d, v43, v41\nv_cvt_pk_bf16_f32 v%d, v%d, v%d" % ((v,)*8))
a("v_lshlrev_b32 v1, 2, v2\nv_add_u32 v1, %d, v1\nds_write2st64_b32 v1, v13, v14 offset1:1" % L_XN)
a("s_and_b32 s55, s45, 1\ns_lshl_b32 s55, s55, 8\ns_add_u32 s55, s55, %d\nv_lshl_add_u32 v1, v11, %d, s55" % (L_XN, (6, 4)[RM]))
for q in range(4): a("ds_read_b128 %s, v1 offset:%d" % (vr(32+4*q), (16, 64)[RM]*q))
a("v_lshlrev_b32 v1, 5, v12\nv_lshl_add_u32 v1, v11, 4, v1\ns_xor_b32 s52, s50, 0x%x" % Q1X)
a("s_waitcnt lgkmcnt(0)\ns_add_u32 s46, s46, 1\ns_and_b32 s47, s46, 0xff\nv_mov_b32 v13, s47\ns_movk_i32 s51, 0xff")
st(2)
for k, t in enumerate(ORDER):
    selA(64+4*(k&1), 32+t, 24)
    a("s_waitcnt vmcnt(%d)" % (16-k))
    mfma(28, 64+4*(k&1), 128+4*t, "0" if k == 0 else None)
for r in range(4): a("v_bfi_b32 v%d, s51, v13, v%d" % (28+r, 28+r))
setexec(0xffffffff, 0)
a("buffer_store_dwordx4 v[28:31], v1, %s, s50 offen" % WS)
a("buffer_store_dwordx4 v[28:31], v1, %s, s52 offen sc1" % WS)
execall()
a("s_barrier")
st(3)
a("s_cmp_eq_u32 s91, 0\ns_cbranch_scc1 L_attn0\ns_mov_b32 s44, 0\ns_mov_b32 s45, 0\ns_lshl_b32 s49, s42, 3\ns_add_u32 s49, s49, s43\ns_branch L_wtail")
a("L_padb:\ns_branch L_e1\nL_notw0:")
a("""s_lshr_b32 s45, s3, 2
s_add_u32 s43, s43, s45
s_lshl1_add_u32 s44, s45, s3
s_and_b32 s44, s44, 3
s_lshl_b32 s50, s43, 19
s_add_u32 s50, s50, s51
s_lshl_b32 s49, s42, 3
s_add_u32 s49, s49, s43""")
fmt("ws"); fmt("wuk"); stz()
a("s_cmp_eq_u32 s3, 1\ns_waitcnt lgkmcnt(0)\ns_barrier\ns_load_dword s46, s[4:5], 0\ns_cbranch_scc0 L_noearly")
def wukloads(vo=10, so=50):
    slice_loads(vo, so, "wuk", opt["ntu"])
wukloads()
a("L_noearly:\nv_and_b32 v24, 31, v2\nv_lshrrev_b32 v25, 5, v2\nv_lshlrev_b32 v26, 6, v12\nv_lshl_add_u32 v26, v25, 16, v26\ns_cmp_eq_u32 s3, 2\ns_cbranch_scc0 L_noclr")
for r in range(4): a("v_mov_b32 v%d, -1" % (20+r))
a("""s_lshl_b32 s53, s42, 11
s_lshl_b32 s54, s43, 4
s_add_u32 s54, s54, s53
s_lshr_b32 s54, s54, 1
s_add_u32 s54, s54, %d
buffer_store_dwordx4 v[20:23], v26, %s, s54 offen sc1
s_lshl_b32 s55, s43, 8
s_add_u32 s53, s53, s55
s_add_u32 s53, s53, %d
s_lshl_b32 s55, s43, 4
s_add_u32 s55, s55, s42
s_lshl_b32 s55, s55, 9
s_add_u32 s55, s55, %d
s_sub_u32 s55, s55, s53
v_mul_lo_u32 v25, v25, s55
v_lshl_add_u32 v25, v24, 4, v25
buffer_store_dwordx4 v[20:23], v25, %s, s53 offen sc1""" % (H4, WS, GU, H5, WS))
a("L_noclr:")
masks(16, 1)
a("s_waitcnt lgkmcnt(0)\ns_add_u32 s46, s46, 1\ns_and_b32 s47, s46, 0xff")
a("v_lshlrev_b32 v1, 10, v11\nv_lshl_add_u32 v1, v12, 5, v1\ns_lshl_b32 s52, s42, 12\ns_add_u32 s52, s52, %d" % (Q1 + Q1X*opt["loc1"]))
a("s_cmp_eq_u32 s44, 1\ns_cbranch_scc1 L_stageb")
walk("B", 4)
a("s_barrier")
a("s_cmp_eq_u32 s3, 2\ns_cbranch_scc0 L_wtail\ns_waitcnt vmcnt(0)\ns_mov_b32 exec_lo, 0\nbuffer_store_dwordx4 v[20:23], v26, %s, s54 offen\ns_mov_b64 exec, -1\ns_branch L_wtail" % WS)
a("L_stageb:\nv_mov_b32 v15, v10\ns_mov_b32 s91, s50")
tailsetup()
tagmasks2(48, 5)
if RM: a("v_and_b32 v5, 3, v2\nv_lshlrev_b32 v5, 6, v5\nv_and_b32 v6, 12, v2\nv_lshl_add_u32 v60, v6, 2, v5")
else: a("v_mov_b32 v60, v3")
a("s_cmp_eq_u32 s3, 1\ns_barrier\ns_cbranch_scc1 L_wukdone")
wukloads(15, 91)
a("L_wukdone:\ns_waitcnt vmcnt(%d)" % opt["h1k"])
st(1)
L = loop_head("h1")
for n in range(4): a("buffer_load_dwordx4 %s, v1, %s, s52 offen offset:%d sc1" % (vr(32+4*n), WS, (n>>1)*512 + (n&1)*16))
stub("B")
a("s_waitcnt vmcnt(0)")
for r in range(16): a("v_xor_b32 v%d, s47, v%d" % (32+r, 32+r))
a("v_or_b32 v5, v32, v33")
for r in range(2, 16, 2): a("v_or3_b32 v5, v5, v%d, v%d" % (32+r, 33+r))
a("v_and_b32 v5, 0xff, v5\nv_cmp_ne_u32 vcc, 0, v5")
retry(L, (52, Q1X))
st(2); cnt(0)
for e in range(8): a("v_add_f32 v%d, v%d, v%d" % (32+e, 32+e, 40+e))
for e in range(4): a("v_permlane32_swap_b32 v%d, v%d" % (32+e, 36+e))
for e in range(4): a("v_add_f32 v%d, v%d, v%d" % (32+e, 32+e, 36+e))
for e in range(2): a("v_permlane16_swap_b32 v%d, v%d" % (32+e, 34+e))
for e in range(2): a("v_add_f32 v%d, v%d, v%d" % (32+e, 32+e, 34+e))
a("v_cvt_pk_bf16_f32 v40, v32, v33\nv_cvt_pk_bf16_f32 v41, v32, v33\nv_permlane16_swap_b32 v40, v41")
a("v_mov_b32 v42, v40\nv_mov_b32 v43, v41\nv_permlane32_swap_b32 v40, v42\nv_permlane32_swap_b32 v41, v43")
for t in range(16): a("v_dot2_f32_bf16 v%d, v%d, v40, 0" % (64+t, 128+4*t))
for k in range(1, 4):
    for t in range(16): a("v_dot2c_f32_bf16 v%d, v%d, v%d" % (64+t, 128+4*t+k, 40+k))
for t in range(8): dpp("v_add_f32", 64+t, 64+t, 64+t, "row_ror:8", 0x3)
for t in range(8): dpp("v_add_f32", 64+t, 72+t, 72+t, "row_ror:8", 0xc)
for t in range(4): dpp("v_add_f32", 64+t, 64+t, 64+t, "row_shl:4", 0x5)
for t in range(4): dpp("v_add_f32", 64+t, 68+t, 68+t, "row_shr:4", 0xa)
for ctl in ("quad_perm:[1,0,3,2]", "quad_perm:[2,3,0,1]"):
    for t in range(4): dpp("v_add_f32", 64+t, 64+t, 64+t, ctl)
SC = (128 ** -0.5) * math.log2(math.e)
for t in range(4): a("v_mul_f32 v%d, 0x%x, v%d" % (64+t, f2u(SC * 2.0**-20), 64+t))
a("v_cvt_pk_bf16_f32 v68, v64, v65\nv_cvt_pk_bf16_f32 v69, v66, v67")
a("ds_bpermute_b32 v68, v60, v68\nds_bpermute_b32 v69, v60, v69")
a("v_lshlrev_b32 v1, 3, v2\ns_lshl_b32 s50, s49, 7\ns_add_u32 s50, s50, %d\ns_mov_b64 exec, 0xffff\ns_barrier\ns_waitcnt lgkmcnt(0)" % QA)
a("v_xor_b32 v68, v68, v48\nv_xor_b32 v69, v69, v49\nbuffer_store_dwordx2 v[68:69], v1, %s, s50 offen sc1" % WS)
execall()
st(3)
a("s_branch L_wtail1")
stub("B", True)
a("L_wtail:")
tailsetup()
a("s_barrier\nL_wtail1:")
OWN = []
for n in range(4): OWN.append("s_mov_b32 m0, s59\ns_addk_i32 s59, 1024\nbuffer_load_dwordx4 v%d, %s, s58 offen %s lds\ns_addk_i32 s58, 8192" % (50 + (n&1), srd("wuv"), NTW))
if opt["ptk"]: a("s_barrier")
for l in OWN[:opt["ptk"]]:
    a(l); a("s_waitcnt vmcnt(0)")
    if opt["pnap"]: a("s_sleep %d" % opt["pnap"])
if opt["nsig"]:
    a("s_cmp_eq_u32 s3, 3\ns_cbranch_scc0 L_wtail2\ns_lshl_b32 s50, s40, 7\ns_add_u32 s50, s50, %d\nv_lshlrev_b32 v5, 2, v12" % SG)
    def sgpoll(L, out, off, k):
        a("s_movk_i32 s48, 24\n%s:\nbuffer_load_dword v6, v5, %s, s50 offen offset:%d sc1\ns_sub_u32 s48, s48, 1\ns_cbranch_scc1 %s\ns_waitcnt vmcnt(0)\nv_cmp_eq_u32 vcc, s46, v6\ns_bcnt1_i32_b64 s51, vcc\ns_cmp_lt_u32 s51, %d\ns_cbranch_scc1 %s" % (L, WS, off, out, 4*k, L))
    if opt["nb"]:
        fmt("ckv")
        a("s_lshr_b32 s53, s41, 1\ns_lshl4_add_u32 s52, s40, s53\ns_lshl_b32 s52, s52, 13\ns_add_u32 s52, s52, %d\nv_lshlrev_b32 v1, 7, v2" % ((16 - opt["nb"]) << 20))
        if opt["ns1"]:
            sgpoll("L_sg1", "L_sg1x", 64, opt["ks1"])
            a("s_bitcmp1_b32 vcc_lo, s53\ns_cbranch_scc1 L_sg1x")
        else: a("s_sleep 2")
        for n in range(opt["nb"]): a("buffer_load_dword v61, v1, %s, s52 offen\ns_add_u32 s52, s52, 0x100000" % srd("ckv"))
        a("L_sg1x:")
    sgpoll("L_sg", "L_wtail2", 0, opt["ksig"])
a("L_wtail2:")
stub("B")
a("s_barrier")
for k in range(opt["dly"]): a("s_sleep 8")
st(4)
TK = opt["tk"]
if opt["fake"] & 1: a("s_andn2_b32 s61, s61, 127")
if opt["fake"] & 2: a("v_bfrev_b32 v10, 1\nv_bfrev_b32 v50, 1\nv_bfrev_b32 v51, 1")
for n in range(2):
    for mi, b in enumerate(("wg", "wu")):
        a("buffer_load_dwordx4 %s, v10, %s, s61 offen offset:%d %s" % (vr(128+8*n+4*mi), srd(b), n*(2688 if opt["fake"] & 1 else 2752), opt["ntg"]))
        if 2*n + mi < TK: a("s_waitcnt vmcnt(0)")
OWN1 = OWN[opt["ptk"]:]
a("s_lshl_b32 s50, s3, 6\ns_add_u32 s50, s50, %d\nv_lshl_add_u32 v1, v8, 3, s50\nds_read_b64 v[32:33], v1\ns_barrier" % L_XN)
for k, l in enumerate(OWN1):
    a(l)
    if 4 + k < TK: a("s_waitcnt vmcnt(0)")
a("s_waitcnt lgkmcnt(0)")
selA(64, 32, 16); selA(68, 33, 16)
a("s_waitcnt vmcnt(%d)" % len(OWN1))
for n in range(2):
    for mi in range(2): mfma(72+4*mi, 64+4*n, 128+8*n+4*mi, "0" if n == 0 else None)
a("s_cmp_eq_u32 s44, 1\ns_cbranch_scc0 L_noqd\ns_lshl_b32 s50, s49, 2\ns_add_u32 s50, s50, %d\nv_mov_b32 v70, s46\ns_mov_b64 exec, 1\nbuffer_store_dword v70, v3, %s, s50 offen sc1\ns_mov_b64 exec, -1\nL_noqd:\ns_nop 7" % (QD, WS))
def comb(x, y):
    for r in range(4): a("v_permlane32_swap_b32 v%d, v%d" % (x+r, y+r))
    for r in range(4): dpp("v_add_f32", x+r, y+r, x+r, "row_ror:8")
comb(72, 76)
setexec(0x00ff00ff, 0x00ff00ff)
a("ds_write_b128 v57, v[72:75] offset:%d" % L_FP); execall()
a("s_cmp_eq_u32 s3, 5\ns_waitcnt lgkmcnt(0)\ns_barrier\ns_cbranch_scc0 L_nogup")
sum8(L_FP)
a("buffer_store_dwordx2 v[32:33], v53, %s, s84 offen sc1\nL_nogup:" % WS)
if opt["tb"]:
    ptr("wo"); ptr("wd"); fmt("wo")
    a("""s_cmp_lt_u32 s3, 3
s_cbranch_scc0 L_notb
s_lshl_b32 s50, s42, 7
s_lshl_b32 s51, s3, 5
s_add_u32 s50, s50, s51
s_add_u32 s50, s50, 64
s_add_u32 s51, s57, 4
s_lshl_b32 s51, s51, 3
s_sub_u32 s52, s56, 4
s_lshl_b32 s52, s52, 4
s_cmp_lt_u32 s3, 2
s_cselect_b32 s50, s50, s51
s_cselect_b32 s52, 64, s52
s_waitcnt lgkmcnt(0)
s_cselect_b64 s[28:29], s[28:29], s[92:93]
s_cselect_b32 s30, s30, %d
s_lshl_b32 s50, s50, 10
s_lshl_b32 s51, s90, 8
s_add_u32 s50, s50, s51
v_lshrrev_b32 v5, 1, v2
v_lshlrev_b32 v5, 10, v5
v_and_b32 v6, 1, v2
v_lshl_add_u32 v5, v6, 7, v5
v_cmp_gt_u32 vcc, s52, v2
s_mov_b64 exec, vcc
buffer_load_dword v61, v5, %s, s50 offen
s_mov_b64 exec, -1
L_notb:
s_waitcnt lgkmcnt(0)""" % (SIZES["wd"], srd("wo")))
st(5)
BULK = "\n".join("buffer_load_dwordx4 %s, v7, %s, s%d offen sc1" % (vr(96+4*n), WS, 80+n) for n in range(4))
a("s_mov_b32 s52, 0x000f000f\ns_mov_b32 s53, s52\ns_mov_b32 s60, 0x00010001\ns_mov_b32 s61, s60\ns_mov_b32 s59, 0xffff\ns_mov_b32 s48, 0\ns_waitcnt vmcnt(%d)" % opt["mlpos"])
st(6)
a("L_ml:\ns_mov_b64 exec, s[52:53]\nbuffer_load_dwordx4 v[28:31], v54, %s, s55 offen sc1\ns_add_u32 s48, s48, 1\ns_cmp_ge_u32 s48, %d\ns_cselect_b64 s[50:51], s[52:53], 0\ns_waitcnt vmcnt(0)" % (WS, SPIN))
a("v_cmp_eq_u32 vcc, s46, v30\nv_cmp_eq_u32 s[88:89], s46, v31\ns_and_b64 vcc, vcc, s[88:89]\ns_or_b64 vcc, vcc, s[50:51]\ns_cbranch_vccz L_ml")
a("s_andn2_b64 s[52:53], s[52:53], vcc\ns_cbranch_scc1 L_ml")
cnt(1)
setexec(0x000f000f, 0x000f000f)
a("ds_write_b64 v55, v[28:29] offset:%d\ns_mov_b64 exec, -1\ns_waitcnt lgkmcnt(0)\ns_barrier" % L_WT)
a(BULK)
a("ds_read_b128 v[32:35], v3 offset:%d" % L_WT)
imgrd(192, 52, L_U, 4)
a("s_mov_b32 s54, 0x40004000\ns_mov_b32 s48, 0\ns_mov_b64 s[88:89], -1\ns_waitcnt lgkmcnt(8)")
st(7)
a("v_max_f32 v5, v32, v34")
allred("v_max_f32", 5, 6)
a("v_sub_f32 v29, v28, v5\nv_sub_f32 v32, v32, v5\nv_sub_f32 v34, v34, v5\nv_exp_f32 v29, v29\nv_exp_f32 v32, v32\nv_exp_f32 v34, v34\nv_mul_f32 v28, v32, v33\nv_fmac_f32 v28, v34, v35")
allred("v_add_f32", 28, 6)
a("v_rcp_f32 v28, v28\nv_mul_f32 v29, v29, v28\nv_cvt_pk_bf16_f32 v29, v29, v29")
for n in range(4):
    for r in range(4): dpp("v_and_b32", 64+4*n+r, 29, 24+r, "row_newbcast:%d" % n)
a("L_pt:")
for n in range(4):
    a("s_waitcnt vmcnt(%d)" % (3-n))
    for k in range(4): a("v_xor_b32 v%d, v%d, v%d" % (96+4*n+k, 96+4*n+k, 20+k))
    a("v_or_b32 v5, v96, v97" if n == 0 else "v_or3_b32 v5, v5, v%d, v%d" % (96+4*n, 97+4*n))
    a("v_or3_b32 v5, v5, v%d, v%d" % (98+4*n, 99+4*n))
    mfma(80, 64+4*n, 96+4*n, "0" if n == 0 else None)
a("v_and_b32 v5, s54, v5\nv_cmp_ne_u32 vcc, 0, v5\ns_and_b64 vcc, vcc, s[88:89]\ns_cbranch_vccnz L_ptslow\nL_ptok:")
cold.append("L_ptslow:\ns_add_u32 s48, s48, 1\ns_cmp_ge_u32 s48, %d\ns_cbranch_scc1 L_ptok\n" % SPIN +
  "s_cmp_lt_u32 s48, 8\ns_cbranch_scc1 L_ptre\n" +
  "s_lshl_b32 s50, s90, 2\ns_lshl_b32 s51, s3, 9\ns_add_u32 s50, s50, s51\ns_add_u32 s50, s50, %d\n" % DF +
  "v_lshlrev_b32 v5, 5, v12\nbuffer_load_dword v5, v5, %s, s50 offen sc1\ns_waitcnt vmcnt(0)\nv_cmp_ne_u32 vcc, s46, v5\n" % WS +
  "s_cmp_eq_u64 vcc, 0\ns_cselect_b64 s[88:89], 0, -1\nL_ptre:\n" + BULK + "\ns_waitcnt vmcnt(0)\ns_branch L_pt")
cnt(2); st(8)
a("s_mov_b32 exec_hi, 0\nv_cvt_pk_bf16_f32 v80, v80, v81\nv_cvt_pk_bf16_f32 v81, v82, v83\nds_write_b64 v63, v[80:81] offset:%d" % L_R1); execall()
a("s_waitcnt lgkmcnt(0)\ns_barrier")
for ks in range(4): a("ds_read_b128 %s, v4 offset:%d" % (vr(32+4*ks), L_R1 + 64*ks))
for ks in range(4):
    a("s_waitcnt lgkmcnt(%d)" % (3-ks))
    mfma(84, 32+4*ks, 192+4*ks, "0" if ks == 0 else None)
a("v_add_f32 v84, v84, v85\nv_add_f32 v86, v86, v87\nv_add_f32 v85, v84, v86\nv_add_f32 v84, v84, v86\nv_permlane16_swap_b32 v84, v85\nv_add_f32 v84, v84, v85\ns_mov_b64 exec, 0xffff\nv_cvt_pk_bf16_f32 v84, v84, v84")
a("buffer_store_short v84, v62, %s, s86 offen" % WS)
st(9)
if opt["gbar"]: a("s_barrier")
a("buffer_store_short v84, v62, %s, s85 offen sc1" % WS)
a("s_branch L_fin")

a("L_pada:\ns_branch L_e1\nL_attn:")
fmt("wuk"); fmt("ws"); stz()
if opt["tm"]: a("v_bfe_u32 v28, v2, 1, 3\nv_lshl_add_u32 v28, v28, 2, v11")
else: a("v_lshrrev_b32 v28, 1, v2")
a("""v_lshlrev_b32 v28, 13, v28
v_and_b32 v29, 1, v2
v_lshl_add_u32 v28, v29, 7, v28
s_lshl_b32 s53, s43, 1
s_add_u32 s53, s53, s3
s_add_u32 s53, s53, 1
s_lshl_b32 s53, s53, 18
s_add_u32 s53, s53, s51
""")
if opt["dbgn"] != 3: a("s_waitcnt lgkmcnt(0)")
if opt["dbgn"] == 3:
    a("s_barrier\ns_waitcnt lgkmcnt(0)\ns_memtime s[28:29]\ns_waitcnt lgkmcnt(0)\ns_sub_u32 s70, s28, s24\ns_sub_u32 s71, s24, s64\ns_mov_b32 s72, s70")
elif opt["dbgn"]:
    a("s_and_b32 s56, s3, 1\ns_lshl_b32 s56, s56, 13\ns_lshl_b32 s57, s2, 14\ns_and_b32 s57, s57, 0x1fffff\ns_add_u32 s56, s56, s57\ns_mul_i32 s57, s3, 0x2c0\ns_add_u32 s56, s56, s57")
    if opt["dbgn"] == 2: a("s_barrier")
    for k in range(3):
        a("s_memtime s[24:25]\ns_waitcnt lgkmcnt(0)\ns_load_dword s26, s[12:13], s56\ns_waitcnt lgkmcnt(0)\ns_memtime s[28:29]\ns_waitcnt lgkmcnt(0)\ns_sub_u32 s%d, s28, s24\ns_add_u32 s56, s56, 0x400200" % (77+k))
        if k == 0 and opt["dbgn"] == 1: a("s_barrier")
    a("s_mov_b32 s70, s77\ns_mov_b32 s71, s78\ns_mov_b32 s72, s79")
else: a("s_barrier")
a("s_cmp_lt_u32 s3, 3\ns_load_dword s46, s[4:5], 0")
if opt["tu"]: a("s_cbranch_scc0 L_notouch\nbuffer_load_dword v61, v28, %s, s53 offen\nL_notouch:" % srd("wuk"))
KSH, KSTEP = ((13, 0x100000), (17, 8192))[opt["kmap"]]
def asetup():
    fmt("ckv")
    a("s_lshl_b32 s44, s40, 4\ns_lshr_b32 s50, s41, 1\ns_add_u32 s44, s44, s50\ns_lshl_b32 s54, s3, 5\nv_xor_b32 v14, s54, v3")
    if opt["ntmap"]:
        cntr = dict(w=0, s=0, x=0, n=0); a("s_mov_b32 s50, 0")
        for b, c in enumerate(opt["ntmap"]):
            k = cntr[c]; cntr[c] += 1
            if c != "n": a("s_bfe_u32 s52, s%d, 0x%x\ns_lshl_b32 s52, s52, %d\ns_or_b32 s50, s50, s52" % (dict(w=3, s=44, x=40)[c], 0x10000 | k, 10+b))
        assert cntr == dict(w=3, s=4, x=3, n=4)
        a("s_lshl_b32 s52, s3, 10")
    elif opt["mlo"] >= 0:
        lo = opt["mlo"]
        if opt["mperm"] == 0: a("s_lshl_b32 s50, s44, %d\ns_lshl_b32 s52, s3, 10\ns_add_u32 s50, s50, s52" % (13+lo))
        elif opt["mperm"] == 1: a("s_lshr_b32 s50, s41, 1\ns_lshl3_add_u32 s50, s50, s40\ns_lshl_b32 s50, s50, %d\ns_lshl_b32 s52, s3, 10\ns_add_u32 s50, s50, s52" % (13+lo))
        elif opt["mperm"] == 2: a("s_and_b32 s50, s44, 7\ns_lshl_b32 s50, s50, 10\ns_lshr_b32 s52, s44, 3\ns_lshl3_add_u32 s52, s52, s3\ns_lshl_b32 s52, s52, %d\ns_add_u32 s50, s50, s52\ns_lshl_b32 s52, s3, 10" % (13+lo))
        elif opt["mperm"] == 3: a("s_and_b32 s50, s44, 1\ns_lshl_b32 s50, s50, 2\ns_and_b32 s52, s3, 3\ns_add_u32 s50, s50, s52\ns_lshl_b32 s50, s50, 10\ns_andn2_b32 s52, s44, 1\ns_lshr_b32 s51, s3, 2\ns_add_u32 s52, s52, s51\ns_lshl_b32 s52, s52, %d\ns_add_u32 s50, s50, s52\ns_lshl_b32 s52, s3, 10" % (13+lo))
    elif opt["numa"] < 0: a("s_lshl3_add_u32 s52, s40, s3\ns_lshl4_add_u32 s50, s52, s50\ns_lshl_b32 s50, s50, 10\ns_lshl_b32 s52, s3, 10")
    else: a("s_and_b32 s50, s44, 63\ns_lshl_b32 s50, s50, 14\ns_lshr_b32 s52, s44, 6\ns_lshl_b32 s52, s52, 13\ns_add_u32 s50, s50, s52\ns_lshl_b32 s52, s3, 10\ns_add_u32 s50, s50, s52\ns_mov_b32 s101, %d" % (opt["numa"] << 13))
DMA = "s_mov_b32 m0, s52\ns_addk_i32 s52, 8192\nbuffer_load_dwordx4 v14, %s, s50 offen %s lds\ns_add_u32 s50, s50, %d\nv_xor_b32 v14, 16, v14" % (srd("ckv"), NT, KSTEP)
if opt["ntmap"]:
    pre = "s_mov_b32 s51, s50\n"; k = 0
    for b, c in enumerate(opt["ntmap"]):
        if c == "n":
            pre += "s_bfe_u32 s101, s52, 0x%x\ns_lshl_b32 s101, s101, %d\ns_or_b32 s51, s51, s101\n" % (0x10000 | (13+k), 10+b); k += 1
    DMA = pre + DMA.replace("s50 offen", "s51 offen").replace("s_add_u32 s50, s50, %d\n" % KSTEP, "")
elif opt["mlo"] >= 0:
    lo = opt["mlo"]
    pre = "s_lshr_b32 s101, s52, %d\ns_lshl_b32 s101, s101, %d\ns_xor_b32 s51, s50, s101\n" % (13+lo, 20+lo)
    if lo: pre += "s_and_b32 s101, s52, 0x%x\ns_xor_b32 s51, s51, s101\n" % (((1 << lo)-1) << 13)
    if opt["mmul"]: pre += "s_lshr_b32 s101, s52, %d\ns_mul_i32 s101, s101, %d\ns_and_b32 s101, s101, 127\ns_lshl_b32 s101, s101, %d\ns_xor_b32 s51, s51, s101\n" % (13+lo, opt["mmul"], 13+lo)
    DMA = pre + DMA.replace("s50 offen", "s51 offen").replace("s_add_u32 s50, s50, %d\n" % KSTEP, "")
if opt["numa"] >= 0:
    DMA = "s_lshr_b32 s51, s50, 21\ns_lshr_b32 s51, s101, s51\ns_and_b32 s51, s51, 0x2000\ns_xor_b32 s51, s51, s50\n" + DMA.replace("s50 offen", "s51 offen")
asetup()
for n in range(opt["pre"]): a(DMA)
a("s_movk_i32 s60, %d\ns_waitcnt lgkmcnt(0)\ns_add_u32 s46, s46, 1\ns_branch L_aset\nL_attn0:" % (16 - opt["pre"]))
asetup()
for n in range(opt["k0"]): a(DMA)
a("s_movk_i32 s60, %d" % (16 - opt["k0"]))
a("s_lshl_b32 s61, s44, 9\ns_add_u32 s61, s61, %d" % ML)
a("v_mov_b32 v36, 0\nv_mov_b32 v37, 0\nv_mov_b32 v38, 0\nv_mov_b32 v39, -1\ns_mov_b32 exec_hi, 0\nbuffer_store_dwordx4 v[36:39], v3, %s, s61 offen sc1\ns_mov_b64 exec, -1" % WS)
a("L_aset:\ns_and_b32 s55, s3, 3\nv_and_b32 v9, 7, v2\nv_lshrrev_b32 v8, 3, v2\nv_lshrrev_b32 v10, 5, v2")
a("s_lshl_b32 s51, s40, 6\ns_add_u32 s51, s51, s41\ns_lshl_b32 s51, s51, 1\ns_add_u32 s87, s51, %d\ns_lshl_b32 s61, s44, 9\ns_add_u32 s61, s61, %d" % (SG, ML))
a("v_lshlrev_b32 v7, 9, v11\nv_lshl_add_u32 v7, v12, 4, v7\nv_add_u32 v7, %d, v7" % L_PX)
if opt["ta"]:
    ptr("wo"); fmt("wo")
    a("v_lshrrev_b32 v13, 1, v2\nv_lshlrev_b32 v13, 12, v13\nv_and_b32 v29, 1, v2\nv_lshl_add_u32 v13, v29, 7, v13\ns_cmp_lt_u32 s55, %d\ns_cselect_b32 s56, 0, 0x80000000\nv_add_u32 v13, s56, v13" % opt["ta"])
    a("s_lshl_b32 s86, s42, 17\ns_sub_u32 s56, 3, s55\ns_lshl_b32 s56, s56, 10\ns_add_u32 s86, s86, s56\ns_lshl_b32 s56, s43, 7\ns_add_u32 s86, s86, s56\ns_waitcnt lgkmcnt(0)")
for b in ("wo","wd","out"): ptr(b)
for b in ("wo","wd","out","x"): fmt(b)
units()
imgaddr(13, 0)
a("s_xor_b32 s59, s3, %d" % (4 if opt["eswap"] else 0))
a("""v_lshl_add_u32 v13, v11, 10, v13
v_xor_b32 v15, 0x80, v13
s_lshr_b32 s51, s59, 1
s_lshl_b32 s81, s51, 5
s_and_b32 s53, s59, 1
s_lshl_b32 s58, s53, 2
s_add_u32 s81, s81, s58
s_lshl_b32 s58, s42, 7
s_add_u32 s81, s81, s58
s_lshl_b32 s81, s81, 10
s_lshl_b32 s58, s90, 8
s_add_u32 s81, s81, s58
s_and_b32 s82, s59, 4
s_lshl1_add_u32 s53, s53, s82
s_add_u32 s82, s57, s53
s_lshl_b32 s82, s82, 13
s_and_b32 s51, s51, 1
s_lshl_b32 s51, s51, 12
s_add_u32 s82, s82, s51
s_add_u32 s82, s82, s58
s_cmp_lt_u32 s53, s56
s_cselect_b32 s47, 0, 0x80000000
s_add_u32 s53, s53, 1
s_cmp_lt_u32 s53, s56
s_cselect_b32 s49, 0, 0x80000000
s_lshl_b32 s83, s59, 12
s_lshl_b32 s86, s59, 11
s_add_u32 s86, s86, 32768
s_waitcnt lgkmcnt(0)""")
if opt["fake"] & 4: a("v_bfrev_b32 v13, 1\nv_bfrev_b32 v15, 1")
ELD = ["s_mov_b32 m0, s83\ns_addk_i32 s83, 1024\nbuffer_load_dwordx4 v%d, %s, s81 offen %s lds\ns_addk_i32 s81, 8192" % ((13, 15)[n&1], srd("wo"), NTW) for n in range(4)] + \
      ["s_mov_b32 m0, s86\ns_addk_i32 s86, 1024\nv_or_b32 v%d, s%d, v%d\nbuffer_load_dwordx4 v%d, %s, s82 offen %s lds\ns_addk_i32 s82, 8192" % ((13, 15)[n], (47, 49)[n], (13, 15)[n], (13, 15)[n], srd("wd"), NTW) for n in range(2)]
a("s_cmp_lt_u32 s3, 4\ns_cbranch_scc0 L_pvset")
a("""v_and_b32 v28, 3, v2
v_bfe_u32 v29, v2, 2, 1
v_bfe_u32 v30, v2, 3, 1
v_lshl_add_u32 v31, v28, 1, v29
v_lshl_add_u32 v29, v31, 1, v30
v_lshl_add_u32 v31, v30, 3, v31
v_and_b32 v30, 16, v2
v_add_u32 v31, v31, v30
s_lshl_b32 s56, s55, 15
v_lshl_add_u32 v31, v31, 10, s56
v_xor_b32 v29, v29, v10""")
for k in range(8): a("v_xor_b32 v%d, %d, v29\nv_lshl_add_u32 v%d, v%d, 4, v31" % (16+k, 2*k, 16+k, 16+k))
a("v_xor_b32 v29, v2, v10")
for k in range(4): a("v_xor_b32 v%d, %d, v29\nv_lshlrev_b32 v%d, 4, v%d\nv_add_u32 v%d, %d, v%d" % (24+k, 2*k, 24+k, 24+k, 24+k, L_Q, 24+k))
a("v_and_b32 v5, 31, v2\nv_lshlrev_b32 v5, 4, v5\nv_add_u32 v5, %d, v5\ns_lshl_b32 s56, s55, 2\nv_add_u32 v4, s56, v5" % L_MX)
a("v_add_u32 v6, %d, v3\ns_lshl_b32 s56, s55, 11\nv_add_u32 v6, s56, v6\ns_mov_b32 s59, 0x%x\ns_branch L_setdone\nL_pvset:" % (L_PX, f2u(2.0**20)))
tagmasks(24, 28)
a("""v_bfe_u32 v28, v2, 2, 2
v_bfe_u32 v29, v2, 4, 1
v_lshl_add_u32 v29, v28, 1, v29
v_bfe_u32 v28, v2, 1, 1
v_lshl_add_u32 v30, v29, 1, v28
v_lshl_add_u32 v29, v10, 4, v29
v_and_b32 v31, 1, v2
v_lshlrev_b32 v31, 3, v31
v_lshl_add_u32 v31, v29, 10, v31
s_lshl_b32 s56, s55, 8
v_add_u32 v31, s56, v31""")
for t in range(8): a("v_xor_b32 v%d, %d, v30\nv_lshl_add_u32 v%d, v%d, 4, v31" % (16+t, 2*t, 16+t, 16+t))
a("""v_lshlrev_b32 v4, 10, v8
v_lshl_add_u32 v4, v9, 4, v4
s_lshl_b32 s80, s55, 13
s_add_u32 s80, s80, %d
v_xor_b32 v5, v8, v9
v_lshlrev_b32 v5, 4, v5
v_lshl_add_u32 v5, v9, 9, v5
s_lshl_b32 s56, s55, 7
s_add_u32 s56, s56, %d
v_add_u32 v5, s56, v5
%s
s_mov_b32 s54, 0x40004000
L_setdone:
s_cmp_eq_u32 s3, 6
s_cselect_b32 s57, %d, -1
s_cselect_b32 s51, 64, 0
s_add_u32 s87, s87, s51
s_cmp_eq_u32 s3, 7
s_cselect_b32 s57, %d, s57
s_cmp_eq_u32 s3, 0
s_cbranch_scc1 L_dma""" % (QA, L_Q, PPROD, 16 - opt["ns1"] if opt["ns1"] else -1, 16 - opt["nsig"] if opt["nsig"] <= 16 else -1))
walk("A", 3)
if opt["hold"]: a("s_waitcnt vmcnt(%d)" % opt["pre"])
a("s_barrier")
SIG = "v_mov_b32 v1, s46\ns_mov_b64 exec, 1\nbuffer_store_dword v1, v3, %s, s87 offen\ns_mov_b64 exec, -1" % WS
def signal(): a("s_cmp_eq_u32 s3, 7\ns_cbranch_scc0 L_nosg\n" + SIG + "\nL_nosg:")
TOUCH = "buffer_load_dword v15, v13, %s, s86 offen" % srd("wo")
def mfma32(d, A, B, c=None):
    a("v_mfma_f32_32x32x16_bf16 %s, %s, %s, %s" % (vr(d, 16), vr(A), vr(B), vr(d, 16) if c is None else c))
a("L_dma:\ns_waitcnt vmcnt(%d)\n%s\ns_sub_u32 s60, s60, 1\ns_cmp_eq_u32 s60, s57\ns_cbranch_scc0 L_dmans\n%s\nL_dmans:\ns_cmp_lg_u32 s60, 0\ns_cbranch_scc1 L_dma" % (WIN-1, DMA + ("\ns_memrealtime s[62:63]\ns_mov_b32 m0, s60\ns_waitcnt lgkmcnt(0)\nv_writelane_b32 v59, s62, m0" if opt["dbgr"] else ""), SIG))
a("s_cmp_lt_u32 s3, 4\ns_waitcnt vmcnt(%d)\ns_barrier\ns_cbranch_scc1 L_qkw" % min(4, opt["qwin"]))
def QLD(j): return "buffer_load_dwordx4 %s, v4, %s, s80 offen offset:%d sc1" % (vr(64+4*j), WS, 128*j)
def trrd(kb, T):
    for t in range(8):
        v = 128 + kb*32 + t*4 + T*2
        a("ds_read_b64_tr_b16 v[%d:%d], v%d offset:%d" % (v, v+1, 16+t, (kb&1)*32768 + T*8192))
def trx(x):
    for t in range(8): a("v_xor_b32 v%d, 0x%x, v%d" % (16+t, x, 16+t))
TP = 0
a(QLD(0)); a(QLD(1)); trrd(0, 0); a(QLD(2)); a(QLD(3)); trrd(1, 0); a(QLD(4)); a(QLD(5)); trx(16); a(QLD(6)); a(QLD(7))
a("s_setprio %d" % opt["pvprio"])
st(3)
trrd(0, 1); trrd(1, 1); trx(0x10000); trrd(2, 1); trx(16); trrd(2, 0)
stub("A")
a("s_mov_b32 s48, 0\ns_mov_b64 s[88:89], -1")
for k in range(4):
    a("s_waitcnt vmcnt(%d)\nL_qchk%d:" % (6 - 2*k + TP, k))
    if opt["dbgq"]: a("s_memtime s[%d:%d]" % (16+2*k, 17+2*k))
    for j in (2*k, 2*k+1):
        for e in range(4): a("v_xor_b32 v%d, v%d, v%d" % (64+4*j+e, 64+4*j+e, 24+e))
        a("ds_write_b128 v5, %s offset:%d" % (vr(64+4*j), 4096*j))
    b = 64 + 8*k
    a("v_or_b32 v29, v%d, v%d\nv_or3_b32 v29, v29, v%d, v%d\nv_or3_b32 v29, v29, v%d, v%d\nv_or3_b32 v29, v29, v%d, v%d" % tuple(range(b, b+8)))
    a("v_and_b32 v29, s54, v29\nv_cmp_ne_u32 vcc, 0, v29\ns_and_b64 vcc, vcc, s[88:89]\ns_cbranch_vccnz L_qslow%d\nL_qok%d:" % (k, k))
    if k < 3 and (opt["qbar"] >> k) & 1:
        a("s_waitcnt lgkmcnt(0)\ns_barrier")
        if opt["qbar"] & ((1 << k) - 1) == 0:
            st(4)
            if opt["nsig"] == 17: signal()
            if opt["eswap"]:
                for l in ELD: a(l)
                TP = 6
    cold.append("L_qslow%d:\ns_movk_i32 s60, %d\ns_branch L_qslow\nL_qre%d:\n" % (k, k, k) + "\n".join(QLD(j) for j in range(2*k, 8)) + "\ns_waitcnt vmcnt(0)\ns_branch L_qchk%d" % k)
cold.append("L_qslow:\ns_add_u32 s48, s48, 1\ns_cmp_lt_u32 s48, 8\ns_cbranch_scc1 L_qre\n" +
  "s_mov_b32 s51, %d\nbuffer_load_dwordx4 v[96:99], v3, %s, s51 offen sc1\ns_waitcnt vmcnt(0)\n" % (QD, WS) +
  "v_xor_b32 v96, s46, v96\nv_xor_b32 v97, s46, v97\nv_xor_b32 v98, s46, v98\nv_xor_b32 v99, s46, v99\nv_or_b32 v96, v96, v97\nv_or3_b32 v96, v96, v98, v99\nv_cmp_ne_u32 vcc, 0, v96\n" +
  "s_cmp_eq_u64 vcc, 0\ns_cselect_b64 s[88:89], 0, -1\ns_cmp_ge_u32 s48, %d\ns_cselect_b64 s[88:89], 0, s[88:89]\nL_qre:\ns_waitcnt vmcnt(0) lgkmcnt(0)\n" % SPIN +
  "s_cmp_eq_u32 s60, 0\ns_cbranch_scc1 L_qre0\ns_cmp_eq_u32 s60, 1\ns_cbranch_scc1 L_qre1\ns_cmp_eq_u32 s60, 2\ns_cbranch_scc1 L_qre2\ns_branch L_qre3")
a("s_waitcnt lgkmcnt(0)\ns_barrier\ns_setprio 0")
if opt["qbar"] == 8:
    st(4)
    if opt["nsig"] == 17: signal()
cnt(0); st(5)
if opt["e2pos"] == 1:
    for l in ELD: a(l)
trrd(3, 0); trx(16); trrd(3, 1)
a("s_barrier")
if opt["nsig"] == 18: signal()
if opt["e2pos"] == 2:
    for l in ELD: a(l)
st(7)
a("s_waitcnt lgkmcnt(0)\ns_barrier")
for b in range(2):
    for kb in range(4): a("ds_read_b128 %s, v7 offset:%d" % (vr(32+16*b+4*kb), kb*2048 + b*256))
st(8)
def epi(b, r):
    o = (32, 64)[b] + 4*r; acc = 64 + 32*b
    return (["v_cvt_pk_bf16_f32 v%d, v%d, v%d" % (o+k, acc+8*k+r, acc+8*k+4+r) for k in range(4)] + ["v_xor_b32 v%d, v%d, v%d" % (o+k, o+k, 24+k) for k in range(4)] +
            ["buffer_store_dwordx4 %s, v3, %s, s%d offen offset:%d sc1" % (vr(o), WS, 84+b, r*1024)])
fill = sum((epi(0, r) for r in range(4)), [])
for b in range(2):
    for kb in range(4):
        if b == 0: a("s_waitcnt lgkmcnt(%d)" % (7 - kb if kb < 3 else 0))
        for t in range(8):
            if not (opt["fake"] & 16 and kb in (1, 2)): mfma(64+32*b+4*t, 32+16*b+4*kb, 128+32*kb+4*t, "0" if kb == 0 else None)
            if (b, kb, t) == (0, 1, 4): stub("A")
            if opt["mlat"] and 32*b + 8*kb + t == opt["mlat"]: a("s_barrier")
            if b == 1 and 8*kb + t >= 5:
                for _ in range(2 if (t & 1 or not opt["fill"]) else 1):
                    if fill: a(fill.pop(0))
assert not fill
st(9)
for r in range(4):
    for l in epi(1, r): a(l)
st(10)
if opt["dbgq"]: a("s_mov_b32 s66, s16\ns_mov_b32 s67, s18\ns_mov_b32 s70, s20\ns_mov_b32 s71, s22\ns_mov_b32 s72, s32\ns_mov_b32 s73, s34\ns_mov_b32 s74, s36")
if opt["mlat"] >= 99: a("s_waitcnt vmcnt(%d)\ns_barrier" % (107 - opt["mlat"]))
if opt["e2pos"] == 0 or opt["gupos"] == 0: a("s_barrier")
if opt["e2pos"] == 0 and not opt["eswap"]:
    for l in ELD: a(l)
a("s_branch L_e")
def ard(s): a("ds_read_b128 %s, v%d offset:%d" % (vr(128+4*s), 16 + (s&7), (s>>3)*256))
def brd(s): a("ds_read_b128 %s, v%d offset:%d" % (vr(64+4*(s&7)), 24 + (s&3), s*1024))
def qkloop(late):
    q = []
    def lw(*xs):
        nonlocal q
        idx = [q.index(x) for x in xs if x in q]
        if idx:
            i = max(idx); a("s_waitcnt lgkmcnt(%d)" % (len(q) - 1 - i)); q = q[i+1:]
    a("s_waitcnt vmcnt(0) lgkmcnt(0)\ns_barrier")
    st(4)
    nb = 0; na = 0
    for s in range(opt["qpf"]):
        brd(s); q.append(("b", s)); nb += 1
        if late: ard(s); q.append(("a", s)); na += 1
    for s in range(32):
        lw(("b", s), ("a", s))
        if not (opt["fake"] & 8 and s >= 14): mfma32(96, 128+4*s, 64+4*(s&7), "0" if s == 0 else None)
        if s % 8 == 8 - opt["qpf"] and s < 24 and (opt["qbar"] >> (s >> 3)) & 1: a("s_barrier")
        if nb < 32: brd(nb); q.append(("b", nb)); nb += 1
        if late and na < 32: ard(na); q.append(("a", na)); na += 1
        if 0 <= s - opt["epos"] < 6 and not opt["eswap"]: a(ELD[s - opt["epos"]])
stub("A", True)
a("L_qkw:\ns_cmp_eq_u32 s3, 3\ns_cbranch_scc1 L_qklate")
for s in range(32): ard(s)
qkloop(False)
a("s_branch L_qkdone")
stub("A", True)
a("L_qklate:")
qkloop(True)
a("L_qkdone:")
stub("A")
a("v_mov_b32 v29, 0x%x\ns_nop %d" % (f2u(20.0), 7 if opt["walk"] else 9))
st(6)
a("v_max3_f32 v28, v96, v97, v98")
for r in range(99, 111, 2): a("v_max3_f32 v28, v28, v%d, v%d" % (r, r+1))
a("v_max_f32 v28, v28, v111\nv_mov_b32 v30, v28\nv_permlane32_swap_b32 v28, v30\nv_max_f32 v28, v28, v30")
a("ds_write_b32 v4, v28\ns_waitcnt lgkmcnt(0)\ns_barrier\nds_read_b128 v[32:35], v5")
st(7)
a("s_waitcnt lgkmcnt(0)\nv_max3_f32 v28, v32, v33, v34\nv_max_f32 v28, v28, v35\nv_fma_f32 v28, v28, s59, v29")
for u in range(2):
    for r in range(96+8*u, 104+8*u): a("v_fma_f32 v%d, v%d, s59, -v28\nv_exp_f32 v%d, v%d" % (r, r, r, r))
    for k in range(4): a("v_cvt_pk_bf16_f32 v%d, v%d, v%d" % (32+4*u+k, 96+8*u+2*k, 97+8*u+2*k))
    a("ds_write_b128 v6, %s offset:%d" % (vr(32+4*u), 1024*u))
a("s_cmp_lt_u32 s3, 2\ns_waitcnt lgkmcnt(0)\ns_barrier")
if opt["stamps"]: st(8); a("s_cmp_lt_u32 s3, 2")
a("s_cbranch_scc0 L_qkidle\ns_lshl_b32 s56, s3, 8\nv_add_u32 v7, s56, v7")
for kb in range(4): a("ds_read_b128 %s, v7 offset:%d" % (vr(32+4*kb), kb*2048))
for k in range(4): a("v_mov_b32 v%d, 0x3f803f80" % (48+k))
a("v_mov_b32 v30, s46\nv_mov_b32 v31, s46\ns_lshl_b32 s56, s3, 4\ns_lshl_b32 s56, 0xffff, s56\ns_waitcnt lgkmcnt(0)")
for kb in range(4): mfma(52, 48, 32+4*kb, "0" if kb == 0 else None)
if opt["mlat"]: a("s_barrier")
a("v_mov_b32 v29, v52\ns_mov_b32 exec_lo, s56\ns_mov_b32 exec_hi, 0\nbuffer_store_dwordx4 v[28:31], v3, %s, s61 offen sc1" % WS)
execall()
st(9)
if opt["mlat"]: a("s_branch L_qkend\nL_qkidle:\ns_barrier\nL_qkend:")
else: a("L_qkidle:")
if opt["gupos"] == 0: a("s_barrier")
if opt["eswap"]:
    for l in ELD: a(l)
a("s_cmp_eq_u32 s3, 2\ns_cbranch_scc0 L_gud")
a("s_lshl_b32 s50, s42, 11\ns_add_u32 s50, s50, %d\nv_lshlrev_b32 v1, 2, v2" % GU)
L = loop_head("gu")
for k in range(8): a("buffer_load_dword v%d, v1, %s, s50 offen offset:%d sc1" % (40+k, WS, 256*k))
a("s_waitcnt vmcnt(0)")
for stp in (4, 2):
    for e in range(stp): a("v_add_f32 v%d, v%d, v%d" % (40+e, 40+e, 40+stp+e))
rbf(40); rbf(41)
a("v_mul_f32 v40, v40, v41\nv_cmp_u_f32 vcc, v40, v40")
retry(L)
cnt(1)
a("v_cvt_pk_bf16_f32 v40, v40, v40\nv_lshlrev_b32 v1, 1, v2\nds_write_b16 v1, v40 offset:%d" % L_HV)
a("L_gud:\ns_waitcnt vmcnt(0)")
if opt["gupos"] and opt["e2pos"] == 0: a("s_barrier")
a("L_e:")
imgaddr(1, 52)
a("""s_lshl_b32 s85, s42, 10
s_add_u32 s85, s85, %d
v_lshlrev_b32 v53, 2, v2
v_lshlrev_b32 v55, 4, v11
s_lshl_b32 s50, s90, 5
s_add_u32 s50, s50, s42
s_lshl_b32 s50, s50, 9
s_lshl_b32 s51, s3, 6
s_add_u32 s50, s50, s51
s_add_u32 s50, s50, %d
s_lshr_b32 s53, s40, 1
s_xor_b32 s54, s53, s90
s_and_b32 s53, s42, 2
s_or_b32 s54, s54, s53
s_xor_b32 s53, s3, 2
s_or_b32 s54, s54, s53
s_and_b32 s53, s42, 1
s_lshl1_add_u32 s52, s40, s53
s_and_b32 s51, s52, 3
s_lshl_b32 s51, s51, 7
s_lshl_b32 s52, s52, 6
s_lshl_b32 s57, s90, 14
s_add_u32 s57, s57, s51
s_add_u32 s57, s57, %d
v_lshlrev_b32 v57, 3, v9
v_lshl_add_u32 v57, v11, 1, v57
v_lshlrev_b32 v56, 11, v8
v_lshl_add_u32 v56, v9, 4, v56
s_waitcnt vmcnt(%d) lgkmcnt(0)
s_barrier
buffer_load_ushort v58, v57, %s, s52 offen
ds_read_b128 v[36:39], v55 offset:%d
ds_read_b128 v[40:43], v55 offset:%d""" % (H4 + H4X*opt["loc4"], H5, H5, 8 if opt["e2pos"] else 0, srd("x"), L_HV, L_HV + 64))
imgrd(144, 52, 32768, 2); imgrd(128, 52, 0, 4)
a("v_cmp_eq_u32 vcc, 0, v12\ns_waitcnt lgkmcnt(0)")
for v in range(36, 44): a("v_cndmask_b32 v%d, 0, v%d, vcc" % (v, v))
mfma(92, 36, 144, "0"); mfma(92, 40, 148)
a("s_lshl_b32 s58, s44, 5\ns_lshl_b32 s51, s3, 2\ns_xor_b32 s51, s51, 16\ns_add_u32 s58, s58, s51\ns_add_u32 s58, s58, %d\nv_mov_b32 v4, s46\ns_waitcnt vmcnt(0)\nv_lshlrev_b32 v58, 16, v58" % DF)
DFST = "s_mov_b64 exec, 1\nbuffer_store_dword v4, v3, %s, s58 offen sc1\ns_mov_b64 exec, -1" % WS
st(1)
H4L = "buffer_load_dwordx4 v[%d:%d], v3, " + WS + ", s85 offen sc1"
if opt["pp4"]:
    a("s_movk_i32 s48, 40\n" + H4L % (36, 39) + "\nL_p4:\n" + H4L % (40, 43) + "\ns_waitcnt vmcnt(1)\nv_cmp_eq_u32 vcc, -1, v39\ns_cbranch_vccz L_p4a\n" + H4L % (36, 39))
    a("s_sub_u32 s48, s48, 1\ns_cbranch_scc1 L_p4x\ns_waitcnt vmcnt(1)\nv_cmp_eq_u32 vcc, -1, v43\ns_cbranch_vccnz L_p4")
    for g in range(4): mfma(64+4*g, 40, 128+4*g, vr(92) if g == 0 else "0")
    a("s_branch L_p4j\nL_p4x:")
L = loop_head("h4")
a(H4L % (36, 39) + "\ns_waitcnt vmcnt(0)\nL_p4a:")
mfma(64, 36, 128, vr(92))
a("v_cmp_eq_u32 vcc, -1, v39")
mfma(68, 36, 132, "0")
retry(L, (85, H4X), after=(0 if opt["pp4"] else 48), once=DFST)
mfma(72, 36, 136, "0"); mfma(76, 36, 140, "0")
a("L_p4j:")
if opt["pp4"]: a("s_nop 3")
for g in range(4):
    for k in range(2): a("v_add_f32_dpp v%d, v%d, v%d quad_perm:[0,1,2,3] row_mask:0x%x bank_mask:0xf" % (80+k, 64+4*g+2*k, 65+4*g+2*k, 1 << g))
a("v_add_f32 v82, v80, v81\nv_add_f32 v80, v80, v81\nv_permlane16_swap_b32 v80, v82\nv_add_f32 v81, v80, v82\nv_add_f32 v80, v80, v82\nv_permlane32_swap_b32 v80, v81\nv_add_f32 v80, v80, v81\nv_cmp_u_f32 vcc, v80, v80")
retry(L, (85, H4X), after=(0 if opt["pp4"] else 48), once=DFST)
a("s_mov_b64 exec, 0xffff\nbuffer_store_dword v80, v53, %s, s50 offen sc1" % WS)
cnt(3); st(2)
if not opt["nodf"]: a("s_cmp_lt_u32 s3, 4\ns_cbranch_scc1 L_nodf\n" + DFST + "\nL_nodf:")
execall()
a("s_cmp_eq_u32 s54, 0\ns_cbranch_scc0 L_fin")
def h5l(b):
    for n in range(4): a("buffer_load_dwordx4 %s, v56, %s, s57 offen offset:%d sc1" % (vr(b+4*n), WS, n*512))
def h5q(b, L, inv): a("v_max3_u32 v5, v%d, v%d, v%d\nv_max_u32 v5, v5, v%d\nv_cmp_eq_u32 vcc, -1, v5\ns_cbranch_vcc%s %s" % (b, b+4, b+8, b+12, "nz" if inv else "z", L))
if opt["pp5"]:
    a("s_movk_i32 s48, 64"); h5l(32)
    a("L_p5:\ns_sleep %d" % opt["pp5"]); h5l(64); a("s_waitcnt vmcnt(4)"); h5q(32, "L_p5a", False)
    a("s_sleep %d" % opt["pp5"]); h5l(96)
    a("s_waitcnt vmcnt(4)"); h5q(64, "L_p5b", False)
    a("s_sleep %d" % opt["pp5"]); h5l(32)
    a("s_sub_u32 s48, s48, 1\ns_cbranch_scc1 L_p5x\ns_waitcnt vmcnt(4)"); h5q(96, "L_p5", True)
    for e in range(0, 8, 2): a("v_pk_add_f32 v[%d:%d], v[%d:%d], v[%d:%d]" % (112+e, 113+e, 96+e, 97+e, 104+e, 105+e))
    a("s_branch L_p5j\nL_p5b:")
    for e in range(0, 8, 2): a("v_pk_add_f32 v[%d:%d], v[%d:%d], v[%d:%d]" % (112+e, 113+e, 64+e, 65+e, 72+e, 73+e))
    a("s_branch L_p5j\nL_p5x:")
L = loop_head("h5")
h5l(32)
a("s_waitcnt vmcnt(0)\nL_p5a:")
for e in range(0, 8, 2): a("v_pk_add_f32 v[%d:%d], v[%d:%d], v[%d:%d]" % (112+e, 113+e, 32+e, 33+e, 40+e, 41+e))
a("L_p5j:\nv_pk_add_f32 v[112:113], v[112:113], v[116:117]\nv_pk_add_f32 v[114:115], v[114:115], v[118:119]\ns_mov_b32 s88, 0x00ff00ff\ns_mov_b32 s89, s88")
a("v_permlane32_swap_b32 v112, v114\nv_permlane32_swap_b32 v113, v115\nv_add_f32 v112, v112, v114\nv_add_f32 v113, v113, v115\nv_cmp_u_f32 vcc, v112, v113\nv_permlane16_swap_b32 v112, v113")
retry(L)
a("v_add_f32 v112, v112, v113")
dpp("v_add_f32", 112, 112, 112, "row_ror:8")
a("s_mov_b64 exec, s[88:89]\nv_add_f32 v112, v112, v58\nv_cvt_pk_bf16_f32 v112, v112, v112\nbuffer_store_short v112, v57, %s, s52 offen" % srd("out"))
cnt(2); st(11)
a("s_cmp_eq_u32 s42, 0\ns_cbranch_scc0 L_fin\ns_mov_b64 exec, 1\nv_mov_b32 v4, s46\nbuffer_store_dword v4, v3, %s, 0 offen" % WS)
a("L_fin:")
if opt["stamps"]:
    execall()
    if opt["dbgr"]:
        for k in range(1, 16): a("v_readlane_b32 s%d, v59, %d" % (64+k, 16-k))
        a("s_nop 4")
    write_stamps(a, 16, 4, 2, 3, 8)
a("L_end:\ns_endpgm")
if opt["walk"]: a("WKA%d:\ns_branch L_walkedA\nWKB%d:\ns_branch L_walkedB" % (len(stubs["A"]), len(stubs["B"])))
for c in cold: a(c)
a("L_codeend:\n.fill (16384 + 1024 - (L_codeend - %s))/4, 4, 0xbf800000" % K)
txt = a.text()
if opt["fake"] & 32: txt = txt.replace("buffer_store_dwordx4 v[20:23], v26, s[4:7], s54 offen sc1", "s_nop 0")
if opt["fake"] & 64: txt = txt.replace("buffer_store_dwordx4 v[20:23], v25, s[4:7], s53 offen sc1", "s_nop 0")
if opt["fake"] & 128: txt = txt.replace("buffer_store_dwordx4 v[28:31], v1, s[4:7], s52 offen sc1", "s_nop 0")
if opt["fake"] & 256: txt = txt.replace("buffer_store_dwordx4 v[36:39], v3, s[4:7], s61 offen sc1", "s_nop 0")
if opt["fake"] & 512: txt = txt.replace("buffer_store_dwordx4 v[20:23], v26, s[4:7], s54 offen\n", "s_nop 0\n")
if opt["cyc"]: txt = txt.replace("s_memrealtime", "s_memtime") + "; s_memrealtime\n"
if opt["noplain"]:
    import re
    txt = re.sub(r"(buffer_store_\w+ [^\n]*offen(?: offset:\d+)?)\n", r"\1 sc1\n", txt)
body = hazard.fix(txt, False)
open(sys.argv[1], "w").write(finish(["grid=(256,1,1) block=(512,1,1) lds=163840"], body, [descriptor(K, 256, 102, 256)]))
```

```python
import sys, math, struct
from asmlib import *
import hazard
def f2u(x): return struct.unpack("<I", struct.pack("<f", x))[0]
opt = dict(stamps=0, smask=0xfff, cyc=0, spin=1<<16, nt="nt", ntw="nt", win=4, nsig=16, ksig=6, qwin=3, qe=3, qbar=0b1011, qpf=3, rpos=10,
           pp5=2, loc=1, pre=1, inst=1, upos=0, hold=0, opos=0, win0=4, dbgf=0)
for x in sys.argv[2:]:
    k, v = x.split("=")
    assert k in opt, k
    opt[k] = v if k.startswith("nt") else int(v, 0)
NT = opt["nt"]; NTW = opt["ntw"]; SPIN = opt["spin"]; WIN = opt["win"]; QE = opt["qe"]; QBAR = opt["qbar"]

QA = 0x40000; QD = 0x50000; DF = 0x58000; ML = 0x60000; GU = 0x70000; H4 = 0x80000; H4X = 0x10000; SG = 0xA0000; H5 = 0xC0000
Q1 = 0x600000; Q1X = 0x20000; PART = 0x800000
L_Q = 131072; L_MX = L_Q; L_PX = L_Q + 8192; L_HV = 49152
L_XR = L_Q - 2048; L_XN = L_Q - 1024; L_XP = L_Q - 512; L_QV = L_Q - 256
L_FP = 0; L_R1 = 8192; L_WT = 20480; L_U = 32768
S = dict(ws=4, w=16, ckv=20, wuv=24, wo=28, wg=32, wu=36, wd=92, out=96)
def srd(b): return "s[%d:%d]" % (S[b], S[b]+3)
WS = srd("ws")
a = Asm(); K = NAME + "_kernel"
cold = []
def c(t): a.lines.append("    ; " + t)
def st(k):
    if opt["stamps"] and (opt["smask"] >> k) & 1: a("s_memrealtime s[62:63]\ns_waitcnt lgkmcnt(0)\ns_mov_b32 s%d, s62" % (64+k))
def sf(k):
    if opt["dbgf"]: a("s_memrealtime s[62:63]\ns_waitcnt lgkmcnt(0)\ns_mov_b32 s%d, s62" % (64+k))
def cnt(k):
    if opt["stamps"]: a("s_mov_b32 s%d, s48" % (76+k))
def ptr(b): a("s_load_dwordx2 s[%d:%d], s[0:1], %d" % (S[b], S[b]+1, KOFF[b]))
def fmt(b): a("s_mov_b32 s%d, %d\ns_mov_b32 s%d, 0x20000" % (S[b]+2, SIZES[b], S[b]+3))
def vr(v, n=4): return "v[%d:%d]" % (v, v+n-1)
def mfma(d, A, B, cc=None):
    a("v_mfma_f32_16x16x32_bf16 %s, %s, %s, %s" % (vr(d), vr(A), vr(B), vr(d) if cc is None else cc))
def dpp(op, d, s0, s1, ctl, bank=0xf, row=0xf):
    a("%s_dpp v%d, v%d, v%d %s row_mask:0x%x bank_mask:0x%x" % (op, d, s0, s1, ctl, row, bank))
def xrow(op, v, t):
    for sw in ("v_permlane16_swap_b32", "v_permlane32_swap_b32"):
        a("v_mov_b32 v%d, v%d\n%s v%d, v%d\n%s v%d, v%d, v%d" % (t, v, sw, v, t, op, v, v, t))
def allred(op, v, t):
    for ror in (8,4,2,1): dpp(op, v, v, v, "row_ror:%d" % ror)
    xrow(op, v, t)
def rbf(v): a("v_cvt_pk_bf16_f32 v%d, v%d, v%d\nv_and_b32 v%d, 0xffff0000, v%d" % (v, v, v, v, v))
def setexec(lo, hi): a("s_mov_b32 exec_lo, 0x%x\ns_mov_b32 exec_hi, 0x%x" % (lo, hi))
def execall(): a("s_mov_b64 exec, -1")
def loop_head(name):
    L = a.label(name); a("s_mov_b32 s48, 0\n%s:" % L); return L
def retry(L, extra=""):
    R = a.label("rt"); D = a.label("ok")
    a("s_cbranch_vccnz %s\n%s:" % (R, D))
    cold.append("%s:\ns_add_u32 s48, s48, 1\n%ss_cmp_lt_u32 s48, %d\ns_cbranch_scc1 %s\ns_branch %s" % (R, extra.replace("@", R), SPIN, L, D))
def tagbits(dst, t, sh):
    a("v_bfe_u32 v%d, v%d, %d, 1\nv_lshlrev_b32 v%d, 14, v%d\nv_bfe_u32 v%d, v%d, %d, 1\nv_lshl_or_b32 v%d, v%d, 30, v%d" % (dst, t, sh, dst, dst, t+1, t, sh+1, dst, t+1, dst))
def tagmasks(vm, t):
    a("v_mul_u32_u24 v%d, 33, v9\nv_add_u32 v%d, s46, v%d" % (t, t, t))
    for k in range(4): tagbits(vm+k, t, 2*k)
def units():
    a("s_cmp_lt_u32 s40, 3\ns_cselect_b32 s56, 6, 5\ns_cselect_b32 s57, 0, 12\ns_mul_i32 s51, s42, s56\ns_add_u32 s57, s57, s51")
def imgswz(v): a("v_lshlrev_b32 v%d, 1, v11\nv_xor_b32 v%d, v%d, v12\nv_lshlrev_b32 v%d, 4, v%d" % (v, v, v, v, v))
def imgtr(v): a("v_lshrrev_b32 v30, 2, v2\nv_and_b32 v31, 7, v30\nv_xor_b32 v31, s3, v31\nv_lshlrev_b32 v31, 5, v31\nv_lshl_add_u32 v31, v30, 8, v31\nv_and_b32 v30, 3, v2\nv_lshl_add_u32 v%d, v30, 3, v31" % v)
def imgrd(dst, vtr, base, nks):
    for ks in range(nks):
        for T in range(2): a("ds_read_b64_tr_b16 v[%d:%d], v%d offset:%d" % (dst+4*ks+2*T, dst+4*ks+2*T+1, vtr, base + ks*8192 + T*4096))
def slice_dma():
    for n in range(4):
        a("buffer_load_dwordx4 v%d, %s, s50 offen offset:%d lds" % ((10, 13)[n&1], srd("w"), 1024*n))
        if n < 3: a("s_addk_i32 s50, 15360")

kernel_begin(a, K)
if opt["stamps"]: a("s_memrealtime s[64:65]")
c("s3 wave, s40 wg&7, s41 slot, s42 head h, s43 64-row record of this CU; s[12:13] x, s[14:15] c_kv, s[16:17] w_q, s[18:19] w_uk")
def ids():
    a("""s_and_b32 s40, s2, 7
s_lshr_b32 s42, s2, 6
s_lshl2_add_u32 s42, s40, s42
s_and_b32 s43, s41, 7
s_xor_b32 s43, s43, 1
s_and_b32 s51, s3, 2
s_lshl2_add_u32 s50, s43, s51
s_and_b32 s51, s3, 1
s_lshl4_add_u32 s50, s50, s51
s_lshl_b32 s50, s50, 5
s_add_u32 s50, s50, s42
s_lshl_b32 s50, s50, 8
v_and_b32 v2, 63, v0
v_lshrrev_b32 v11, 4, v2
v_and_b32 v12, 15, v2
v_lshlrev_b32 v3, 4, v2""")
    imgswz(10)
    a("v_lshl_add_u32 v10, v11, 16, v10\nv_xor_b32 v13, 0x80, v10\ns_add_u32 s51, s3, 32\ns_lshl_b32 m0, s51, 12")
a("""s_load_dwordx8 s[12:19], s[0:1], 0
s_load_dwordx2 s[4:5], s[0:1], 96
v_lshrrev_b32 v1, 6, v0
s_cmpk_ge_u32 s2, 256
v_readfirstlane_b32 s3, v1
s_cbranch_scc1 L_end
s_lshr_b32 s41, s2, 3
s_cmp_lt_u32 s3, 4
s_cbranch_scc1 L_e1""")
c("waves 4-7 pull one line of this kernel's code each into L2, then run ahead to the code behind the entry block")
a("""s_getpc_b64 s[50:51]
v_lshl_add_u32 v1, s41, 8, v0
v_lshlrev_b32 v1, 1, v1
global_load_ushort v59, v1, s[50:51] offset:-512
s_branch L_hi
L_e1:""")
ids()
a("""s_cmp_lg_u32 s3, 0
s_waitcnt lgkmcnt(0)
s_cbranch_scc1 L_e2
global_load_dwordx4 v[4:7], v3, s[12:13]
L_e2:
s_lshl_b32 s18, 1, 22
s_mov_b32 s19, 0x20000""")
c("waves 0-3: w_q[64 rows, h, :] -> LDS image")
slice_dma()
a(".p2align 8\ns_branch L_front\nL_hi:")
ids()
a("s_waitcnt lgkmcnt(0)\ns_mov_b64 s[16:17], s[18:19]\ns_lshl_b32 s18, 1, 22\ns_mov_b32 s19, 0x20000")
c("waves 4-7: w_uk[64 rows, h, :] -> LDS image (attention CUs only warm L2 for their partner)")
if opt["upos"] == 0: slice_dma()
a("L_front:")
sf(1)
a("s_load_dword s46, s[4:5], 0\ns_load_dwordx2 s[8:9], s[0:1], 24")
fmt("ws")
if opt["stamps"]:
    for k in range(2, 16): a("s_mov_b32 s%d, 0" % (64+k))
a("""v_lshrrev_b32 v61, 2, v12
v_lshlrev_b32 v61, 7, v61
v_and_b32 v1, 3, v2
v_lshl_add_u32 v61, v1, 2, v61
s_lshl3_add_u32 s53, s42, s3
s_lshl_b32 s53, s53, 5
s_add_u32 s53, s53, s43
s_lshl_b32 s53, s53, 4
s_add_u32 s53, s53, %d
s_lshl3_add_u32 s54, s42, s43
s_lshl3_add_u32 s54, s54, s3
s_lshl_b32 s54, s54, 6
s_add_u32 s54, s54, %d
s_lshr_b32 s90, s43, 1
v_lshrrev_b32 v8, 3, v2
v_and_b32 v9, 7, v2
v_lshlrev_b32 v58, 2, v2
v_lshlrev_b32 v23, 6, v12
v_and_b32 v57, 12, v2
v_lshl_add_u32 v57, v1, 4, v57""" % (Q1 + Q1X, Q1))
imgtr(52)
a("v_add_u32 v60, %d, v52\ns_and_b32 s51, s43, 1\ns_lshl_b32 s51, s51, 7\ns_add_u32 s51, s51, %d\nv_lshl_add_u32 v56, v11, 4, s51" % (L_Q, L_XP))
if opt["upos"]:
    a("s_cmp_lt_u32 s3, 4\ns_cbranch_scc1 L_nou")
    if opt["upos"] == 2: a("s_waitcnt lgkmcnt(0)")
    slice_dma()
    a("L_nou:")
a("s_cmp_eq_u32 s3, 0\ns_cbranch_scc1 L_ln\ns_bitcmp1_b32 s41, 0\ns_cbranch_scc1 L_bpre\ns_branch L_apre")
a("L_ln:\nv_add_u32 v1, %d, v3\ns_lshl_b32 s51, s90, 8\ns_add_u32 s51, s51, %d\nv_lshl_add_u32 v15, v2, 1, s51" % (L_XR, L_XR))
a("v_bfe_u32 v44, v2, 1, 2\nv_and_b32 v45, 1, v2\nv_lshl_add_u32 v44, v44, 1, v45\nv_and_b32 v45, 3, v8\nv_lshl_add_u32 v44, v44, 2, v45\nv_and_or_b32 v44, v2, 32, v44\nv_lshlrev_b32 v44, 1, v44\nv_add_u32 v44, %d, v44\nv_add_u32 v45, %d, v58" % (L_XP, L_XN))
a("s_waitcnt vmcnt(4)\nds_write_b128 v1, v[4:7]\nds_read_u16 v14, v15\nds_read_u16 v15, v15 offset:128")
for k in range(4): a("v_lshlrev_b32 v%d, 16, v%d\nv_and_b32 v%d, 0xffff0000, v%d" % (32+2*k, 4+k, 33+2*k, 4+k))
a("v_add_f32 v40, v32, v33\nv_add_f32 v41, v34, v35\nv_add_f32 v42, v36, v37\nv_add_f32 v43, v38, v39\nv_add_f32 v40, v40, v41\nv_add_f32 v42, v42, v43\nv_add_f32 v40, v40, v42")
allred("v_add_f32", 40, 41)
a("v_mul_f32 v40, 0x%x, v40" % f2u(1/512))
for k in range(8): a("v_sub_f32 v%d, v%d, v40" % (32+k, 32+k))
a("v_mul_f32 v42, v32, v32")
for k in range(1, 8): a("v_fmac_f32 v42, v%d, v%d" % (32+k, 32+k))
allred("v_add_f32", 42, 41)
a("v_mul_f32 v42, 0x%x, v42" % f2u(1/512))
rbf(42); rbf(40)
a("v_add_f32 v42, 0x%x, v42" % f2u(1e-5)); rbf(42)
a("v_sqrt_f32 v42, v42\ns_waitcnt lgkmcnt(0)\nv_lshlrev_b32 v14, 16, v14\nv_sub_f32 v14, v14, v40\nv_lshlrev_b32 v15, 16, v15\nv_sub_f32 v15, v15, v40"); rbf(42)
a("v_rcp_f32 v43, v42"); rbf(14); rbf(15)
for v in (14, 15): a("v_mul_f32 v41, v%d, v43\nv_fma_f32 v%d, -v41, v42, v%d\nv_fma_f32 v%d, v%d, v43, v41\nv_cvt_pk_bf16_f32 v%d, v%d, v%d" % ((v,)*8))
a("ds_write_b16 v44, v14\nds_write_b16 v44, v15 offset:128\nds_write2st64_b32 v45, v14, v15 offset1:1")
st(1)
a("s_bitcmp1_b32 s41, 0\ns_cbranch_scc0 L_apre")
a("L_stagea:\ns_waitcnt lgkmcnt(0)\ns_add_u32 s46, s46, 1\ns_and_b32 s47, s46, 0xff\nv_mov_b32 v1, s47\ns_movk_i32 s51, 0xff")
sf(2)
def odd():
    a("s_mov_b64 s[16:17], s[8:9]\ns_add_u32 s50, s50, %d\ns_sub_u32 m0, m0, 49152" % ((1 << 19) - 3*15360))
    slice_dma()
a("s_cmp_lt_u32 s3, 4\ns_cbranch_scc0 L_sa1\ns_waitcnt vmcnt(0)")
if opt["opos"] == 1:
    a("s_bitcmp1_b32 s41, 0\ns_cbranch_scc0 L_sa1"); odd()
a("L_sa1:")
sf(3)
a("s_barrier")
sf(4)
st(2)
a("ds_read_b128 v[32:35], v56")
imgrd(40, 60, 0, 2)
a("ds_read_b128 v[36:39], v56 offset:64\ns_waitcnt lgkmcnt(3)")
mfma(28, 32, 40, "0")
a("s_waitcnt lgkmcnt(0)")
mfma(28, 36, 44)
a("s_mov_b64 exec, 0xffff\ns_bitcmp1_b32 s41, 0\nv_bfi_b32 v28, s51, v1, v28\nbuffer_store_dword v28, v61, %s, s53 offen\ns_mov_b64 exec, -1\ns_barrier" % WS)
Q1G = "s_mov_b64 exec, 0xffff\nbuffer_store_dword v28, v58, %s, s54 offen sc1\ns_mov_b64 exec, -1" % WS
sf(5)
a("s_cbranch_scc0 L_attn")
a("s_cmp_lt_u32 s3, 4\ns_cbranch_scc0 L_gath")
if opt["opos"] == 0: odd()
st(3)
a("s_waitcnt vmcnt(0)")
sf(6)
a(Q1G + "\ns_barrier\ns_branch L_wtail\nL_gath:")
if opt["dbgf"]: a("s_waitcnt vmcnt(1)"); sf(6)
L = loop_head("h1")
a("buffer_load_dwordx4 v[32:35], v14, %s, s55 offen sc1\ns_waitcnt vmcnt(0)" % WS)
for r in range(4): a("v_xor_b32 v%d, s47, v%d" % (32+r, 32+r))
a("v_or_b32 v5, v32, v33\nv_or3_b32 v5, v5, v34, v35\nv_and_b32 v5, 0xff, v5\nv_cmp_ne_u32 vcc, 0, v5")
dpp("v_add_f32", 32, 32, 32, "quad_perm:[1,0,3,2]"); dpp("v_add_f32", 33, 33, 33, "quad_perm:[1,0,3,2]")
retry(L, "s_cmp_eq_u32 s48, 8\ns_cbranch_scc0 @_a\n" + Q1G + "\n@_a:\ns_cmp_lt_u32 s48, 12\ns_cbranch_scc1 @_b\nv_swap_b32 v14, v15\n@_b:\n")
dpp("v_add_f32", 34, 34, 34, "quad_perm:[1,0,3,2]"); dpp("v_add_f32", 35, 35, 35, "quad_perm:[1,0,3,2]")
for ctl in ("quad_perm:[2,3,0,1]", "row_half_mirror"):
    for v in range(32, 36): dpp("v_add_f32", v, v, v, ctl)
a("v_cvt_pk_bf16_f32 v32, v32, v33\nv_cvt_pk_bf16_f32 v33, v34, v35\nds_write_b64 v20, v[32:33]")
cnt(0); st(1); sf(7)
a("s_waitcnt lgkmcnt(0)\ns_barrier")
sf(8)
for s in range(4):
    a("ds_read_b128 %s, v21 offset:%d" % (vr(32+4*s), 64*s))
    for t in range(2): a("ds_read_b128 %s, v%d offset:%d" % (vr(64+8*s+4*t), 16+s, 4096*t))
for s in range(4):
    a("s_waitcnt lgkmcnt(%d)" % (9 - 3*s))
    for t in range(2): mfma(96+4*t, 32+4*s, 64+8*s+4*t, "0" if s == 0 else None)
SC = (128 ** -0.5) * math.log2(math.e) * 2.0**-20
a("s_mov_b64 exec, 0xffff\nv_mul_f32 v96, 0x%x, v96\nv_mul_f32 v100, 0x%x, v100\nv_cvt_pk_bf16_f32 v96, v96, v100\nv_xor_b32 v96, v96, v22" % (f2u(SC), f2u(SC)))
a("buffer_store_dword v96, v57, %s, s60 offen sc1" % WS)
st(3); sf(9)
a(Q1G)
a("s_cmp_eq_u32 s3, 5\ns_cbranch_scc0 L_wtail\ns_mov_b32 exec_lo, 0\nbuffer_store_dwordx4 v[24:27], v23, %s, s59 offen\ns_mov_b64 exec, -1\ns_branch L_wtail" % WS)
a("L_bpre:")
a("""s_and_b32 s44, s3, 3
s_lshl_b32 s55, s42, 12
s_add_u32 s55, s55, %d
s_lshl_b32 s51, s44, 10
s_add_u32 s51, s51, %d
v_add_u32 v14, s51, v3
v_lshlrev_b32 v15, 9, v9
v_lshl_add_u32 v15, v8, 4, v15
s_lshl_b32 s51, s44, 7
v_add_u32 v15, s51, v15""" % (Q1, Q1X))
if opt["inst"]:
    c("make the XCD-local q-partial lines resident")
    a("s_add_u32 s51, s90, 4\ns_cmp_eq_u32 s3, s51\ns_cbranch_scc0 L_noin" if opt["inst"] == 1 else "s_cmp_lt_u32 s3, 4\ns_cbranch_scc1 L_noin")
    a("buffer_load_dwordx4 v[104:107], v14, %s, s55 offen sc1\nL_noin:" % WS)
if not opt["loc"]: a("v_swap_b32 v14, v15")
a("""s_lshl_b32 s51, s44, 6
s_add_u32 s51, s51, %d
v_lshl_add_u32 v20, v8, 3, s51
v_lshlrev_b32 v21, 4, v11
v_add_u32 v21, %d, v21
s_and_b32 s51, s44, 1
s_lshl_b32 s51, s51, 13
s_and_b32 s56, s44, 2
s_lshl_b32 s56, s56, 15
s_sub_u32 s51, s51, s56
s_add_u32 s51, s51, %d
v_lshl_add_u32 v5, v12, 8, s51
v_lshlrev_b32 v6, 1, v9
v_xor_b32 v6, v6, v11""" % (L_QV, L_QV, L_Q + 16384))
for s in range(4): a("v_xor_b32 v%d, %d, v6\nv_lshl_add_u32 v%d, v%d, 4, v5" % (16+s, 4*s, 16+s, 16+s))
a("""s_lshl3_add_u32 s49, s42, s43
s_lshl1_add_u32 s49, s49, s44
s_lshl_b32 s60, s49, 6
s_add_u32 s60, s60, %d
v_lshrrev_b32 v5, 5, v2
v_lshl_add_u32 v23, v5, 16, v23
s_lshl_b32 s59, s42, 6
s_add_u32 s59, s59, s90
s_lshl_b32 s59, s59, 4
s_add_u32 s59, s59, %d
s_cmp_eq_u32 s3, 5
s_cbranch_scc0 L_noclr""" % (QA, H4))
c("wave 5 clears the later hand-off slots of this CU pair (acknowledged before q_abs goes out)")
for r in range(4): a("v_mov_b32 v%d, -1" % (24+r))
a("""buffer_store_dwordx4 v[24:27], v23, %s, s59 offen sc1
s_lshl2_add_u32 s56, s42, s90
s_lshl_b32 s56, s56, 9
s_add_u32 s56, s56, %d
s_lshl_b32 s57, s90, 5
s_add_u32 s57, s57, s42
s_lshl_b32 s57, s57, 9
s_add_u32 s57, s57, %d
s_sub_u32 s57, s57, s56
v_mul_lo_u32 v5, v5, s57
v_add_u32 v5, v5, v3
buffer_store_dwordx4 v[24:27], v5, %s, s56 offen sc1
L_noclr:
s_and_b32 s51, s3, 1
v_and_b32 v5, 3, v2
v_and_b32 v6, 12, v2
v_lshl_add_u32 v5, s51, 2, v5
v_mul_u32_u24 v5, 33, v5
s_waitcnt lgkmcnt(0)
v_add3_u32 v5, v5, s46, 1
v_lshrrev_b32 v6, 1, v6
v_lshrrev_b32 v5, v6, v5""" % (WS, GU, H5 - 512, WS))
tagbits(22, 5, 0)
a("s_branch L_stagea")

a("L_wtail:")
for b in ("wuv","wg","wu"): ptr(b)
for b in ("wuv","wg","wu"): fmt(b)
c("selector masks v16..v19 (8x128B tiles), v24..v27 (4x256B tiles), tag masks v20..v23")
a("v_and_b32 v1, 1, v2\nv_cmp_eq_u32 vcc, 1, v1\nv_mov_b32 v1, 0xffff\nv_mov_b32 v16, 0xffff0000\nv_cndmask_b32 v1, v1, v16, vcc\nv_bfe_u32 v19, v2, 1, 2")
for r in range(4): a("v_cmp_eq_u32 vcc, %d, v19\nv_cndmask_b32 v%d, 0, v1, vcc" % (r, 16+r))
a("v_cmp_gt_u32 vcc, 8, v12")
for r in range(4): a("v_cndmask_b32 v%d, 0, v%d, vcc" % (24+r, 16+r))
tagmasks(20, 4); units(); imgswz(50)
a("""v_lshl_add_u32 v50, v11, 17, v50
v_xor_b32 v51, 0x80, v50
v_mul_u32_u24 v10, 5504, v8
v_lshl_add_u32 v10, v9, 4, v10
v_bfrev_b32 v5, 1
v_cmp_gt_u32 vcc, s56, v9
v_cndmask_b32 v10, v5, v10, vcc
s_and_b32 s51, s3, 1
s_lshl1_add_u32 s50, s90, s51
s_lshl_b32 s50, s50, 5
s_and_b32 s51, s3, 6
s_add_u32 s50, s50, s51
s_lshl_b32 s50, s50, 14
s_lshl_b32 s51, s42, 8
s_add_u32 s58, s50, s51
s_lshl3_add_u32 s50, s90, s3
s_mul_i32 s50, s50, %d
s_lshl_b32 s51, s57, 4
s_add_u32 s61, s50, s51
s_and_b32 s50, s42, 3
s_bfe_u32 s53, s42, 0x20002
s_lshl2_add_u32 s50, s50, s53
s_lshl_b32 s50, s50, 8
s_lshl_b32 s53, s3, 19
s_add_u32 s50, s50, s53
s_add_u32 s80, s50, %d
s_xor_b32 s81, s80, 0x8400
s_xor_b32 s82, s80, 0x10800
s_xor_b32 s83, s80, 0x18c00
s_lshr_b32 s53, s42, 4
s_lshl1_add_u32 s53, s90, s53
s_and_b32 s51, s3, 1
s_lshl_b32 s51, s51, 2
s_xor_b32 s53, s53, s51
v_xor_b32 v5, s53, v11
v_lshlrev_b32 v7, 17, v11
v_lshl_add_u32 v7, v12, 4, v7
v_lshl_add_u32 v7, v5, 12, v7
s_lshl2_add_u32 s84, s42, s90
s_lshl_b32 s84, s84, 9
s_add_u32 s84, s84, %d
s_and_b32 s51, s3, 1
s_lshl1_add_u32 s85, s42, s51
s_lshr_b32 s51, s3, 1
s_lshl3_add_u32 s85, s85, s51
s_lshl2_add_u32 s85, s85, s90
s_lshl_b32 s85, s85, 4
s_add_u32 s85, s85, %d
s_xor_b32 s86, s85, 0x%x
v_lshlrev_b32 v62, 8, v8
v_lshl_add_u32 v62, v9, 1, v62
s_lshl_b32 s55, s42, 4
s_lshl_b32 s51, s3, 13
s_add_u32 s55, s55, s51
s_add_u32 s55, s55, %d
v_lshl_add_u32 v54, v11, 2, v12
s_lshl_b32 s53, s3, 7
v_lshl_add_u32 v55, v54, 3, s53
v_lshlrev_b32 v54, 9, v54
v_lshlrev_b32 v53, 3, v2
v_and_b32 v57, 1, v11
v_lshlrev_b32 v57, 4, v57
v_lshl_add_u32 v57, v9, 5, v57
v_lshrrev_b32 v6, 5, v2
v_lshl_add_u32 v57, v6, 8, v57
s_lshl_b32 s53, s3, 9
v_add_u32 v57, s53, v57
s_mul_i32 s53, s3, 288
v_lshlrev_b32 v63, 4, v12
v_lshl_add_u32 v63, v11, 3, v63
v_add_u32 v63, s53, v63
v_mul_u32_u24 v4, 288, v9
v_lshl_add_u32 v4, v11, 4, v4
s_lshl_b32 s59, s3, 12
s_add_u32 s59, s59, %d
s_lshl_b32 s50, s3, 6
s_add_u32 s50, s50, %d
v_lshl_add_u32 v1, v8, 3, s50
ds_read_b64 v[32:33], v1
s_waitcnt lgkmcnt(0)""" % (16*2752, PART, GU, H4, H4X, ML, L_U, L_XN))
for n in range(2):
    for r in range(4): a("v_and_b32 v%d, v%d, v%d" % (64+4*n+r, 32+n, 16+r))
c("wave 3 holds the weight stream back until the neighbouring attention CUs are nearly through c_kv (bounded, speed only)")
a("s_cmp_eq_u32 s3, 3\ns_cbranch_scc0 L_go\ns_lshl_b32 s50, s40, 7\ns_add_u32 s50, s50, %d\nv_lshlrev_b32 v5, 2, v12\ns_movk_i32 s48, 24" % SG)
a("L_sg:\nbuffer_load_dword v6, v5, %s, s50 offen sc1\ns_sub_u32 s48, s48, 1\ns_cbranch_scc1 L_go\ns_waitcnt vmcnt(0)\nv_cmp_eq_u32 vcc, s46, v6\ns_bcnt1_i32_b64 s51, vcc\ns_cmp_lt_u32 s51, %d\ns_cbranch_scc1 L_sg" % (WS, 4*opt["ksig"]))
a("L_go:\ns_barrier")
st(4)
for n in range(2):
    for mi, b in enumerate(("wg", "wu")): a("buffer_load_dwordx4 %s, v10, %s, s61 offen offset:%d" % (vr(128+8*n+4*mi), srd(b), n*2752))
a("s_barrier")
for n in range(4): a("s_mov_b32 m0, s59\ns_addk_i32 s59, 1024\nbuffer_load_dwordx4 v%d, %s, s58 offen %s lds\ns_addk_i32 s58, 8192" % (50 + (n&1), srd("wuv"), NTW))
a("s_waitcnt vmcnt(4)")
for n in range(2):
    for mi in range(2): mfma(72+4*mi, 64+4*n, 128+8*n+4*mi, "0" if n == 0 else None)
c("drained-flag of this wave's q_abs half record (only read on the slow path)")
a("s_cmp_lt_u32 s3, 4\ns_cbranch_scc1 L_noqd\ns_lshl_b32 s50, s49, 2\ns_add_u32 s50, s50, %d\nv_mov_b32 v70, s46\ns_mov_b64 exec, 1\nbuffer_store_dword v70, v3, %s, s50 offen sc1\ns_mov_b64 exec, -1\nL_noqd:\ns_nop 7" % (QD, WS))
for r in range(4): a("v_permlane32_swap_b32 v%d, v%d" % (72+r, 76+r))
for r in range(4): dpp("v_add_f32", 72+r, 76+r, 72+r, "row_ror:8")
setexec(0x00ff00ff, 0x00ff00ff)
a("ds_write_b128 v57, v[72:75] offset:%d" % L_FP); execall()
a("s_cmp_eq_u32 s3, 5\ns_waitcnt lgkmcnt(0)\ns_barrier\ns_cbranch_scc0 L_nogup")
for p in range(8): a("ds_read_b64 v[%d:%d], v53 offset:%d" % (32+2*p, 33+2*p, L_FP + p*512))
a("s_waitcnt lgkmcnt(0)")
for stp in (8, 4, 2):
    for e in range(stp): a("v_add_f32 v%d, v%d, v%d" % (32+e, 32+e, 32+stp+e))
a("buffer_store_dwordx2 v[32:33], v53, %s, s84 offen sc1\nL_nogup:" % WS)
st(5)
BULK = "\n".join("buffer_load_dwordx4 %s, v7, %s, s%d offen sc1" % (vr(96+4*n), WS, 80+n) for n in range(4))
c("(max, sum) records of this wave's 16 key splits")
a("s_mov_b32 s52, 0x000f000f\ns_mov_b32 s53, s52\ns_mov_b32 s48, 0\ns_waitcnt vmcnt(0)")
st(6)
a("L_ml:\ns_mov_b64 exec, s[52:53]\nbuffer_load_dwordx4 v[28:31], v54, %s, s55 offen sc1\ns_add_u32 s48, s48, 1\ns_cmp_ge_u32 s48, %d\ns_cselect_b64 s[50:51], s[52:53], 0\ns_waitcnt vmcnt(0)" % (WS, SPIN))
a("v_cmp_eq_u32 vcc, s46, v30\nv_cmp_eq_u32 s[88:89], s46, v31\ns_and_b64 vcc, vcc, s[88:89]\ns_or_b64 vcc, vcc, s[50:51]\ns_andn2_b64 s[52:53], s[52:53], vcc\ns_cbranch_scc1 L_ml")
cnt(1)
setexec(0x000f000f, 0x000f000f)
a("ds_write_b64 v55, v[28:29] offset:%d\ns_mov_b64 exec, -1\ns_waitcnt lgkmcnt(0)\ns_barrier" % L_WT)
a(BULK)
a("ds_read_b128 v[32:35], v3 offset:%d" % L_WT)
imgrd(192, 52, L_U, 4)
a("s_mov_b32 s54, 0x40004000\ns_mov_b32 s48, 0\ns_mov_b64 s[88:89], -1\ns_waitcnt lgkmcnt(8)")
st(7)
a("v_max_f32 v5, v32, v34")
allred("v_max_f32", 5, 6)
a("v_sub_f32 v29, v28, v5\nv_sub_f32 v32, v32, v5\nv_sub_f32 v34, v34, v5\nv_exp_f32 v29, v29\nv_exp_f32 v32, v32\nv_exp_f32 v34, v34\nv_mul_f32 v28, v32, v33\nv_fmac_f32 v28, v34, v35")
allred("v_add_f32", 28, 6)
a("v_rcp_f32 v28, v28\nv_mul_f32 v29, v29, v28\nv_cvt_pk_bf16_f32 v29, v29, v29")
for n in range(4):
    for r in range(4): dpp("v_and_b32", 64+4*n+r, 29, 24+r, "row_newbcast:%d" % n)
a("L_pt:")
for n in range(4):
    a("s_waitcnt vmcnt(%d)" % (3-n))
    for k in range(4): a("v_xor_b32 v%d, v%d, v%d" % (96+4*n+k, 96+4*n+k, 20+k))
    a("v_or_b32 v5, v96, v97" if n == 0 else "v_or3_b32 v5, v5, v%d, v%d" % (96+4*n, 97+4*n))
    a("v_or3_b32 v5, v5, v%d, v%d" % (98+4*n, 99+4*n))
    mfma(80, 64+4*n, 96+4*n, "0" if n == 0 else None)
a("v_and_b32 v5, s54, v5\nv_cmp_ne_u32 vcc, 0, v5\ns_and_b64 vcc, vcc, s[88:89]\ns_cbranch_vccnz L_ptslow\nL_ptok:")
cold.append("L_ptslow:\ns_add_u32 s48, s48, 1\ns_cmp_ge_u32 s48, %d\ns_cbranch_scc1 L_ptok\ns_cmp_lt_u32 s48, 8\ns_cbranch_scc1 L_ptre\n" % SPIN +
  "s_lshl_b32 s50, s90, 2\ns_lshl_b32 s51, s3, 9\ns_add_u32 s50, s50, s51\ns_add_u32 s50, s50, %d\n" % DF +
  "v_lshlrev_b32 v5, 5, v12\nbuffer_load_dword v5, v5, %s, s50 offen sc1\ns_waitcnt vmcnt(0)\nv_cmp_ne_u32 vcc, s46, v5\n" % WS +
  "s_cmp_eq_u64 vcc, 0\ns_cselect_b64 s[88:89], 0, -1\nL_ptre:\n" + BULK + "\ns_branch L_pt")
cnt(2); st(8)
a("s_mov_b32 exec_hi, 0\nv_cvt_pk_bf16_f32 v80, v80, v81\nv_cvt_pk_bf16_f32 v81, v82, v83\nds_write_b64 v63, v[80:81] offset:%d" % L_R1); execall()
a("s_waitcnt lgkmcnt(0)\ns_barrier")
for ks in range(4): a("ds_read_b128 %s, v4 offset:%d" % (vr(32+4*ks), L_R1 + 64*ks))
for ks in range(4):
    a("s_waitcnt lgkmcnt(%d)" % (3-ks))
    mfma(84, 32+4*ks, 192+4*ks, "0" if ks == 0 else None)
a("v_add_f32 v84, v84, v85\nv_add_f32 v86, v86, v87\nv_add_f32 v85, v84, v86\nv_add_f32 v84, v84, v86\nv_permlane16_swap_b32 v84, v85\nv_add_f32 v84, v84, v85\ns_mov_b64 exec, 0xffff\nv_cvt_pk_bf16_f32 v84, v84, v84")
a("buffer_store_short v84, v62, %s, s86 offen" % WS)
st(9)
a("s_barrier\nbuffer_store_short v84, v62, %s, s85 offen sc1\ns_branch L_fin" % WS)

DMA = "s_mov_b32 m0, s45\ns_addk_i32 s45, 8192\nbuffer_load_dwordx4 v14, %s, s50 offen %s lds\ns_add_u32 s50, s50, 0x100000\nv_xor_b32 v14, 16, v14" % (srd("ckv"), NT)
a("L_apre:\ns_mov_b64 s[20:21], s[14:15]")
fmt("ckv")
a("""s_lshr_b32 s50, s41, 1
s_lshl4_add_u32 s44, s40, s50
s_lshl3_add_u32 s51, s40, s3
s_lshl4_add_u32 s50, s51, s50
s_lshl_b32 s50, s50, 10
s_lshl_b32 s45, s3, 10
s_lshl_b32 s51, s3, 5
v_xor_b32 v14, s51, v3
s_movk_i32 s60, %d""" % (16 - opt["win0"]))
if opt["pre"]:
    a("s_cmp_lt_u32 s3, 4\ns_cbranch_scc1 L_stagea")
    for n in range(opt["pre"]): a(DMA)
    a("s_movk_i32 s60, %d" % (16 - opt["win0"] - opt["pre"]))
a("s_branch L_stagea\nL_attn:")
c("c_kv row 8n+w of the tile <- key n*1024 + (wg&7)*128 + w*16 + (slot>>1), 16-byte chunks xor-swizzled by 2w+(n&1)")
if opt["hold"]: a("s_waitcnt vmcnt(%d)\ns_barrier" % (opt["pre"] + opt["hold"]))
for n in range(opt["win0"]): a(DMA)
st(3)
a(Q1G)
for b in ("wo","wd","out"): ptr(b)
for b in ("wo","wd","out"): fmt(b)
units(); imgswz(13)
a("""s_and_b32 s55, s3, 3
v_lshrrev_b32 v10, 5, v2
s_lshl_b32 s51, s40, 6
s_add_u32 s51, s51, s41
s_lshl_b32 s51, s51, 1
s_add_u32 s87, s51, %d
s_lshl_b32 s61, s44, 9
s_add_u32 s61, s61, %d
v_add_u32 v7, %d, v3
s_xor_b32 s59, s3, 4
v_lshl_add_u32 v13, v11, 10, v13
v_xor_b32 v15, 0x80, v13
s_lshr_b32 s51, s59, 1
s_lshl2_add_u32 s81, s42, s51
s_and_b32 s53, s59, 1
s_lshl3_add_u32 s81, s81, s53
s_lshl4_add_u32 s81, s81, s90
s_lshl_b32 s81, s81, 8
s_and_b32 s82, s59, 4
s_lshl1_add_u32 s53, s53, s82
s_add_u32 s82, s57, s53
s_and_b32 s51, s51, 1
s_lshl1_add_u32 s82, s82, s51
s_lshl4_add_u32 s82, s82, s90
s_lshl_b32 s82, s82, 8
s_cmp_lt_u32 s53, s56
s_cselect_b32 s47, 0, 0x80000000
s_add_u32 s53, s53, 1
s_cmp_lt_u32 s53, s56
s_cselect_b32 s49, 0, 0x80000000
s_lshl_b32 s83, s59, 12
s_lshl_b32 s86, s59, 11
s_add_u32 s86, s86, 32768
s_cmp_lt_u32 s3, 4
s_cbranch_scc0 L_pvset""" % (SG, ML, L_PX))
ELD = ["s_mov_b32 m0, s83\ns_addk_i32 s83, 1024\nbuffer_load_dwordx4 v%d, %s, s81 offen %s lds\ns_addk_i32 s81, 8192" % ((13, 15)[n&1], srd("wo"), NTW) for n in range(4)] + \
      ["s_mov_b32 m0, s86\ns_addk_i32 s86, 1024\nv_or_b32 v%d, s%d, v%d\nbuffer_load_dwordx4 v%d, %s, s82 offen %s lds\ns_addk_i32 s82, 8192" % ((13, 15)[n], (47, 49)[n], (13, 15)[n], (13, 15)[n], srd("wd"), NTW) for n in range(2)]
c("score waves (p = w>>1, hb = w&1): v16..v23 key-tile bases, v24,v25 q bases, v4/v5 max exchange, v6 P write")
a("""v_and_b32 v28, 3, v2
v_bfe_u32 v29, v2, 2, 1
v_bfe_u32 v30, v2, 3, 1
v_xor_b32 v29, v29, v30
v_lshl_add_u32 v31, v28, 1, v29
v_lshl_add_u32 v29, v31, 1, v30
v_lshl_add_u32 v31, v30, 3, v31
s_lshr_b32 s53, s3, 1
s_and_b32 s52, s3, 1
s_lshl_b32 s56, s53, 14
v_lshl_add_u32 v31, v31, 10, s56
v_xor_b32 v29, v29, v11""")
for k in range(4): a("v_xor_b32 v%d, %d, v29\nv_lshl_add_u32 v%d, v%d, 4, v31\nv_xor_b32 v%d, 0x10000, v%d" % (16+k, 4*k, 16+k, 16+k, 20+k, 16+k))
a("s_lshl_b32 s56, s52, 14\ns_add_u32 s56, s56, %d\nv_xor_b32 v29, v2, v11\nv_lshl_add_u32 v24, v29, 4, s56\nv_xor_b32 v25, 64, v24" % L_Q)
a("s_lshl_b32 s56, s52, 7\ns_add_u32 s56, s56, %d\nv_lshl_add_u32 v5, v12, 3, s56\ns_lshl_b32 s56, s53, 2\nv_add_u32 v4, s56, v5" % L_MX)
a("s_lshl_b32 s56, s3, 10\nv_add_u32 v6, s56, v7\ns_mov_b32 s59, 0x%x\ns_branch L_setdone\nL_pvset:" % f2u(2.0**20))
c("value waves: v16..v23 transposed-read bases, v24..v27 tag masks, v4 q_abs gather, v5 q staging, s32..s39 partial stores")
tagmasks(24, 28)
a("""v_bfe_u32 v28, v2, 2, 2
v_bfe_u32 v29, v2, 4, 1
v_xor_b32 v29, v29, v10
v_lshl_add_u32 v29, v28, 1, v29
v_bfe_u32 v28, v2, 1, 1
v_xor_b32 v28, v28, v10
v_lshl_add_u32 v30, v29, 1, v28
v_lshl_add_u32 v29, v10, 3, v29
v_and_b32 v31, 1, v2
v_lshlrev_b32 v31, 3, v31
v_lshl_add_u32 v31, v29, 10, v31
s_lshl_b32 s56, s55, 8
v_add_u32 v31, s56, v31""")
for t in range(8): a("v_xor_b32 v%d, %d, v30\nv_lshl_add_u32 v%d, v%d, 4, v31" % (16+t, 2*t, 16+t, 16+t))
a("""v_lshlrev_b32 v4, 10, v8
v_lshl_add_u32 v4, v9, 4, v4
s_lshl_b32 s80, s55, 13
s_add_u32 s80, s80, %d
v_xor_b32 v5, v8, v9
v_lshlrev_b32 v5, 4, v5
v_lshl_add_u32 v5, v9, 8, v5
s_and_b32 s56, s55, 1
s_lshl_b32 s56, s56, 7
s_lshr_b32 s51, s55, 1
s_lshl_b32 s51, s51, 14
s_add_u32 s56, s56, s51
s_add_u32 s56, s56, %d
v_add_u32 v5, s56, v5
s_lshl2_add_u32 s32, s44, s55
s_lshl_b32 s32, s32, 3
s_and_b32 s56, s44, 31
s_xor_b32 s32, s32, s56
s_lshl_b32 s32, s32, 10
s_add_u32 s32, s32, %d""" % (QA, L_Q, PART))
for k in range(1, 8): a("s_xor_b32 s%d, s32, %d" % (32+k, k << 10))
SIG = "v_mov_b32 v1, s46\ns_mov_b64 exec, 1\nbuffer_store_dword v1, v3, %s, s87 offen\ns_mov_b64 exec, -1" % WS
def signal(): a("s_cmp_eq_u32 s3, 7\ns_cbranch_scc0 L_nosg\n" + SIG + "\nL_nosg:")
a("s_mov_b32 s54, 0x40004000\nL_setdone:\ns_waitcnt lgkmcnt(0)")
if opt["nsig"] <= 16 - QE:
    a("s_cmp_eq_u32 s3, 7\ns_cselect_b32 s57, %d, -1" % (16 - opt["nsig"]))
    a("L_dma:\ns_waitcnt vmcnt(%d)\n%s\ns_sub_u32 s60, s60, 1\ns_cmp_eq_u32 s60, s57\ns_cbranch_scc0 L_dmans\n%s\nL_dmans:\ns_cmp_lg_u32 s60, %d\ns_cbranch_scc1 L_dma" % (WIN-1, DMA, SIG, QE))
else:
    a("L_dma:\ns_waitcnt vmcnt(%d)\n%s\ns_sub_u32 s60, s60, 1\ns_cmp_lg_u32 s60, %d\ns_cbranch_scc1 L_dma" % (WIN-1, DMA, QE))
def QLD(j): return "buffer_load_dwordx4 %s, v4, %s, s80 offen offset:%d sc1" % (vr(64+4*j), WS, 128*j)
assert 1 <= QE <= 4 and 16 - QE - opt["qwin"] >= 8 and opt["qpf"] <= 4 and QBAR & 8
def trrd(kb, T, t0=0, t1=8):
    for t in range(t0, t1):
        v = 128 + kb*32 + t*4 + T*2
        a("ds_read_b64_tr_b16 v[%d:%d], v%d offset:%d" % (v, v+1, 16+t, ((kb&1) + 2*T)*16384))
a("s_waitcnt vmcnt(%d)\ns_cmp_lt_u32 s3, 4\ns_barrier\ns_cbranch_scc1 L_qkw" % opt["qwin"])
a("s_setprio 1")
for k in range(4): a(QLD(2*k)); a(QLD(2*k+1)); trrd(k>>1, 0, 4*(k&1), 4*(k&1)+4)
trrd(0, 1); trrd(1, 1)
for t in range(8): a("v_xor_b32 v%d, 0x10000, v%d" % (16+t, 16+t))
for n in range(QE):
    a(DMA)
    if 16 - QE + n + 1 == opt["nsig"]: signal()
st(3)
a("s_mov_b32 s48, 0\ns_mov_b64 s[88:89], -1")
for k in range(4):
    a("s_waitcnt vmcnt(%d)\nL_qchk%d:" % (6 - 2*k + QE, k))
    for j in (2*k, 2*k+1):
        for e in range(4): a("v_xor_b32 v%d, v%d, v%d" % (64+4*j+e, 64+4*j+e, 24+e))
        a("ds_write_b128 v5, %s offset:%d" % (vr(64+4*j), 2048*j))
    b = 64 + 8*k
    a("v_or_b32 v29, v%d, v%d\nv_or3_b32 v29, v29, v%d, v%d\nv_or3_b32 v29, v29, v%d, v%d\nv_or3_b32 v29, v29, v%d, v%d" % tuple(range(b, b+8)))
    a("v_and_b32 v29, s54, v29\nv_cmp_ne_u32 vcc, 0, v29\ns_and_b64 vcc, vcc, s[88:89]\ns_cbranch_vccnz L_qslow%d" % k)
    if (QBAR >> k) & 1:
        a("s_waitcnt lgkmcnt(0)\ns_barrier")
        if QBAR & ((1 << k) - 1) == 0:
            st(4)
            if opt["nsig"] == 17: signal()
    cold.append("L_qslow%d:\ns_movk_i32 s60, %d\ns_branch L_qslow\nL_qre%d:\n" % (k, k, k) + "\n".join(QLD(j) for j in range(2*k, 8)) + "\ns_waitcnt vmcnt(0)\ns_branch L_qchk%d" % k)
cold.append("L_qslow:\ns_add_u32 s48, s48, 1\ns_cmp_lt_u32 s48, 8\ns_cbranch_scc1 L_qre\n" +
  "s_mov_b32 s51, %d\nbuffer_load_dwordx4 v[96:99], v3, %s, s51 offen sc1\nbuffer_load_dwordx4 v[100:103], v3, %s, s51 offen offset:1024 sc1\ns_waitcnt vmcnt(0)\n" % (QD, WS, WS) +
  "".join("v_xor_b32 v%d, s46, v%d\n" % (r, r) for r in range(96, 104)) + "v_or_b32 v96, v96, v97\nv_or3_b32 v96, v96, v98, v99\nv_or3_b32 v96, v96, v100, v101\nv_or3_b32 v96, v96, v102, v103\nv_cmp_ne_u32 vcc, 0, v96\n" +
  "s_cmp_eq_u64 vcc, 0\ns_cselect_b64 s[88:89], 0, -1\ns_cmp_ge_u32 s48, %d\ns_cselect_b64 s[88:89], 0, s[88:89]\nL_qre:\ns_waitcnt vmcnt(0) lgkmcnt(0)\n" % SPIN +
  "s_cmp_eq_u32 s60, 0\ns_cbranch_scc1 L_qre0\ns_cmp_eq_u32 s60, 1\ns_cbranch_scc1 L_qre1\ns_cmp_eq_u32 s60, 2\ns_cbranch_scc1 L_qre2\ns_branch L_qre3")
a("s_setprio 0")
for l in ELD: a(l)
cnt(0)
trrd(2, 0); trrd(3, 0)
a("s_waitcnt vmcnt(6)\ns_barrier")
st(5)
trrd(2, 1); trrd(3, 1)
a("s_barrier")
st(7)
a("s_waitcnt lgkmcnt(0)\ns_barrier")
for b in range(2):
    for kb in range(4): a("ds_read_b128 %s, v7 offset:%d" % (vr(32+16*b+4*kb), kb*2048 + b*1024))
st(8)
def epi(b, r):
    o = (32, 64)[b] + 4*r; acc = 64 + 32*b
    return (["v_cvt_pk_bf16_f32 v%d, v%d, v%d" % (o+k, acc+8*k+r, acc+8*k+4+r) for k in range(4)] + ["v_xor_b32 v%d, v%d, v%d" % (o+k, o+k, 24+k) for k in range(4)] +
            ["buffer_store_dwordx4 %s, v3, %s, s%d offen sc1" % (vr(o), WS, 32+4*b+r)])
fill = sum((epi(0, r) for r in range(4)), [])
for b in range(2):
    for kb in range(4):
        if b == 0: a("s_waitcnt lgkmcnt(%d)" % (7 - kb if kb < 3 else 0))
        for t in range(8):
            mfma(64+32*b+4*t, 32+16*b+4*kb, 128+32*kb+4*t, "0" if kb == 0 else None)
            if b == 1 and 8*kb + t >= 5:
                for _ in range(2 if t & 1 else 1):
                    if fill: a(fill.pop(0))
assert not fill
st(9)
for r in range(4):
    for l in epi(1, r): a(l)
st(10)
a("s_barrier\ns_branch L_e")
def ard(dst, s, k): a("ds_read_b128 %s, v%d offset:%d" % (vr(dst+4*s), 16 + 4*(k>>1) + (s&3), (s>>2)*256 + (k&1)*32768))
def brd(s): a("ds_read_b128 %s, v%d offset:%d" % (vr(64+4*s), 24 + (s&1), s*1024))
q = []
def lw(x):
    global q
    if x in q:
        i = q.index(x); a("s_waitcnt lgkmcnt(%d)" % (len(q) - 1 - i)); q = q[i+1:]
a("L_qkw:")
for s in range(16): ard(128, s, 0)
for s in range(16): ard(192, s, 1)
for n in range(QE): a(DMA)
a("v_mov_b32 v29, 0x%x\ns_waitcnt vmcnt(%d) lgkmcnt(0)\ns_barrier" % (f2u(20.0), QE))
st(4)
PF = opt["qpf"]; nb = 0
for s in range(PF): brd(s); q.append(("b", s)); nb += 1
for s in range(16):
    lw(("b", s))
    mfma(32, 128+4*s, 64+4*s, "0" if s == 0 else None)
    if nb < 16:
        if nb % 4 == 0 and (QBAR >> (nb//4 - 1)) & 1: a("s_barrier")
        brd(nb); q.append(("b", nb)); nb += 1
    mfma(36, 192+4*s, 64+4*s, "0" if s == 0 else None)
    if s: ard(128, s-1, 2); q.append(("c", s-1))
ard(128, 15, 2); q.append(("c", 15))
nd = 0
for s in range(16):
    lw(("c", s))
    mfma(40, 128+4*s, 64+4*s, "0" if s == 0 else None)
    if s == opt["rpos"]: a("s_waitcnt vmcnt(0)\ns_barrier")
    if s >= opt["rpos"] and nd < 12: ard(192, nd, 3); q.append(("d", nd)); nd += 1
for s in range(16):
    while nd < min(16, s + 6): ard(192, nd, 3); q.append(("d", nd)); nd += 1
    lw(("d", s))
    mfma(44, 192+4*s, 64+4*s, "0" if s == 0 else None)
    if s == 10: a("v_max3_f32 v28, v32, v33, v34")
    if 11 <= s <= 14: a("v_max3_f32 v28, v28, v%d, v%d" % (35+2*(s-11), 36+2*(s-11)))
    if s == 15: a("v_max_f32 v28, v28, v43")
st(6)
a("v_max3_f32 v28, v28, v44, v45\nv_max3_f32 v28, v28, v46, v47")
xrow("v_max_f32", 28, 30)
a("ds_write_b32 v4, v28\ns_waitcnt lgkmcnt(0)\ns_barrier\nds_read_b64 v[30:31], v5")
st(7)
c("scores carry a 2^-20 factor from q_abs; p = 2^(s - max - 20) keeps the partial sums inside the tagged bf16 range")
a("s_waitcnt lgkmcnt(0)\nv_max_f32 v28, v30, v31\nv_fma_f32 v28, v28, s59, v29")
for u in range(2):
    for r in range(32+8*u, 40+8*u): a("v_fma_f32 v%d, v%d, s59, -v28\nv_exp_f32 v%d, v%d" % (r, r, r, r))
    for k in range(4): a("v_cvt_pk_bf16_f32 v%d, v%d, v%d" % (56+4*u+k, 32+8*u+2*k, 33+8*u+2*k))
    a("ds_write_b128 v6, %s offset:%d" % (vr(56+4*u), 4096*u))
a("s_cmp_lt_u32 s3, 2\ns_waitcnt lgkmcnt(0)\ns_barrier")
st(8)
a("s_cbranch_scc0 L_qkidle")
for kb in range(4): a("ds_read_b128 %s, v6 offset:%d" % (vr(32+4*kb), kb*2048))
for k in range(4): a("v_mov_b32 v%d, 0x3f803f80" % (48+k))
a("v_mov_b32 v30, s46\nv_mov_b32 v31, s46\ns_lshl_b32 s56, s3, 4\ns_lshl_b32 s56, 0xffff, s56\ns_waitcnt lgkmcnt(0)")
for kb in range(4): mfma(52, 48, 32+4*kb, "0" if kb == 0 else None)
a("v_mov_b32 v29, v52\ns_mov_b32 exec_lo, s56\ns_mov_b32 exec_hi, 0\nbuffer_store_dwordx4 v[28:31], v3, %s, s61 offen sc1" % WS)
execall()
st(9)
a("L_qkidle:\ns_barrier")
for l in ELD: a(l)
a("s_cmp_eq_u32 s3, 2\ns_cbranch_scc0 L_gud")
c("wave 2: h = g*u from the four partial sums of this head's FFN columns")
a("s_lshl_b32 s50, s42, 11\ns_add_u32 s50, s50, %d\nv_lshlrev_b32 v1, 2, v2" % GU)
L = loop_head("gu")
for k in range(8): a("buffer_load_dword v%d, v1, %s, s50 offen offset:%d sc1" % (40+k, WS, 256*k))
a("s_waitcnt vmcnt(0)")
for stp in (4, 2):
    for e in range(stp): a("v_add_f32 v%d, v%d, v%d" % (40+e, 40+e, 40+stp+e))
rbf(40); rbf(41)
a("v_mul_f32 v40, v40, v41\nv_cmp_u_f32 vcc, v40, v40")
retry(L)
cnt(1)
a("v_cvt_pk_bf16_f32 v40, v40, v40\nv_lshlrev_b32 v1, 1, v2\nds_write_b16 v1, v40 offset:%d" % L_HV)
a("L_gud:\ns_waitcnt vmcnt(0)")
a("L_e:")
imgtr(52)
a("""s_lshl_b32 s85, s42, 10
s_add_u32 s85, s85, %d
v_lshlrev_b32 v53, 2, v2
v_lshlrev_b32 v55, 4, v11
s_lshl_b32 s50, s90, 5
s_add_u32 s50, s50, s42
s_lshl3_add_u32 s50, s50, s3
s_lshl_b32 s50, s50, 6
s_add_u32 s50, s50, %d
s_lshr_b32 s53, s40, 1
s_xor_b32 s54, s53, s90
s_and_b32 s53, s42, 2
s_or_b32 s54, s54, s53
s_xor_b32 s53, s3, 2
s_or_b32 s54, s54, s53
s_and_b32 s53, s42, 1
s_lshl1_add_u32 s52, s40, s53
s_and_b32 s51, s52, 3
s_lshl_b32 s51, s51, 7
s_lshl_b32 s52, s52, 6
s_lshl_b32 s57, s90, 14
s_add_u32 s57, s57, s51
s_add_u32 s57, s57, %d
v_lshlrev_b32 v57, 3, v9
v_lshl_add_u32 v57, v11, 1, v57
v_add_u32 v57, s52, v57
v_lshlrev_b32 v56, 11, v8
v_lshl_add_u32 v56, v9, 4, v56
s_waitcnt vmcnt(8) lgkmcnt(0)
s_barrier
global_load_ushort v58, v57, s[12:13]
ds_read_b128 v[36:39], v55 offset:%d
ds_read_b128 v[40:43], v55 offset:%d""" % (H4 + H4X*opt["loc"], H5, H5, L_HV, L_HV + 64))
imgrd(144, 52, 32768, 2); imgrd(128, 52, 0, 4)
a("v_cmp_eq_u32 vcc, 0, v12\ns_waitcnt lgkmcnt(0)")
for v in range(36, 44): a("v_cndmask_b32 v%d, 0, v%d, vcc" % (v, v))
mfma(92, 36, 144, "0"); mfma(92, 40, 148)
a("s_xor_b32 s51, s3, 4\ns_lshl3_add_u32 s58, s44, s51\ns_lshl_b32 s58, s58, 2\ns_add_u32 s58, s58, %d\nv_mov_b32 v4, s46\ns_waitcnt vmcnt(0)\nv_lshlrev_b32 v58, 16, v58" % DF)
DFST = "s_mov_b64 exec, 1\nbuffer_store_dword v4, v3, %s, s58 offen sc1\ns_mov_b64 exec, -1" % WS
st(1)
H4L = "buffer_load_dwordx4 v[%d:%d], v3, " + WS + ", s85 offen sc1"
c("context partials of this head: two polls in flight on the XCD-local copy, then alternate with the write-through copy")
a("s_movk_i32 s48, 40\n" + H4L % (36, 39) + "\nL_p4:\n" + H4L % (40, 43) + "\ns_waitcnt vmcnt(1)\nv_cmp_eq_u32 vcc, -1, v39\ns_cbranch_vccz L_p4a\n" + H4L % (36, 39))
a("s_sub_u32 s48, s48, 1\ns_cbranch_scc1 L_p4x\ns_waitcnt vmcnt(1)\nv_cmp_eq_u32 vcc, -1, v43\ns_cbranch_vccnz L_p4")
for g in range(4): mfma(64+4*g, 40, 128+4*g, vr(92) if g == 0 else "0")
a("s_branch L_p4j\nL_p4x:")
L = loop_head("h4")
a(H4L % (36, 39) + "\ns_waitcnt vmcnt(0)\nL_p4a:")
for g in range(4): mfma(64+4*g, 36, 128+4*g, vr(92) if g == 0 else "0")
a("L_p4j:\ns_nop 4")
for g in range(4):
    for k in range(2): dpp("v_add_f32", 80+k, 64+4*g+2*k, 65+4*g+2*k, "quad_perm:[0,1,2,3]", row=1 << g)
a("v_add_f32 v82, v80, v81\nv_add_f32 v80, v80, v81\nv_permlane16_swap_b32 v80, v82\nv_add_f32 v81, v80, v82\nv_add_f32 v80, v80, v82\nv_permlane32_swap_b32 v80, v81\nv_add_f32 v80, v80, v81\nv_cmp_u_f32 vcc, v80, v80")
retry(L, "s_xor_b32 s85, s85, 0x%x\ns_and_b32 s87, s48, 31\ns_cmp_eq_u32 s87, 1\ns_cbranch_scc0 @_o\n%s\n@_o:\n" % (H4X, DFST))
a("s_mov_b64 exec, 0xffff\nbuffer_store_dword v80, v53, %s, s50 offen sc1" % WS)
cnt(3); st(2)
a("s_cmp_lt_u32 s3, 4\ns_cbranch_scc1 L_nodf\n" + DFST + "\nL_nodf:")
execall()
a("s_cmp_eq_u32 s54, 0\ns_cbranch_scc0 L_fin")
c("16 waves finish 32 output columns each: x + sum over the 32 heads")
def h5l(b):
    for n in range(4): a("buffer_load_dwordx4 %s, v56, %s, s57 offen offset:%d sc1" % (vr(b+4*n), WS, n*512))
def h5q(b, L, inv): a("v_max3_u32 v5, v%d, v%d, v%d\nv_max_u32 v5, v5, v%d\nv_cmp_eq_u32 vcc, -1, v5\ns_cbranch_vcc%s %s" % (b, b+4, b+8, b+12, "nz" if inv else "z", L))
def h5s(b):
    for e in range(0, 8, 2): a("v_pk_add_f32 v[%d:%d], v[%d:%d], v[%d:%d]" % (112+e, 113+e, b+e, b+1+e, b+8+e, b+9+e))
if opt["pp5"]:
    nap = "s_sleep %d" % opt["pp5"]
    a("s_movk_i32 s48, 64"); h5l(32)
    a("L_p5:\n" + nap); h5l(64); a("s_waitcnt vmcnt(4)"); h5q(32, "L_p5a", False)
    a(nap); h5l(96); a("s_waitcnt vmcnt(4)"); h5q(64, "L_p5b", False)
    a(nap); h5l(32); a("s_sub_u32 s48, s48, 1\ns_cbranch_scc1 L_p5x\ns_waitcnt vmcnt(4)"); h5q(96, "L_p5", True)
    h5s(96); a("s_branch L_p5j\nL_p5b:"); h5s(64); a("s_branch L_p5j\nL_p5x:")
L = loop_head("h5")
h5l(32)
a("s_waitcnt vmcnt(0)\nL_p5a:")
h5s(32)
a("L_p5j:\nv_pk_add_f32 v[112:113], v[112:113], v[116:117]\nv_pk_add_f32 v[114:115], v[114:115], v[118:119]\ns_mov_b32 s88, 0x00ff00ff\ns_mov_b32 s89, s88")
a("v_permlane32_swap_b32 v112, v114\nv_permlane32_swap_b32 v113, v115\nv_add_f32 v112, v112, v114\nv_add_f32 v113, v113, v115\nv_cmp_u_f32 vcc, v112, v113\nv_permlane16_swap_b32 v112, v113")
retry(L)
a("v_add_f32 v112, v112, v113")
dpp("v_add_f32", 112, 112, 112, "row_ror:8")
a("s_mov_b64 exec, s[88:89]\nv_add_f32 v112, v112, v58\nv_cvt_pk_bf16_f32 v112, v112, v112\nbuffer_store_short v112, v57, %s, 0 offen" % srd("out"))
cnt(2); st(11)
a("s_cmp_eq_u32 s42, 0\ns_cbranch_scc0 L_fin\ns_mov_b64 exec, 1\nbuffer_store_dword v4, v3, %s, 0 offen" % WS)
a("L_fin:")
if opt["stamps"]:
    execall()
    write_stamps(a, 16, 4, 2, 3, 8)
a("L_end:\ns_endpgm")
for x in cold: a(x)
a("L_codeend:\n.fill (16384 + 512 - (L_codeend - %s))/4, 4, 0xbf800000" % K)
txt = a.text()
if opt["cyc"]: txt = txt.replace("s_memrealtime", "s_memtime") + "; s_memrealtime\n"
open(sys.argv[1], "w").write(finish(["grid=(256,1,1) block=(512,1,1) lds=163840"], hazard.fix(txt, False), [descriptor(K, 256, 102, 256)]))
```

```python
import sys, re
from asmlib import *
import hazard
src, dst, k, typ = sys.argv[1], sys.argv[2], int(sys.argv[3]), int(sys.argv[4])
s = open(src).read()
K = NAME + "_kernel"
s = s.replace(K, "main_kernel")
m = re.search(r"; @launch (grid=.*)\n", s)
s = s.replace(m.group(0), "; @launch kernel=main_kernel %s\n; @launch kernel=probe_kernel grid=(1,1,1) block=(64,1,1) lds=0\n" % m.group(1))
a = Asm()
kernel_begin(a, "probe_kernel")
a("s_cmp_ge_u32 s2, 1\ns_cbranch_scc1 probe_end")
a("s_memrealtime s[20:21]")
load_srd(a, 4, "ws")
a("v_lshlrev_b32 v1, 6, v0\ns_mov_b32 s10, %d\ns_waitcnt lgkmcnt(0)" % STAMP_OFF)
for n in range(32):
    a("buffer_load_dword v%d, v1, s[4:7], s10 offen\nbuffer_load_dword v%d, v1, s[4:7], s10 offen offset:%d\ns_add_u32 s10, s10, 4096" % (8+n, 48+n, 4*max(k,0)))
    if n == 15: a("s_waitcnt vmcnt(0)")
a("s_waitcnt vmcnt(0)\nv_mov_b32 v4, 0")
for n in range(1, 32): a("v_min_u32 v8, v8, v%d" % (8+n))
for n in range(32):
    if typ >= 2 or (n & 1) == typ: a("v_max_u32 v4, v4, v%d" % (48+n))
for op, v in (("v_min_u32", 8), ("v_max_u32", 4)):
    for ror in (8,4,2,1): a("%s_dpp v%d, v%d, v%d row_ror:%d row_mask:0xf bank_mask:0xf" % (op, v, v, v, ror))
    for sw in ("v_permlane16_swap_b32", "v_permlane32_swap_b32"): a("v_mov_b32 v5, v%d\n%s v%d, v5\n%s v%d, v%d, v5" % (v, sw, v, op, v, v))
a("v_sub_u32 v8, v4, v8" if typ < 3 else "v_sub_u32 v8, s20, v4")
a("v_readfirstlane_b32 s12, v8\ns_min_u32 s12, s12, 10000\ns_mul_i32 s12, s12, %d" % (20 if k >= 0 else 0))
a("s_memrealtime s[14:15]\ns_waitcnt lgkmcnt(0)\nprobe_loop:\ns_memrealtime s[16:17]\ns_waitcnt lgkmcnt(0)\ns_sub_u32 s16, s16, s14\ns_cmp_lt_u32 s16, s12\ns_cbranch_scc1 probe_loop\nprobe_end:\ns_endpgm")
s = s.replace('.section .rodata,"a"\n', hazard.fix(a.text()) + '.section .rodata,"a"\n') + descriptor("probe_kernel")
open(dst, "w").write(s)
```

```python
import sys, math, struct
from asmlib import *
import hazard
def f2u(x): return struct.unpack("<I", struct.pack("<f", x))[0]
opt = dict(stamps=0, smask=0xfff, cyc=0, spin=1<<16, nt="nt", ntw="nt", win=4, nsig=15, ksig=2, qwin=3, qe=3, qbar=0b1011, qpf=3, rpos=10,
           pp5=1, loc=1, pre=1, inst=1, mlpre=1, km=16, qde=1, gul=1, hp=32, h5w=1, km1=1, h4m=0, h4w=0, pp4=0, k5=16, dfl=0, pt=0, pser=1, sgl=40, ufirst=0, e1n=6,  mlat=0, fake=0, ntg="", lag=0, sgw=3, esp=0, dbgq=0, upos=0, hold=0, opos=1, win0=4, dbgf=0)
for x in sys.argv[2:]:
    k, v = x.split("=")
    assert k in opt, k
    opt[k] = v if k.startswith("nt") else int(v, 0)
NT = opt["nt"]; NTW = opt["ntw"]; SPIN = opt["spin"]; WIN = opt["win"]; QE = opt["qe"]; QBAR = opt["qbar"]

QA = 0x40000; QD = 0x50000; DF = 0x58000; ML = 0x60000; GU = 0x70000; H4 = 0x80000; H4X = 0x10000; SG = 0xA0000; H5 = 0xC0000
Q1 = 0x600000; Q1X = 0x20000; PART = 0x800000
L_Q = 131072; L_MX = L_Q; L_PX = L_Q + 8192; L_HV = 49152
L_XR = L_Q - 2048; L_XN = L_Q - 1024; L_XP = L_Q - 512; L_QV = L_Q - 256
L_FP = 0; L_R1 = 8192; L_WT = 20480; L_U = 32768
S = dict(ws=4, w=16, ckv=20, wuv=24, wo=28, wg=32, wu=36, wd=92, out=96)
def srd(b): return "s[%d:%d]" % (S[b], S[b]+3)
WS = srd("ws")
a = Asm(); K = NAME + "_kernel"
cold = []
def c(t): a.lines.append("    ; " + t)
def st(k):
    if opt["stamps"] and (opt["smask"] >> k) & 1: a("s_memrealtime s[62:63]\ns_waitcnt lgkmcnt(0)\ns_mov_b32 s%d, s62" % (64+k))
def sf(k):
    if opt["dbgf"]: a("s_memrealtime s[62:63]\ns_waitcnt lgkmcnt(0)\ns_mov_b32 s%d, s62" % (64+k))
def sq(k):
    if opt["dbgq"]: a("s_memtime s[%d:%d]" % (64+2*k, 65+2*k))
def cnt(k):
    if opt["stamps"] and not opt["dbgq"]: a("s_mov_b32 s%d, s48" % (76+k))
def ptr(b): a("s_load_dwordx2 s[%d:%d], s[0:1], %d" % (S[b], S[b]+1, KOFF[b]))
def fmt(b): a("s_mov_b32 s%d, %d\ns_mov_b32 s%d, 0x20000" % (S[b]+2, SIZES[b], S[b]+3))
def vr(v, n=4): return "v[%d:%d]" % (v, v+n-1)
def mfma(d, A, B, cc=None):
    a("v_mfma_f32_16x16x32_bf16 %s, %s, %s, %s" % (vr(d), vr(A), vr(B), vr(d) if cc is None else cc))
def dpp(op, d, s0, s1, ctl, bank=0xf, row=0xf):
    a("%s_dpp v%d, v%d, v%d %s row_mask:0x%x bank_mask:0x%x" % (op, d, s0, s1, ctl, row, bank))
def xrow(op, v, t):
    for sw in ("v_permlane16_swap_b32", "v_permlane32_swap_b32"):
        a("v_mov_b32 v%d, v%d\n%s v%d, v%d\n%s v%d, v%d, v%d" % (t, v, sw, v, t, op, v, v, t))
def allred(op, v, t):
    for ror in (8,4,2,1): dpp(op, v, v, v, "row_ror:%d" % ror)
    xrow(op, v, t)
def rbf(v): a("v_cvt_pk_bf16_f32 v%d, v%d, v%d\nv_and_b32 v%d, 0xffff0000, v%d" % (v, v, v, v, v))
def setexec(lo, hi): a("s_mov_b32 exec_lo, 0x%x\ns_mov_b32 exec_hi, 0x%x" % (lo, hi))
def execall(): a("s_mov_b64 exec, -1")
def loop_head(name):
    L = a.label(name); a("s_mov_b32 s48, 0\n%s:" % L); return L
def retry(L, extra=""):
    R = a.label("rt"); D = a.label("ok")
    a("s_cbranch_vccnz %s\n%s:" % (R, D))
    cold.append("%s:\ns_add_u32 s48, s48, 1\n%ss_cmp_lt_u32 s48, %d\ns_cbranch_scc1 %s\ns_branch %s" % (R, extra.replace("@", R), SPIN, L, D))
def tagbits(dst, t, sh):
    a("v_bfe_u32 v%d, v%d, %d, 1\nv_lshlrev_b32 v%d, 14, v%d\nv_bfe_u32 v%d, v%d, %d, 1\nv_lshl_or_b32 v%d, v%d, 30, v%d" % (dst, t, sh, dst, dst, t+1, t, sh+1, dst, t+1, dst))
def tagmasks(vm, t):
    a("v_mul_u32_u24 v%d, 33, v9\nv_add_u32 v%d, s46, v%d" % (t, t, t))
    for k in range(4): tagbits(vm+k, t, 2*k)
def units():
    a("s_cmp_lt_u32 s40, 3\ns_cselect_b32 s56, 6, 5\ns_cselect_b32 s57, 0, 12\ns_mul_i32 s51, s42, s56\ns_add_u32 s57, s57, s51")
def imgswz(v): a("v_lshlrev_b32 v%d, 1, v11\nv_xor_b32 v%d, v%d, v12\nv_lshlrev_b32 v%d, 4, v%d" % (v, v, v, v, v))
def imgtr(v): a("v_lshrrev_b32 v30, 2, v2\nv_and_b32 v31, 7, v30\nv_xor_b32 v31, s3, v31\nv_lshlrev_b32 v31, 5, v31\nv_lshl_add_u32 v31, v30, 8, v31\nv_and_b32 v30, 3, v2\nv_lshl_add_u32 v%d, v30, 3, v31" % v)
def imgrd(dst, vtr, base, nks):
    for ks in range(nks):
        for T in range(2): a("ds_read_b64_tr_b16 v[%d:%d], v%d offset:%d" % (dst+4*ks+2*T, dst+4*ks+2*T+1, vtr, base + ks*8192 + T*4096))
def slice_dma():
    for n in range(4):
        a("buffer_load_dwordx4 v%d, %s, s50 offen offset:%d lds" % ((10, 13)[n&1], srd("w"), 1024*n))
        if n < 3: a("s_addk_i32 s50, 15360")

kernel_begin(a, K)
if opt["stamps"]: a("s_memrealtime s[64:65]")
c("s3 wave, s40 wg&7, s41 slot, s42 head h, s43 64-row record of this CU; s[12:13] x, s[14:15] c_kv, s[16:17] w_q, s[18:19] w_uk")
def ids():
    a("""s_and_b32 s40, s2, 7
s_lshr_b32 s42, s2, 6
s_lshl2_add_u32 s42, s40, s42
s_and_b32 s43, s41, 7
s_xor_b32 s43, s43, 1
s_and_b32 s51, s3, 2
s_lshl2_add_u32 s50, s43, s51
s_and_b32 s51, s3, 1
s_lshl4_add_u32 s50, s50, s51
s_lshl_b32 s50, s50, 5
s_add_u32 s50, s50, s42
s_lshl_b32 s50, s50, 8
v_and_b32 v2, 63, v0
v_lshrrev_b32 v11, 4, v2
v_and_b32 v12, 15, v2
v_lshlrev_b32 v3, 4, v2""")
    imgswz(10)
    a("v_lshl_add_u32 v10, v11, 16, v10\nv_xor_b32 v13, 0x80, v10\ns_add_u32 s51, s3, 32\ns_lshl_b32 m0, s51, 12")
a("""s_load_dwordx8 s[12:19], s[0:1], 0
s_load_dwordx2 s[4:5], s[0:1], 96
v_lshrrev_b32 v1, 6, v0
s_cmpk_ge_u32 s2, 256
v_readfirstlane_b32 s3, v1
s_cbranch_scc1 L_end
s_lshr_b32 s41, s2, 3
s_cmp_lt_u32 s3, 4
s_cbranch_scc1 L_e1""")
c("waves 4-7 pull one line of this kernel's code each into L2, then run ahead to the code behind the entry block")
a("""s_getpc_b64 s[50:51]
v_lshl_add_u32 v1, s41, 8, v0
v_lshlrev_b32 v1, 1, v1
global_load_ushort v59, v1, s[50:51] offset:-512
s_branch L_hi
L_e1:""")
ids()
a("""s_cmp_lg_u32 s3, 0
s_waitcnt lgkmcnt(0)
s_cbranch_scc1 L_e2
global_load_dwordx4 v[4:7], v3, s[12:13]
L_e2:
s_lshl_b32 s18, 1, 22
s_mov_b32 s19, 0x20000""")
c("waves 0-3: w_q[64 rows, h, :] -> LDS image")
slice_dma()
a(".p2align 8\ns_branch L_front\nL_hi:")
ids()
a("s_waitcnt lgkmcnt(0)\ns_mov_b64 s[16:17], s[18:19]\ns_lshl_b32 s18, 1, 22\ns_mov_b32 s19, 0x20000")
c("waves 4-7: w_uk[64 rows, h, :] -> LDS image (attention CUs only warm L2 for their partner)")
if opt["upos"] == 0: slice_dma()
a("L_front:")
sf(1)
a("s_load_dword s46, s[4:5], 0\ns_load_dwordx2 s[8:9], s[0:1], 24")
fmt("ws")
if opt["stamps"]:
    for k in range(2, 16): a("s_mov_b32 s%d, 0" % (64+k))
a("""v_lshrrev_b32 v61, 2, v12
v_lshlrev_b32 v61, 7, v61
v_and_b32 v1, 3, v2
v_lshl_add_u32 v61, v1, 2, v61
s_lshl3_add_u32 s53, s42, s3
s_lshl_b32 s53, s53, 5
s_add_u32 s53, s53, s43
s_lshl_b32 s53, s53, 4
s_add_u32 s53, s53, %d
s_lshl3_add_u32 s54, s42, s43
s_lshl3_add_u32 s54, s54, s3
s_lshl_b32 s54, s54, 6
s_add_u32 s54, s54, %d
s_lshr_b32 s90, s43, 1
v_lshrrev_b32 v8, 3, v2
v_and_b32 v9, 7, v2
v_lshlrev_b32 v58, 2, v2
v_lshlrev_b32 v23, 6, v12
v_and_b32 v57, 12, v2
v_lshl_add_u32 v57, v1, 4, v57""" % (Q1 + Q1X, Q1))
imgtr(52)
a("v_add_u32 v60, %d, v52\ns_and_b32 s51, s43, 1\ns_lshl_b32 s51, s51, 7\ns_add_u32 s51, s51, %d\nv_lshl_add_u32 v56, v11, 4, s51" % (L_Q, L_XP))
if opt["upos"]:
    a("s_cmp_lt_u32 s3, 4\ns_cbranch_scc1 L_nou")
    if opt["upos"] == 2: a("s_waitcnt lgkmcnt(0)")
    slice_dma()
    a("L_nou:")
a("s_cmp_eq_u32 s3, 0\ns_cbranch_scc1 L_ln\ns_bitcmp1_b32 s41, 0\ns_cbranch_scc1 L_bpre\ns_branch L_apre")
a("L_ln:\nv_add_u32 v1, %d, v3\ns_lshl_b32 s51, s90, 8\ns_add_u32 s51, s51, %d\nv_lshl_add_u32 v15, v2, 1, s51" % (L_XR, L_XR))
a("v_bfe_u32 v44, v2, 1, 2\nv_and_b32 v45, 1, v2\nv_lshl_add_u32 v44, v44, 1, v45\nv_and_b32 v45, 3, v8\nv_lshl_add_u32 v44, v44, 2, v45\nv_and_or_b32 v44, v2, 32, v44\nv_lshlrev_b32 v44, 1, v44\nv_add_u32 v44, %d, v44\nv_add_u32 v45, %d, v58" % (L_XP, L_XN))
a("s_waitcnt vmcnt(4)\nds_write_b128 v1, v[4:7]\nds_read_u16 v14, v15\nds_read_u16 v15, v15 offset:128")
for k in range(4): a("v_lshlrev_b32 v%d, 16, v%d\nv_and_b32 v%d, 0xffff0000, v%d" % (32+2*k, 4+k, 33+2*k, 4+k))
a("v_add_f32 v40, v32, v33\nv_add_f32 v41, v34, v35\nv_add_f32 v42, v36, v37\nv_add_f32 v43, v38, v39\nv_add_f32 v40, v40, v41\nv_add_f32 v42, v42, v43\nv_add_f32 v40, v40, v42")
allred("v_add_f32", 40, 41)
a("v_mul_f32 v40, 0x%x, v40" % f2u(1/512))
for k in range(8): a("v_sub_f32 v%d, v%d, v40" % (32+k, 32+k))
a("v_mul_f32 v42, v32, v32")
for k in range(1, 8): a("v_fmac_f32 v42, v%d, v%d" % (32+k, 32+k))
allred("v_add_f32", 42, 41)
a("v_mul_f32 v42, 0x%x, v42" % f2u(1/512))
rbf(42); rbf(40)
a("v_add_f32 v42, 0x%x, v42" % f2u(1e-5)); rbf(42)
a("v_sqrt_f32 v42, v42\ns_waitcnt lgkmcnt(0)\nv_lshlrev_b32 v14, 16, v14\nv_sub_f32 v14, v14, v40\nv_lshlrev_b32 v15, 16, v15\nv_sub_f32 v15, v15, v40"); rbf(42)
a("v_rcp_f32 v43, v42"); rbf(14); rbf(15)
for v in (14, 15): a("v_mul_f32 v41, v%d, v43\nv_fma_f32 v%d, -v41, v42, v%d\nv_fma_f32 v%d, v%d, v43, v41\nv_cvt_pk_bf16_f32 v%d, v%d, v%d" % ((v,)*8))
a("ds_write_b16 v44, v14\nds_write_b16 v44, v15 offset:128\nds_write2st64_b32 v45, v14, v15 offset1:1")
st(1)
a("s_bitcmp1_b32 s41, 0\ns_cbranch_scc0 L_apre")
a("L_stagea:\ns_waitcnt lgkmcnt(0)\ns_add_u32 s46, s46, 1\ns_and_b32 s47, s46, 0xff\nv_mov_b32 v1, s47\ns_movk_i32 s51, 0xff")
sf(2)
def odd():
    a("s_mov_b64 s[16:17], s[8:9]\ns_add_u32 s50, s50, %d\ns_sub_u32 m0, m0, 49152" % ((1 << 19) - 3*15360))
    slice_dma()
a("s_cmp_lt_u32 s3, 4\ns_cbranch_scc0 L_sa1\ns_waitcnt vmcnt(0)")
if opt["opos"] == 1:
    a("s_bitcmp1_b32 s41, 0\ns_cbranch_scc0 L_sa1"); odd()
a("L_sa1:")
sf(3)
a("s_barrier")
sf(4)
st(2)
a("ds_read_b128 v[32:35], v56")
imgrd(40, 60, 0, 2)
a("ds_read_b128 v[36:39], v56 offset:64\ns_waitcnt lgkmcnt(3)")
mfma(28, 32, 40, "0")
a("s_waitcnt lgkmcnt(0)")
mfma(28, 36, 44)
a("s_mov_b64 exec, 0xffff\ns_bitcmp1_b32 s41, 0\nv_bfi_b32 v28, s51, v1, v28\nbuffer_store_dword v28, v61, %s, s53 offen\ns_mov_b64 exec, -1\ns_barrier" % WS)
Q1G = "s_mov_b64 exec, 0xffff\nbuffer_store_dword v28, v58, %s, s54 offen sc1\ns_mov_b64 exec, -1" % WS
sf(5)
a("s_cbranch_scc0 L_attn")
a("s_cmp_lt_u32 s3, 4\ns_cbranch_scc0 L_gath")
if opt["opos"] == 0: odd()
st(3)
a("s_waitcnt vmcnt(0)")
sf(6)
a(Q1G + "\ns_barrier\ns_branch L_wtail\nL_gath:")
if opt["dbgf"]: a("s_waitcnt vmcnt(1)"); sf(6)
L = loop_head("h1")
a("buffer_load_dwordx4 v[32:35], v14, %s, s55 offen sc1\ns_waitcnt vmcnt(0)" % WS)
for r in range(4): a("v_xor_b32 v%d, s47, v%d" % (32+r, 32+r))
a("v_or_b32 v5, v32, v33\nv_or3_b32 v5, v5, v34, v35\nv_and_b32 v5, 0xff, v5\nv_cmp_ne_u32 vcc, 0, v5")
dpp("v_add_f32", 32, 32, 32, "quad_perm:[1,0,3,2]"); dpp("v_add_f32", 33, 33, 33, "quad_perm:[1,0,3,2]")
retry(L, "s_cmp_eq_u32 s48, 8\ns_cbranch_scc0 @_a\n" + Q1G + "\n@_a:\ns_cmp_lt_u32 s48, 12\ns_cbranch_scc1 @_b\nv_swap_b32 v14, v15\n@_b:\n")
dpp("v_add_f32", 34, 34, 34, "quad_perm:[1,0,3,2]"); dpp("v_add_f32", 35, 35, 35, "quad_perm:[1,0,3,2]")
for ctl in ("quad_perm:[2,3,0,1]", "row_half_mirror"):
    for v in range(32, 36): dpp("v_add_f32", v, v, v, ctl)
a("v_cvt_pk_bf16_f32 v32, v32, v33\nv_cvt_pk_bf16_f32 v33, v34, v35\nds_write_b64 v20, v[32:33]")
cnt(0); st(1); sf(7)
a("s_waitcnt lgkmcnt(0)\ns_barrier")
sf(8)
for s in range(4):
    a("ds_read_b128 %s, v21 offset:%d" % (vr(32+4*s), 64*s))
    for t in range(2): a("ds_read_b128 %s, v%d offset:%d" % (vr(64+8*s+4*t), 16+s, 4096*t))
for s in range(4):
    a("s_waitcnt lgkmcnt(%d)" % (9 - 3*s))
    for t in range(2): mfma(96+4*t, 32+4*s, 64+8*s+4*t, "0" if s == 0 else None)
SC = (128 ** -0.5) * math.log2(math.e) * 2.0**-20
a("s_mov_b64 exec, 0xffff\nv_mul_f32 v96, 0x%x, v96\nv_mul_f32 v100, 0x%x, v100\nv_cvt_pk_bf16_f32 v96, v96, v100\nv_xor_b32 v96, v96, v22" % (f2u(SC), f2u(SC)))
a("buffer_store_dword v96, v57, %s, s60 offen sc1" % WS)
st(3); sf(9)
a(Q1G)
a("s_branch L_wtail")
a("L_bpre:")
a("""s_and_b32 s44, s3, 3
s_lshl_b32 s55, s42, 12
s_add_u32 s55, s55, %d
s_lshl_b32 s51, s44, 10
s_add_u32 s51, s51, %d
v_add_u32 v14, s51, v3
v_lshlrev_b32 v15, 9, v9
v_lshl_add_u32 v15, v8, 4, v15
s_lshl_b32 s51, s44, 7
v_add_u32 v15, s51, v15""" % (Q1, Q1X))
if opt["inst"]:
    c("make the XCD-local q-partial lines resident")
    a("s_add_u32 s51, s90, 4\ns_cmp_eq_u32 s3, s51\ns_cbranch_scc0 L_noin" if opt["inst"] == 1 else "s_cmp_lt_u32 s3, 4\ns_cbranch_scc1 L_noin")
    a("buffer_load_dwordx4 v[104:107], v14, %s, s55 offen sc1\nL_noin:" % WS)
if not opt["loc"]: a("v_swap_b32 v14, v15")
a("""s_lshl_b32 s51, s44, 6
s_add_u32 s51, s51, %d
v_lshl_add_u32 v20, v8, 3, s51
v_lshlrev_b32 v21, 4, v11
v_add_u32 v21, %d, v21
s_and_b32 s51, s44, 1
s_lshl_b32 s51, s51, 13
s_and_b32 s56, s44, 2
s_lshl_b32 s56, s56, 15
s_sub_u32 s51, s51, s56
s_add_u32 s51, s51, %d
v_lshl_add_u32 v5, v12, 8, s51
v_lshlrev_b32 v6, 1, v9
v_xor_b32 v6, v6, v11""" % (L_QV, L_QV, L_Q + 16384))
for s in range(4): a("v_xor_b32 v%d, %d, v6\nv_lshl_add_u32 v%d, v%d, 4, v5" % (16+s, 4*s, 16+s, 16+s))
a("""s_lshl3_add_u32 s49, s42, s43
s_lshl1_add_u32 s49, s49, s44
s_lshl_b32 s60, s49, 6
s_add_u32 s60, s60, %d
v_lshrrev_b32 v5, 5, v2
v_lshl_add_u32 v23, v5, 16, v23
s_lshl_b32 s59, s42, 6
s_add_u32 s59, s59, s90
s_lshl_b32 s59, s59, 4
s_add_u32 s59, s59, %d
s_cmp_eq_u32 s3, 5
s_cbranch_scc0 L_noclr""" % (QA, H4))
c("wave 5 clears the later hand-off slots of this CU pair (acknowledged before q_abs goes out)")
for r in range(4): a("v_mov_b32 v%d, -1" % (24+r))
a("""buffer_store_dwordx4 v[24:27], v23, %s, s59 offen sc1
s_lshl2_add_u32 s56, s42, s90
s_lshl_b32 s56, s56, 9
s_add_u32 s56, s56, %d
s_lshl_b32 s57, s90, 5
s_add_u32 s57, s57, s42
s_lshl_b32 s57, s57, 9
s_add_u32 s57, s57, %d
s_sub_u32 s57, s57, s56
v_mul_lo_u32 v5, v5, s57
v_add_u32 v5, v5, v3
buffer_store_dwordx4 v[24:27], v5, %s, s56 offen sc1
L_noclr:
s_and_b32 s51, s3, 1
v_and_b32 v5, 3, v2
v_and_b32 v6, 12, v2
v_lshl_add_u32 v5, s51, 2, v5
v_mul_u32_u24 v5, 33, v5
s_waitcnt lgkmcnt(0)
v_add3_u32 v5, v5, s46, 1
v_lshrrev_b32 v6, 1, v6
v_lshrrev_b32 v5, v6, v5""" % (WS, GU, H5 - 512, WS))
tagbits(22, 5, 0)
a("s_branch L_stagea")

a("L_wtail:")
for b in ("wuv","wg","wu"): ptr(b)
for b in ("wuv","wg","wu"): fmt(b)
c("selector masks v16..v19 (8x128B tiles), v24..v27 (4x256B tiles), tag masks v20..v23")
a("v_and_b32 v1, 1, v2\nv_cmp_eq_u32 vcc, 1, v1\nv_mov_b32 v1, 0xffff\nv_mov_b32 v16, 0xffff0000\nv_cndmask_b32 v1, v1, v16, vcc\nv_bfe_u32 v19, v2, 1, 2")
for r in range(4): a("v_cmp_eq_u32 vcc, %d, v19\nv_cndmask_b32 v%d, 0, v1, vcc" % (r, 16+r))
a("v_cmp_gt_u32 vcc, 8, v12")
for r in range(4): a("v_cndmask_b32 v%d, 0, v%d, vcc" % (24+r, 16+r))
tagmasks(20, 4); units(); imgswz(50)
a("""v_lshl_add_u32 v50, v11, 17, v50
v_xor_b32 v51, 0x80, v50
v_mul_u32_u24 v10, 5504, v8
v_lshl_add_u32 v10, v9, 4, v10
v_bfrev_b32 v5, 1
v_cmp_gt_u32 vcc, s56, v9
v_cndmask_b32 v10, v5, v10, vcc
s_and_b32 s51, s3, 1
s_lshl1_add_u32 s50, s90, s51
s_lshl_b32 s50, s50, 5
s_and_b32 s51, s3, 6
s_add_u32 s50, s50, s51
s_lshl_b32 s50, s50, 14
s_lshl_b32 s51, s42, 8
s_add_u32 s58, s50, s51
s_lshl3_add_u32 s50, s90, s3
s_mul_i32 s50, s50, %d
s_lshl_b32 s51, s57, 4
s_add_u32 s61, s50, s51
s_and_b32 s50, s42, 3
s_bfe_u32 s53, s42, 0x20002
s_lshl2_add_u32 s50, s50, s53
s_lshl_b32 s50, s50, 8
s_lshl_b32 s53, s3, 19
s_add_u32 s50, s50, s53
s_add_u32 s80, s50, %d
s_xor_b32 s81, s80, 0x8400
s_xor_b32 s82, s80, 0x10800
s_xor_b32 s83, s80, 0x18c00
s_lshr_b32 s53, s42, 4
s_lshl1_add_u32 s53, s90, s53
s_and_b32 s51, s3, 1
s_lshl_b32 s51, s51, 2
s_xor_b32 s53, s53, s51
v_xor_b32 v5, s53, v11
v_lshlrev_b32 v7, 17, v11
v_lshl_add_u32 v7, v12, 4, v7
v_lshl_add_u32 v7, v5, 12, v7
s_lshl2_add_u32 s84, s42, s90
s_lshl_b32 s84, s84, 9
s_add_u32 s84, s84, %d
s_and_b32 s51, s3, 1
s_lshl1_add_u32 s85, s42, s51
s_lshr_b32 s51, s3, 1
s_lshl3_add_u32 s85, s85, s51
s_lshl2_add_u32 s85, s85, s90
s_lshl_b32 s85, s85, 4
s_add_u32 s85, s85, %d
s_xor_b32 s86, s85, 0x%x
v_lshlrev_b32 v62, 8, v8
v_lshl_add_u32 v62, v9, 1, v62
s_lshl_b32 s55, s42, 4
s_lshl_b32 s51, s3, 13
s_add_u32 s55, s55, s51
s_add_u32 s55, s55, %d
v_lshl_add_u32 v54, v11, 2, v12
s_lshl_b32 s53, s3, 7
v_lshl_add_u32 v55, v54, 3, s53
v_lshlrev_b32 v54, 9, v54
v_lshlrev_b32 v53, 3, v2
v_and_b32 v57, 1, v11
v_lshlrev_b32 v57, 4, v57
v_lshl_add_u32 v57, v9, 5, v57
v_lshrrev_b32 v6, 5, v2
v_lshl_add_u32 v57, v6, 8, v57
s_lshl_b32 s53, s3, 9
v_add_u32 v57, s53, v57
s_mul_i32 s53, s3, 288
v_lshlrev_b32 v63, 4, v12
v_lshl_add_u32 v63, v11, 3, v63
v_add_u32 v63, s53, v63
v_mul_u32_u24 v4, 288, v9
v_lshl_add_u32 v4, v11, 4, v4
s_lshl_b32 s59, s3, 12
s_add_u32 s59, s59, %d
s_lshl_b32 s50, s3, 6
s_add_u32 s50, s50, %d
v_lshl_add_u32 v1, v8, 3, s50
ds_read_b64 v[32:33], v1
s_waitcnt lgkmcnt(0)""" % (16*2752, PART, GU, H4, H4X, ML, L_U, L_XN))
for n in range(2):
    for r in range(4): a("v_and_b32 v%d, v%d, v%d" % (64+4*n+r, 32+n, 16+r))
def qdflag():
    c("drained-flag of this wave's q_abs half record (only read on the slow path)")
    a("s_cmp_lt_u32 s3, 4\ns_cbranch_scc1 L_noqd\ns_lshl_b32 s50, s49, 2\ns_add_u32 s50, s50, %d\nv_mov_b32 v88, s46\ns_mov_b64 exec, 1\ns_waitcnt vmcnt(%d)\nbuffer_store_dword v88, v3, %s, s50 offen sc1\ns_mov_b64 exec, -1\nL_noqd:" % (QD, 0 if opt["qde"] else 4, WS))
    if not opt["qde"]: a("s_nop 7")
if opt["qde"]: qdflag()
GL = ["buffer_load_dwordx4 %s, v10, %s, s61 offen offset:%d" % (vr(128+8*n+4*mi), srd(b), n*2752) for n in range(2) for mi, b in enumerate(("wg", "wu"))]
UL = ["s_mov_b32 m0, s59\ns_addk_i32 s59, 1024\nbuffer_load_dwordx4 v%d, %s, s58 offen %s lds\ns_addk_i32 s58, 8192" % (50 + (n&1), srd("wuv"), NTW) for n in range(4)]
T1 = UL + GL if opt["ufirst"] else GL + UL
if opt["pt"]: a("s_barrier")
for l in T1[:opt["pt"]]:
    a(l)
    if opt["pser"]: a("s_waitcnt vmcnt(0)")
c("wave 3 holds the weight stream back until the neighbouring attention CUs are nearly through c_kv (bounded, speed only)")
a("s_cmp_eq_u32 s3, 3\ns_cbranch_scc0 L_go\ns_lshl_b32 s50, s40, 7\ns_add_u32 s50, s50, %d\nv_lshlrev_b32 v5, 2, v12\ns_movk_i32 s48, %d" % (SG, opt["sgl"]))
a("L_sg:\nbuffer_load_dword v6, v5, %s, s50 offen sc1\ns_sub_u32 s48, s48, 1\ns_cbranch_scc1 L_go\ns_waitcnt vmcnt(0)\nv_cmp_eq_u32 vcc, s46, v6\ns_bcnt1_i32_b64 s51, vcc\ns_cmp_lt_u32 s51, %d\ns_cbranch_scc1 L_sg" % (WS, 4*opt["ksig"]))
a("L_go:\ns_barrier")
if opt["fake"] & 1: a("v_bfrev_b32 v10, 1")
if opt["fake"] & 2: a("v_bfrev_b32 v50, 1\nv_bfrev_b32 v51, 1")
st(4)
for k, l in enumerate(T1[opt["pt"]:]):
    if k + opt["pt"] == 4 and k: a("s_barrier")
    a(l)
a("s_waitcnt vmcnt(%d)" % (0 if opt["ufirst"] else 4))
for n in range(2):
    for mi in range(2): mfma(72+4*mi, 64+4*n, 128+8*n+4*mi, "0" if n == 0 else None)
if not opt["qde"]: qdflag()
for r in range(4): a("v_permlane32_swap_b32 v%d, v%d" % (72+r, 76+r))
for r in range(4): dpp("v_add_f32", 72+r, 76+r, 72+r, "row_ror:8")
setexec(0x00ff00ff, 0x00ff00ff)
a("ds_write_b128 v57, v[72:75] offset:%d" % L_FP); execall()
a("s_cmp_eq_u32 s3, 5\ns_waitcnt lgkmcnt(0)\ns_barrier\ns_cbranch_scc0 L_nogup")
for p in range(8): a("ds_read_b64 v[%d:%d], v53 offset:%d" % (32+2*p, 33+2*p, L_FP + p*512))
a("s_waitcnt lgkmcnt(0)")
for stp in (8, 4, 2):
    for e in range(stp): a("v_add_f32 v%d, v%d, v%d" % (32+e, 32+e, 32+stp+e))
a("v_mov_b32 v90, v32\nv_mov_b32 v91, v33\nbuffer_store_dwordx2 v[90:91], v53, %s, s84 offen\nL_nogup:" % WS)
GUG = "s_cmp_eq_u32 s3, 5\ns_cbranch_scc0 %s\nbuffer_store_dwordx2 v[90:91], v53, " + WS + ", s84 offen sc1\n%s:"
st(5)
BULK = "\n".join("buffer_load_dwordx4 %s, v7, %s, s%d offen sc1" % (vr(96+4*n), WS, 80+n) for n in range(4))
c("(max, sum) records of this wave's 16 key splits")
a("s_mov_b32 s52, 0x000f000f\ns_mov_b32 s53, s52\ns_mov_b32 s48, 0\ns_waitcnt vmcnt(0)")
if opt["km"]:
    if opt["km1"]: a("s_cmp_eq_u32 s3, 3\ns_cbranch_scc0 L_smx")
    a("s_lshl_b32 s50, s40, 7\ns_add_u32 s50, s50, %d\nv_lshlrev_b32 v5, 2, v12\ns_movk_i32 s60, 24" % (SG + 64))
    a("L_sm:\nbuffer_load_dword v6, v5, %s, s50 offen sc1\ns_sub_u32 s60, s60, 1\ns_cbranch_scc1 L_smx\ns_waitcnt vmcnt(0)\nv_cmp_eq_u32 vcc, s46, v6\ns_bcnt1_i32_b64 s51, vcc\ns_cmp_lt_u32 s51, %d\ns_cbranch_scc1 L_sm\nL_smx:" % (WS, 4*opt["km"]))
    if opt["km1"]: a("s_barrier")
st(6)
a("L_ml:\ns_mov_b64 exec, s[52:53]\nbuffer_load_dwordx4 v[28:31], v54, %s, s55 offen sc1\ns_add_u32 s48, s48, 1\ns_cmp_ge_u32 s48, %d\ns_cselect_b64 s[50:51], s[52:53], 0\ns_waitcnt vmcnt(0)" % (WS, SPIN))
a("v_cmp_eq_u32 vcc, s46, v30\nv_cmp_eq_u32 s[88:89], s46, v31\ns_and_b64 vcc, vcc, s[88:89]\ns_or_b64 vcc, vcc, s[50:51]\ns_andn2_b64 s[52:53], s[52:53], vcc\ns_cbranch_scc1 L_ml")
cnt(1)
setexec(0x000f000f, 0x000f000f)
a("ds_write_b64 v55, v[28:29] offset:%d\ns_mov_b64 exec, -1\ns_waitcnt lgkmcnt(0)\ns_barrier" % L_WT)
a(BULK)
a("ds_read_b128 v[32:35], v3 offset:%d" % L_WT)
imgrd(192, 52, L_U, 4)
a("s_mov_b32 s54, 0x40004000\ns_mov_b32 s48, 0\ns_mov_b64 s[88:89], -1\ns_waitcnt lgkmcnt(8)")
st(7)
a("v_max_f32 v5, v32, v34")
allred("v_max_f32", 5, 6)
a("v_sub_f32 v29, v28, v5\nv_sub_f32 v32, v32, v5\nv_sub_f32 v34, v34, v5\nv_exp_f32 v29, v29\nv_exp_f32 v32, v32\nv_exp_f32 v34, v34\nv_mul_f32 v28, v32, v33\nv_fmac_f32 v28, v34, v35")
allred("v_add_f32", 28, 6)
a("v_rcp_f32 v28, v28\nv_mul_f32 v29, v29, v28\nv_cvt_pk_bf16_f32 v29, v29, v29")
for n in range(4):
    for r in range(4): dpp("v_and_b32", 64+4*n+r, 29, 24+r, "row_newbcast:%d" % n)
a("L_pt:")
for n in range(4):
    a("s_waitcnt vmcnt(%d)" % (3-n))
    for k in range(4): a("v_xor_b32 v%d, v%d, v%d" % (96+4*n+k, 96+4*n+k, 20+k))
    a("v_or_b32 v5, v96, v97" if n == 0 else "v_or3_b32 v5, v5, v%d, v%d" % (96+4*n, 97+4*n))
    a("v_or3_b32 v5, v5, v%d, v%d" % (98+4*n, 99+4*n))
    mfma(80, 64+4*n, 96+4*n, "0" if n == 0 else None)
a("v_and_b32 v5, s54, v5\nv_cmp_ne_u32 vcc, 0, v5\ns_and_b64 vcc, vcc, s[88:89]\ns_cbranch_vccnz L_ptslow\nL_ptok:")
cold.append("L_ptslow:\ns_add_u32 s48, s48, 1\ns_cmp_ge_u32 s48, %d\ns_cbranch_scc1 L_ptok\ns_cmp_lt_u32 s48, 8\ns_cbranch_scc1 L_ptre\n" % SPIN + GUG % ("L_gug1", "L_gug1") + "\n" +
  "s_lshl_b32 s50, s90, 2\ns_lshl_b32 s51, s3, 9\ns_add_u32 s50, s50, s51\ns_add_u32 s50, s50, %d\n" % DF +
  "v_lshlrev_b32 v5, 5, v12\nbuffer_load_dword v5, v5, %s, s50 offen sc1\ns_waitcnt vmcnt(0)\nv_cmp_ne_u32 vcc, s46, v5\n" % WS +
  "s_cmp_eq_u64 vcc, 0\ns_cselect_b64 s[88:89], 0, -1\nL_ptre:\n" + BULK + "\ns_branch L_pt")
cnt(2); st(8)
a("s_mov_b32 exec_hi, 0\nv_cvt_pk_bf16_f32 v80, v80, v81\nv_cvt_pk_bf16_f32 v81, v82, v83\nds_write_b64 v63, v[80:81] offset:%d" % L_R1); execall()
a(GUG % ("L_gug2", "L_gug2"))
if opt["h4m"] == 2:
    a("s_cmp_eq_u32 s3, %d\ns_cbranch_scc0 L_noh4\ns_lshl_b32 s50, s42, 7\ns_add_u32 s50, s50, %d\nv_mov_b32 v5, s46\ns_mov_b64 exec, 1\nbuffer_store_dword v5, v3, %s, s50 offen\ns_mov_b64 exec, -1\nL_noh4:" % (opt["h4w"], SG + 0x2000, WS))
a("s_waitcnt lgkmcnt(0)\ns_barrier")
for ks in range(4): a("ds_read_b128 %s, v4 offset:%d" % (vr(32+4*ks), L_R1 + 64*ks))
for ks in range(4):
    a("s_waitcnt lgkmcnt(%d)" % (3-ks))
    mfma(84, 32+4*ks, 192+4*ks, "0" if ks == 0 else None)
a("v_add_f32 v84, v84, v85\nv_add_f32 v86, v86, v87\nv_add_f32 v85, v84, v86\nv_add_f32 v84, v84, v86\nv_permlane16_swap_b32 v84, v85\nv_add_f32 v84, v84, v85\ns_mov_b64 exec, 0xffff\nv_cvt_pk_bf16_f32 v84, v84, v84")
a("buffer_store_short v84, v62, %s, s86 offen" % WS)
st(9)
a("s_barrier\nbuffer_store_short v84, v62, %s, s85 offen sc1\ns_branch L_fin" % WS)

DMA = "s_mov_b32 m0, s45\ns_addk_i32 s45, 8192\nbuffer_load_dwordx4 v14, %s, s50 offen %s lds\ns_add_u32 s50, s50, 0x100000\nv_xor_b32 v14, 16, v14" % (srd("ckv"), NT)
a("L_apre:\ns_mov_b64 s[20:21], s[14:15]")
fmt("ckv")
a("""s_lshr_b32 s50, s41, 1
s_lshl4_add_u32 s44, s40, s50
s_lshl3_add_u32 s51, s40, s3
s_lshl4_add_u32 s50, s51, s50
s_lshl_b32 s50, s50, 10
s_lshl_b32 s45, s3, 10
s_lshl_b32 s51, s3, 5
v_xor_b32 v14, s51, v3
s_movk_i32 s60, %d""" % (16 - opt["win0"]))
if opt["pre"]:
    a("s_cmp_lt_u32 s3, 4\ns_cbranch_scc1 L_stagea")
    for n in range(opt["pre"]): a(DMA)
    a("s_movk_i32 s60, %d" % (16 - opt["win0"] - opt["pre"]))
a("s_branch L_stagea\nL_attn:")
c("c_kv row 8n+w of the tile <- key n*1024 + (wg&7)*128 + w*16 + (slot>>1), 16-byte chunks xor-swizzled by 2w+(n&1)")
if opt["hold"]: a("s_waitcnt vmcnt(%d)\ns_barrier" % (opt["pre"] + opt["hold"]))
for n in range(opt["win0"]): a(DMA)
st(3)
a(Q1G)
for b in ("wo","wd","out"): ptr(b)
for b in ("wo","wd","out"): fmt(b)
units(); imgswz(13)
a("""s_and_b32 s55, s3, 3
v_lshrrev_b32 v10, 5, v2
s_lshl_b32 s51, s40, 6
s_add_u32 s51, s51, s41
s_lshl_b32 s51, s51, 1
s_add_u32 s87, s51, %d
s_lshl_b32 s61, s44, 9
s_add_u32 s61, s61, %d
v_add_u32 v7, %d, v3
s_xor_b32 s59, s3, 4
v_lshl_add_u32 v13, v11, 10, v13
v_xor_b32 v15, 0x80, v13
s_lshr_b32 s51, s59, 1
s_lshl2_add_u32 s81, s42, s51
s_and_b32 s53, s59, 1
s_lshl3_add_u32 s81, s81, s53
s_lshl4_add_u32 s81, s81, s90
s_lshl_b32 s81, s81, 8
s_and_b32 s82, s59, 4
s_lshl1_add_u32 s53, s53, s82
s_add_u32 s82, s57, s53
s_and_b32 s51, s51, 1
s_lshl1_add_u32 s82, s82, s51
s_lshl4_add_u32 s82, s82, s90
s_lshl_b32 s82, s82, 8
s_cmp_lt_u32 s53, s56
s_cselect_b32 s47, 0, 0x80000000
s_add_u32 s53, s53, 1
s_cmp_lt_u32 s53, s56
s_cselect_b32 s49, 0, 0x80000000
s_lshl_b32 s83, s59, 12
s_lshl_b32 s86, s59, 11
s_add_u32 s86, s86, 32768
s_cmp_lt_u32 s3, 4
s_cbranch_scc0 L_pvset""" % (SG, ML, L_PX))
if opt["mlpre"]: a("s_cmp_eq_u32 s3, 0\ns_cbranch_scc0 L_nomlp\nv_mov_b32 v36, 0\nv_mov_b32 v37, 0\nv_mov_b32 v38, 0\nv_mov_b32 v39, -1\ns_mov_b32 exec_hi, 0\nbuffer_store_dwordx4 v[36:39], v3, %s, s61 offen sc1\ns_mov_b64 exec, -1\nL_nomlp:" % WS)
ELD = ["s_mov_b32 m0, s83\ns_addk_i32 s83, 1024\nbuffer_load_dwordx4 v%d, %s, s81 offen %s lds\ns_addk_i32 s81, 8192" % ((13, 15)[n&1], srd("wo"), NTW) for n in range(4)] + \
      ["s_mov_b32 m0, s86\ns_addk_i32 s86, 1024\nv_or_b32 v%d, s%d, v%d\nbuffer_load_dwordx4 v%d, %s, s82 offen %s lds\ns_addk_i32 s82, 8192" % ((13, 15)[n], (47, 49)[n], (13, 15)[n], (13, 15)[n], srd("wd"), NTW) for n in range(2)]
c("score waves (p = w>>1, hb = w&1): v16..v23 key-tile bases, v24,v25 q bases, v4/v5 max exchange, v6 P write")
a("""v_and_b32 v28, 3, v2
v_bfe_u32 v29, v2, 2, 1
v_bfe_u32 v30, v2, 3, 1
v_xor_b32 v29, v29, v30
v_lshl_add_u32 v31, v28, 1, v29
v_lshl_add_u32 v29, v31, 1, v30
v_lshl_add_u32 v31, v30, 3, v31
s_lshr_b32 s53, s3, 1
s_and_b32 s52, s3, 1
s_lshl_b32 s56, s53, 14
v_lshl_add_u32 v31, v31, 10, s56
v_xor_b32 v29, v29, v11""")
for k in range(4): a("v_xor_b32 v%d, %d, v29\nv_lshl_add_u32 v%d, v%d, 4, v31\nv_xor_b32 v%d, 0x10000, v%d" % (16+k, 4*k, 16+k, 16+k, 20+k, 16+k))
a("s_lshl_b32 s56, s52, 14\ns_add_u32 s56, s56, %d\nv_xor_b32 v29, v2, v11\nv_lshl_add_u32 v24, v29, 4, s56\nv_xor_b32 v25, 64, v24" % L_Q)
a("s_lshl_b32 s56, s52, 7\ns_add_u32 s56, s56, %d\nv_lshl_add_u32 v5, v12, 3, s56\ns_lshl_b32 s56, s53, 2\nv_add_u32 v4, s56, v5" % L_MX)
a("s_lshl_b32 s56, s3, 10\nv_add_u32 v6, s56, v7\ns_mov_b32 s59, 0x%x\ns_branch L_setdone\nL_pvset:" % f2u(2.0**20))
c("value waves: v16..v23 transposed-read bases, v24..v27 tag masks, v4 q_abs gather, v5 q staging, s32..s39 partial stores")
tagmasks(24, 28)
a("""v_bfe_u32 v28, v2, 2, 2
v_bfe_u32 v29, v2, 4, 1
v_xor_b32 v29, v29, v10
v_lshl_add_u32 v29, v28, 1, v29
v_bfe_u32 v28, v2, 1, 1
v_xor_b32 v28, v28, v10
v_lshl_add_u32 v30, v29, 1, v28
v_lshl_add_u32 v29, v10, 3, v29
v_and_b32 v31, 1, v2
v_lshlrev_b32 v31, 3, v31
v_lshl_add_u32 v31, v29, 10, v31
s_lshl_b32 s56, s55, 8
v_add_u32 v31, s56, v31""")
for t in range(8): a("v_xor_b32 v%d, %d, v30\nv_lshl_add_u32 v%d, v%d, 4, v31" % (16+t, 2*t, 16+t, 16+t))
a("""v_lshlrev_b32 v4, 10, v8
v_lshl_add_u32 v4, v9, 4, v4
s_lshl_b32 s80, s55, 13
s_add_u32 s80, s80, %d
v_xor_b32 v5, v8, v9
v_lshlrev_b32 v5, 4, v5
v_lshl_add_u32 v5, v9, 8, v5
s_and_b32 s56, s55, 1
s_lshl_b32 s56, s56, 7
s_lshr_b32 s51, s55, 1
s_lshl_b32 s51, s51, 14
s_add_u32 s56, s56, s51
s_add_u32 s56, s56, %d
v_add_u32 v5, s56, v5
s_lshl2_add_u32 s32, s44, s55
s_lshl_b32 s32, s32, 3
s_and_b32 s56, s44, 31
s_xor_b32 s32, s32, s56
s_lshl_b32 s32, s32, 10
s_add_u32 s32, s32, %d""" % (QA, L_Q, PART))
for k in range(1, 8): a("s_xor_b32 s%d, s32, %d" % (32+k, k << 10))
SIG = "v_mov_b32 v1, s46\ns_mov_b64 exec, 1\nbuffer_store_dword v1, v3, %s, s87 offen\ns_mov_b64 exec, -1" % WS
def signal(): a("s_cmp_eq_u32 s3, %d\ns_cbranch_scc0 L_nosg\n" % opt["sgw"] + SIG + "\nL_nosg:")
a("s_mov_b32 s54, 0x40004000\nL_setdone:\ns_waitcnt lgkmcnt(0)")
if opt["nsig"] <= 16 - QE:
    a("s_cmp_eq_u32 s3, 7\ns_cselect_b32 s57, %d, -1" % (16 - opt["nsig"]))
    a("L_dma:\ns_waitcnt vmcnt(%d)\n%s\ns_sub_u32 s60, s60, 1\ns_cmp_eq_u32 s60, s57\ns_cbranch_scc0 L_dmans\n%s\nL_dmans:\ns_cmp_lg_u32 s60, %d\ns_cbranch_scc1 L_dma" % (WIN-1, DMA, SIG, QE))
else:
    a("L_dma:\ns_waitcnt vmcnt(%d)\n%s\ns_sub_u32 s60, s60, 1\ns_cmp_lg_u32 s60, %d\ns_cbranch_scc1 L_dma" % (WIN-1, DMA, QE))
def QLD(j): return "buffer_load_dwordx4 %s, v4, %s, s80 offen offset:%d sc1" % (vr(64+4*j), WS, 128*j)
assert 1 <= QE <= 4 and 16 - QE - opt["qwin"] >= 8 and opt["qpf"] <= 4 and QBAR & 8
def trrd(kb, T, t0=0, t1=8):
    for t in range(t0, t1):
        v = 128 + kb*32 + t*4 + T*2
        a("ds_read_b64_tr_b16 v[%d:%d], v%d offset:%d" % (v, v+1, 16+t, ((kb&1) + 2*T)*16384))
a("s_waitcnt vmcnt(%d)\ns_cmp_lt_u32 s3, 4\ns_barrier\ns_cbranch_scc1 L_qkw" % opt["qwin"])
a("s_setprio 1")
sq(0)
for k in range(4): a(QLD(2*k)); a(QLD(2*k+1)); trrd(k>>1, 0, 4*(k&1), 4*(k&1)+4)
sq(1)
trrd(0, 1); trrd(1, 1)
for t in range(8): a("v_xor_b32 v%d, 0x10000, v%d" % (16+t, 16+t))
for n in range(QE):
    a(DMA)
    if 16 - QE + n + 1 == opt["nsig"] and opt["sgw"] == 7: signal()
st(3)
a("s_mov_b32 s48, 0\ns_mov_b64 s[88:89], -1")
for k in range(4):
    if k == 0: sq(2)
    a("s_waitcnt vmcnt(%d)\nL_qchk%d:" % (6 - 2*k + QE, k))
    if opt["dbgq"] == 1: sq(3+k)
    for j in (2*k, 2*k+1):
        for e in range(4): a("v_xor_b32 v%d, v%d, v%d" % (64+4*j+e, 64+4*j+e, 24+e))
        a("ds_write_b128 v5, %s offset:%d" % (vr(64+4*j), 2048*j))
    b = 64 + 8*k
    a("v_or_b32 v29, v%d, v%d\nv_or3_b32 v29, v29, v%d, v%d\nv_or3_b32 v29, v29, v%d, v%d\nv_or3_b32 v29, v29, v%d, v%d" % tuple(range(b, b+8)))
    a("v_and_b32 v29, s54, v29\nv_cmp_ne_u32 vcc, 0, v29\ns_and_b64 vcc, vcc, s[88:89]\ns_cbranch_vccnz L_qslow%d" % k)
    for kk in range(4):
        if (QBAR >> kk) & 1 and k == min(3, kk + (opt["lag"] & 1 if kk else opt["lag"] >> 1)):
            a("s_waitcnt lgkmcnt(%d)\ns_barrier" % (2*(k - kk)))
            if QBAR & ((1 << kk) - 1) == 0: st(4)
    cold.append("L_qslow%d:\ns_movk_i32 s60, %d\ns_branch L_qslow\nL_qre%d:\n" % (k, k, k) + "\n".join(QLD(j) for j in range(2*k, 8)) + "\ns_waitcnt vmcnt(0)\ns_branch L_qchk%d" % k)
cold.append("L_qslow:\ns_add_u32 s48, s48, 1\ns_cmp_lt_u32 s48, 8\ns_cbranch_scc1 L_qre\n" +
  "s_mov_b32 s51, %d\nbuffer_load_dwordx4 v[96:99], v3, %s, s51 offen sc1\nbuffer_load_dwordx4 v[100:103], v3, %s, s51 offen offset:1024 sc1\ns_waitcnt vmcnt(0)\n" % (QD, WS, WS) +
  "".join("v_xor_b32 v%d, s46, v%d\n" % (r, r) for r in range(96, 104)) + "v_or_b32 v96, v96, v97\nv_or3_b32 v96, v96, v98, v99\nv_or3_b32 v96, v96, v100, v101\nv_or3_b32 v96, v96, v102, v103\nv_cmp_ne_u32 vcc, 0, v96\n" +
  "s_cmp_eq_u64 vcc, 0\ns_cselect_b64 s[88:89], 0, -1\ns_cmp_ge_u32 s48, %d\ns_cselect_b64 s[88:89], 0, s[88:89]\nL_qre:\ns_waitcnt vmcnt(0) lgkmcnt(0)\n" % SPIN +
  "s_cmp_eq_u32 s60, 0\ns_cbranch_scc1 L_qre0\ns_cmp_eq_u32 s60, 1\ns_cbranch_scc1 L_qre1\ns_cmp_eq_u32 s60, 2\ns_cbranch_scc1 L_qre2\ns_branch L_qre3")
a("s_setprio 0")
E1 = opt["e1n"]
if opt["fake"] & 4: a("v_bfrev_b32 v13, 1\nv_bfrev_b32 v15, 1")
for l in ELD[:E1]: a(l)
if opt["dbgq"] == 1: sq(7)
if not opt["dbgq"]: cnt(0)
trrd(2, 0); trrd(3, 0)
a("s_waitcnt vmcnt(%d)" % E1)
if opt["dbgq"] == 2: sq(7)
a("s_barrier")
st(5)
trrd(2, 1); trrd(3, 1)
a("s_barrier")
st(7)
a("s_waitcnt lgkmcnt(0)\ns_barrier")
for b in range(2):
    for kb in range(4): a("ds_read_b128 %s, v7 offset:%d" % (vr(32+16*b+4*kb), kb*2048 + b*1024))
st(8)
def epi(b, r):
    o = (32, 64)[b] + 4*r; acc = 64 + 32*b
    return (["v_cvt_pk_bf16_f32 v%d, v%d, v%d" % (o+k, acc+8*k+r, acc+8*k+4+r) for k in range(4)] + ["v_xor_b32 v%d, v%d, v%d" % (o+k, o+k, 24+k) for k in range(4)] +
            ["buffer_store_dwordx4 %s, v3, %s, s%d offen sc1" % (vr(o), WS, 32+4*b+r)])
fill = sum((epi(0, r) for r in range(4)), [])
for b in range(2):
    for kb in range(4):
        if b == 0: a("s_waitcnt lgkmcnt(%d)" % (7 - kb if kb < 3 else 0))
        for t in range(8):
            if not (opt["fake"] & 16 and kb in (1, 2)): mfma(64+32*b+4*t, 32+16*b+4*kb, 128+32*kb+4*t, "0" if kb == 0 else None)
            if opt["mlat"] and 32*b + 8*kb + t == opt["mlat"]: a("s_barrier")
            if opt["hp"] and 32*b + 8*kb + t == opt["hp"]: a("s_cmp_eq_u32 s3, 7\ns_cbranch_scc0 L_nohp\n" + SIG.replace("offen", "offen offset:64") + "\nL_nohp:")
            if b == 1 and 8*kb + t >= 5:
                for _ in range(2 if t & 1 else 1):
                    if fill: a(fill.pop(0))
assert not fill
st(9)
for r in range(4):
    for l in epi(1, r): a(l)
st(10)
a("s_barrier")
for l in ELD[E1:]: a(l)
if E1 < 6: a("s_waitcnt vmcnt(0)")
a("s_branch L_e")
def ard(dst, s, k): a("ds_read_b128 %s, v%d offset:%d" % (vr(dst+4*s), 16 + 4*(k>>1) + (s&3), (s>>2)*256 + (k&1)*32768))
def brd(s): a("ds_read_b128 %s, v%d offset:%d" % (vr(64+4*s), 24 + (s&1), s*1024))
q = []
def lw(x):
    global q
    if x in q:
        i = q.index(x); a("s_waitcnt lgkmcnt(%d)" % (len(q) - 1 - i)); q = q[i+1:]
a("L_qkw:")
for s in range(16): ard(128, s, 0)
for s in range(16): ard(192, s, 1)
for n in range(QE): a(DMA)
if opt["sgw"] == 3 and opt["nsig"] == 15: signal()
a("v_mov_b32 v29, 0x%x\ns_waitcnt vmcnt(%d) lgkmcnt(0)\ns_barrier" % (f2u(20.0), 4))
st(4)
if opt["sgw"] == 3 and opt["nsig"] == 16: signal()
PF = opt["qpf"]; nb = 0
for s in range(PF): brd(s); q.append(("b", s)); nb += 1
for s in range(16):
    lw(("b", s))
    mfma(32, 128+4*s, 64+4*s, "0" if s == 0 else None)
    if nb < 16:
        if nb % 4 == 0 and (QBAR >> (nb//4 - 1)) & 1: a("s_barrier")
        brd(nb); q.append(("b", nb)); nb += 1
    mfma(36, 192+4*s, 64+4*s, "0" if s == 0 else None)
    if s: ard(128, s-1, 2); q.append(("c", s-1))
ard(128, 15, 2); q.append(("c", 15))
nd = 0
for s in range(16):
    lw(("c", s))
    mfma(40, 128+4*s, 64+4*s, "0" if s == 0 else None)
    if s == opt["rpos"]: a("s_waitcnt vmcnt(0)\ns_barrier")
    if s >= opt["rpos"] and nd < 12: ard(192, nd, 3); q.append(("d", nd)); nd += 1
for s in range(16):
    while nd < min(16, s + 6): ard(192, nd, 3); q.append(("d", nd)); nd += 1
    lw(("d", s))
    mfma(44, 192+4*s, 64+4*s, "0" if s == 0 else None)
    if s == 10: a("v_max3_f32 v28, v32, v33, v34")
    if 11 <= s <= 14: a("v_max3_f32 v28, v28, v%d, v%d" % (35+2*(s-11), 36+2*(s-11)))
    if s == 15: a("v_max_f32 v28, v28, v43")
st(6)
a("v_max3_f32 v28, v28, v44, v45\nv_max3_f32 v28, v28, v46, v47")
xrow("v_max_f32", 28, 30)
a("ds_write_b32 v4, v28\ns_waitcnt lgkmcnt(0)\ns_barrier\nds_read_b64 v[30:31], v5")
st(7)
c("scores carry a 2^-20 factor from q_abs; p = 2^(s - max - 20) keeps the partial sums inside the tagged bf16 range")
a("s_waitcnt lgkmcnt(0)\nv_max_f32 v28, v30, v31\nv_fma_f32 v28, v28, s59, v29")
for u in range(2):
    for r in range(32+8*u, 40+8*u): a("v_fma_f32 v%d, v%d, s59, -v28\nv_exp_f32 v%d, v%d" % (r, r, r, r))
    for k in range(4): a("v_cvt_pk_bf16_f32 v%d, v%d, v%d" % (56+4*u+k, 32+8*u+2*k, 33+8*u+2*k))
    a("ds_write_b128 v6, %s offset:%d" % (vr(56+4*u), 4096*u))
a("s_cmp_lt_u32 s3, 2\ns_waitcnt lgkmcnt(0)\ns_barrier")
st(8)
a("s_cbranch_scc0 L_qkidle")
for kb in range(4): a("ds_read_b128 %s, v6 offset:%d" % (vr(32+4*kb), kb*2048))
for k in range(4): a("v_mov_b32 v%d, 0x3f803f80" % (48+k))
a("v_mov_b32 v30, s46\nv_mov_b32 v31, s46\ns_lshl_b32 s56, s3, 4\ns_lshl_b32 s56, 0xffff, s56\ns_waitcnt lgkmcnt(0)")
for kb in range(4): mfma(52, 48, 32+4*kb, "0" if kb == 0 else None)
if opt["mlat"]: a("s_barrier")
a("v_mov_b32 v29, v52\ns_mov_b32 exec_lo, s56\ns_mov_b32 exec_hi, 0\nbuffer_store_dwordx4 v[28:31], v3, %s, s61 offen sc1" % WS)
if opt["km"] and not opt["hp"]: a("s_and_b32 exec_lo, exec_lo, 1\ns_cbranch_scc0 L_nosm\nbuffer_store_dword v30, v3, %s, s87 offen offset:64\nL_nosm:" % WS)
execall()
st(9)
if opt["mlat"]: a("s_branch L_qkid2\nL_qkidle:\ns_barrier")
else: a("L_qkidle:")
a("L_qkid2:")
if opt["hp"] == 99: a("s_barrier\ns_cmp_eq_u32 s3, 3\ns_cbranch_scc0 L_nohp\n" + SIG.replace("offen", "offen offset:64") + "\nL_nohp:")
else: a("\ns_barrier")
if opt["fake"] & 8: a("v_bfrev_b32 v13, 1\nv_bfrev_b32 v15, 1")
for l in ELD: a(l)
a("s_cmp_eq_u32 s3, 2\ns_cbranch_scc0 L_gud")
c("wave 2: h = g*u from the four partial sums of this head's FFN columns")
a("s_lshl_b32 s50, s42, 11\ns_add_u32 s50, s50, %d\nv_lshlrev_b32 v1, 2, v2" % GU)
L = loop_head("gu")
for k in range(8): a("buffer_load_dword v%d, v1, %s, s50 offen offset:%d sc1" % (40+k, WS, 256*k))
a("s_waitcnt vmcnt(0)")
for stp in (4, 2):
    for e in range(stp): a("v_add_f32 v%d, v%d, v%d" % (40+e, 40+e, 40+stp+e))
rbf(40); rbf(41)
a("v_mul_f32 v40, v40, v41\nv_cmp_u_f32 vcc, v40, v40")
retry(L)
cnt(1)
a("v_cvt_pk_bf16_f32 v40, v40, v40\nv_lshlrev_b32 v1, 1, v2\nds_write_b16 v1, v40 offset:%d" % L_HV)
a("L_gud:\ns_waitcnt vmcnt(0)")
a("L_e:")
imgtr(52)
a("""s_lshl_b32 s85, s42, 10
s_add_u32 s85, s85, %d
v_lshlrev_b32 v53, 2, v2
v_lshlrev_b32 v55, 4, v11
s_lshl_b32 s50, s90, 5
s_add_u32 s50, s50, s42
s_lshl3_add_u32 s50, s50, s3
s_lshl_b32 s50, s50, 6
s_add_u32 s50, s50, %d
s_lshr_b32 s53, s40, 1
s_xor_b32 s54, s53, s90
s_and_b32 s53, s42, 2
s_or_b32 s54, s54, s53
s_xor_b32 s53, s3, 2
s_or_b32 s54, s54, s53
s_and_b32 s53, s42, 1
s_lshl1_add_u32 s52, s40, s53
s_and_b32 s51, s52, 3
s_lshl_b32 s51, s51, 7
s_lshl_b32 s52, s52, 6
s_lshl_b32 s57, s90, 14
s_add_u32 s57, s57, s51
s_add_u32 s57, s57, %d
v_lshlrev_b32 v57, 3, v9
v_lshl_add_u32 v57, v11, 1, v57
v_add_u32 v57, s52, v57
v_lshlrev_b32 v56, 11, v8
v_lshl_add_u32 v56, v9, 4, v56
s_waitcnt vmcnt(8) lgkmcnt(0)
s_barrier
global_load_ushort v58, v57, s[12:13]
s_add_u32 s61, s87, 0x1000
@H5T@
ds_read_b128 v[36:39], v55 offset:%d
ds_read_b128 v[40:43], v55 offset:%d""".replace("@H5T@", "buffer_load_dword v6, v55, s[4:7], s61 offen sc1" if opt["h5w"] == 2 else "") % (H4 + H4X*opt["loc"], H5, H5, L_HV, L_HV + 64))
imgrd(144, 52, 32768, 2); imgrd(128, 52, 0, 4)
a("v_cmp_eq_u32 vcc, 0, v12\ns_waitcnt lgkmcnt(0)")
for v in range(36, 44): a("v_cndmask_b32 v%d, 0, v%d, vcc" % (v, v))
mfma(92, 36, 144, "0"); mfma(92, 40, 148)
a("s_xor_b32 s51, s3, 4\ns_lshl3_add_u32 s58, s44, s51\ns_lshl_b32 s58, s58, 2\ns_add_u32 s58, s58, %d\nv_mov_b32 v4, s46\ns_waitcnt vmcnt(0)\nv_lshlrev_b32 v58, 16, v58" % DF)
DFST = "s_mov_b64 exec, 1\nbuffer_store_dword v4, v3, %s, s58 offen sc1\ns_mov_b64 exec, -1" % WS
st(1)
H4L = "buffer_load_dwordx4 v[%d:%d], v3, " + WS + ", s85 offen sc1"
if opt["h4m"] == 1:
    a("s_cmp_eq_u32 s3, 0\ns_cbranch_scc0 L_h4g\ns_movk_i32 s48, 40\nL_h4h:\n" + H4L % (36, 39) + "\ns_sub_u32 s48, s48, 1\ns_cbranch_scc1 L_h4g\ns_waitcnt vmcnt(0)\nv_cmp_ne_u32 vcc, -1, v39\ns_cbranch_vccz L_h4h\nL_h4g:\ns_barrier")
if opt["h4m"] == 2:
    a(H4L % (36, 39))
    a("s_cmp_eq_u32 s3, 0\ns_cbranch_scc0 L_h4g\ns_lshl_b32 s51, s42, 7\ns_add_u32 s51, s51, %d\nv_mov_b32 v5, 0\ns_movk_i32 s48, 40\nL_h4h:\nbuffer_load_dword v6, v5, %s, s51 offen sc1\ns_sub_u32 s48, s48, 1\ns_cbranch_scc1 L_h4g\ns_waitcnt vmcnt(0)\nv_cmp_eq_u32 vcc, s46, v6\ns_cbranch_vccz L_h4h\nL_h4g:\ns_barrier" % (SG + 0x2000, WS))
if not opt["pp4"]:
    a("s_movk_i32 s48, 64\nL_q4:\n" + H4L % (36, 39) + "\ns_sub_u32 s48, s48, 1\ns_cbranch_scc1 L_p4x\ns_waitcnt vmcnt(0)\nv_cmp_eq_u32 vcc, -1, v39\ns_cbranch_vccnz L_q4\ns_branch L_p4a")
c("context partials of this head: two polls in flight on the XCD-local copy, then alternate with the write-through copy")
a("s_movk_i32 s48, 40\n" + H4L % (36, 39) + "\nL_p4:\n" + H4L % (40, 43) + "\ns_waitcnt vmcnt(1)\nv_cmp_eq_u32 vcc, -1, v39\ns_cbranch_vccz L_p4a\n" + H4L % (36, 39))
a("s_sub_u32 s48, s48, 1\ns_cbranch_scc1 L_p4x\ns_waitcnt vmcnt(1)\nv_cmp_eq_u32 vcc, -1, v43\ns_cbranch_vccnz L_p4")
for g in range(4): mfma(64+4*g, 40, 128+4*g, vr(92) if g == 0 else "0")
a("s_branch L_p4j\nL_p4x:")
L = loop_head("h4")
a(H4L % (36, 39) + "\ns_waitcnt vmcnt(0)\nL_p4a:")
for g in range(4): mfma(64+4*g, 36, 128+4*g, vr(92) if g == 0 else "0")
a("L_p4j:\ns_nop 4")
for g in range(4):
    for k in range(2): dpp("v_add_f32", 80+k, 64+4*g+2*k, 65+4*g+2*k, "quad_perm:[0,1,2,3]", row=1 << g)
a("v_add_f32 v82, v80, v81\nv_add_f32 v80, v80, v81\nv_permlane16_swap_b32 v80, v82\nv_add_f32 v81, v80, v82\nv_add_f32 v80, v80, v82\nv_permlane32_swap_b32 v80, v81\nv_add_f32 v80, v80, v81\nv_cmp_u_f32 vcc, v80, v80")
retry(L, "s_xor_b32 s85, s85, 0x%x\ns_and_b32 s87, s48, 31\ns_cmp_eq_u32 s87, 1\ns_cbranch_scc0 @_o\n%s\n@_o:\n" % (H4X, DFST))
a("s_mov_b64 exec, 0xffff\nbuffer_store_dword v80, v53, %s, s50 offen sc1" % WS)
cnt(3); st(2)
if opt["h5w"] == 2: a("s_barrier\ns_cmp_eq_u32 s3, 0\ns_cbranch_scc0 L_noh5\ns_mov_b64 exec, 1\nbuffer_store_dword v4, v3, %s, s61 offen\nL_noh5:" % WS)
a("s_cmp_lt_u32 s3, 4\ns_cbranch_scc1 L_nodf")
if opt["dfl"]: a("s_waitcnt vmcnt(0)")
a(DFST + "\nL_nodf:")
execall()
a("s_cmp_eq_u32 s54, 0\ns_cbranch_scc0 L_fin")
if opt["h5w"] == 1: a("s_waitcnt vmcnt(0)")
if opt["h5w"] == 2:
    a("s_andn2_b32 s61, s61, 127\nv_lshlrev_b32 v5, 2, v12\ns_movk_i32 s60, 16")
    a("L_s5:\nbuffer_load_dword v6, v5, %s, s61 offen sc1\ns_sub_u32 s60, s60, 1\ns_cbranch_scc1 L_s5x\ns_waitcnt vmcnt(0)\nv_cmp_eq_u32 vcc, s46, v6\ns_bcnt1_i32_b64 s51, vcc\ns_cmp_lt_u32 s51, %d\ns_cbranch_scc1 L_s5\nL_s5x:" % (WS, 4*opt["k5"]))
c("16 waves finish 32 output columns each: x + sum over the 32 heads")
def h5l(b):
    for n in range(4): a("buffer_load_dwordx4 %s, v56, %s, s57 offen offset:%d sc1" % (vr(b+4*n), WS, n*512))
def h5q(b, L, inv): a("v_max3_u32 v5, v%d, v%d, v%d\nv_max_u32 v5, v5, v%d\nv_cmp_eq_u32 vcc, -1, v5\ns_cbranch_vcc%s %s" % (b, b+4, b+8, b+12, "nz" if inv else "z", L))
def h5s(b):
    for e in range(0, 8, 2): a("v_pk_add_f32 v[%d:%d], v[%d:%d], v[%d:%d]" % (112+e, 113+e, b+e, b+1+e, b+8+e, b+9+e))
if opt["pp5"]:
    nap = "s_sleep %d" % (opt["pp5"] - 1) if opt["pp5"] > 1 else ""
    a("s_movk_i32 s48, 64"); h5l(32)
    a("L_p5:\n" + nap); h5l(64); a("s_waitcnt vmcnt(4)"); h5q(32, "L_p5a", False)
    a(nap); h5l(96); a("s_waitcnt vmcnt(4)"); h5q(64, "L_p5b", False)
    a(nap); h5l(32); a("s_sub_u32 s48, s48, 1\ns_cbranch_scc1 L_p5x\ns_waitcnt vmcnt(4)"); h5q(96, "L_p5", True)
    h5s(96); a("s_branch L_p5j\nL_p5b:"); h5s(64); a("s_branch L_p5j\nL_p5x:")
L = loop_head("h5")
h5l(32)
a("s_waitcnt vmcnt(0)\nL_p5a:")
h5s(32)
a("L_p5j:\nv_pk_add_f32 v[112:113], v[112:113], v[116:117]\nv_pk_add_f32 v[114:115], v[114:115], v[118:119]\ns_mov_b32 s88, 0x00ff00ff\ns_mov_b32 s89, s88")
a("v_permlane32_swap_b32 v112, v114\nv_permlane32_swap_b32 v113, v115\nv_add_f32 v112, v112, v114\nv_add_f32 v113, v113, v115\nv_cmp_u_f32 vcc, v112, v113\nv_permlane16_swap_b32 v112, v113")
retry(L)
a("v_add_f32 v112, v112, v113")
dpp("v_add_f32", 112, 112, 112, "row_ror:8")
a("s_mov_b64 exec, s[88:89]\nv_add_f32 v112, v112, v58\nv_cvt_pk_bf16_f32 v112, v112, v112\nbuffer_store_short v112, v57, %s, 0 offen" % srd("out"))
cnt(2); st(11)
a("s_cmp_eq_u32 s42, 0\ns_cbranch_scc0 L_fin\ns_mov_b64 exec, 1\nbuffer_store_dword v4, v3, %s, 0 offen" % WS)
a("L_fin:")
if opt["stamps"]:
    execall()
    write_stamps(a, 16, 4, 2, 3, 8)
a("L_end:\ns_endpgm")
for x in cold: a(x)
a("L_codeend:\n.fill (16384 + 512 - (L_codeend - %s))/4, 4, 0xbf800000" % K)
txt = a.text()
if opt["cyc"]: txt = txt.replace("s_memrealtime", "s_memtime") + "; s_memrealtime\n"
open(sys.argv[1], "w").write(finish(["grid=(256,1,1) block=(512,1,1) lds=163840"], hazard.fix(txt, False), [descriptor(K, 256, 102, 256)]))
```
